```python
import torch

def _softmax(x, axis=-1):
    return torch.softmax(x, dim=axis)
def _gelu(x):
    return torch.nn.functional.gelu(x, approximate="tanh")
def _silu(x):
    return torch.nn.functional.silu(x)
def _sigmoid(x):
    return torch.sigmoid(x)
def _layernorm(x, axis=-1, eps=1e-5):
    m = x.mean(dim=axis, keepdim=True)
    v = x.var(dim=axis, keepdim=True, unbiased=False)
    return (x - m) / torch.sqrt(v + eps)
def _scatter_add(tgt, idx, src, axis=0):
    return tgt.clone().index_add_(axis, idx, src)
def _segment_sum(src, seg, n):
    out = torch.zeros((n,) + src.shape[1:], dtype=src.dtype)
    return out.index_add_(0, seg, src)
def _pad(x, pw):
    flat = tuple(v for pair in reversed(pw) for v in pair)
    return torch.nn.functional.pad(x, flat)

kernel_name = 'gated_mix__sliding_block__swiglu_ffn__prompt'

def setup_inputs():

    _w = (lambda a: (lambda t: t.to(torch.bfloat16) if t.is_floating_point() else t)(torch.as_tensor(a)))
    def _A_setup():
        B, S, D = 1, 2048, 640
        return {
            "x": _w((lambda *s: torch.randn(*s, dtype=torch.bfloat16) * 0.05)(B, S, D)),
            "wqkv": _w((lambda *s: torch.randn(*s, dtype=torch.bfloat16) * 0.8)(D, 3 * D)),
            "wo": _w((lambda *s: torch.randn(*s, dtype=torch.bfloat16) * 0.05)(D, D)),
        }
    _A_in = _A_setup()

    def _B_setup():
        B, S, D, F = 1, 2048, 640, 1536
        return {
            "x": _w((lambda *s: torch.randn(*s, dtype=torch.bfloat16) * 0.05)(B, S, D)),
            "w_gate": _w((lambda *s: torch.randn(*s, dtype=torch.bfloat16) * 0.2)(D, F)),
            "w_up": _w((lambda *s: torch.randn(*s, dtype=torch.bfloat16) * 0.2)(D, F)),
            "w_down": _w((lambda *s: torch.randn(*s, dtype=torch.bfloat16) * 0.2)(F, D)),
        }
    _B_in = _B_setup()

    return {
        "A_x": _A_in["x"],
        "A_wqkv": _A_in["wqkv"],
        "A_wo": _A_in["wo"],
        "B_x": _B_in["x"],
        "B_w_gate": _B_in["w_gate"],
        "B_w_up": _B_in["w_up"],
        "B_w_down": _B_in["w_down"],
        "gate_w": _w((lambda *s: torch.randn(*s, dtype=torch.bfloat16) * 0.05)(640) * 16.0),
    }

def reference(A_x, A_wqkv, A_wo, B_x, B_w_gate, B_w_up, B_w_down, gate_w):
    def _A_ref(x, wqkv, wo):
        B, S, D = x.shape
        H = 32; Dh = D // H; W = 256
        qkv = (lambda x, *d: x.permute(*d))((x @ wqkv).reshape(B, S, 3, H, Dh), 2, 0, 3, 1, 4)
        q, k, v = qkv[0], qkv[1], qkv[2]
        scores = torch.einsum("bhqd,bhkd->bhqk", q, k) * (Dh ** -0.5)
        idx = torch.arange(S)
        mask = (idx[:, None] - idx[None, :] >= 0) & (idx[:, None] - idx[None, :] < W)
        scores = torch.where(mask[None, None], scores, -1e9)
        p = _softmax(scores, axis=-1)
        o = torch.einsum("bhqk,bhkd->bhqd", p, v)
        return (lambda x, *d: x.permute(*d))(o, 0, 2, 1, 3).reshape(B, S, D) @ wo

    def _B_ref(x, w_gate, w_up, w_down):
        g = _silu(x @ w_gate)
        u = x @ w_up
        return (g * u) @ w_down

    x = A_x
    g = _sigmoid((x * gate_w).sum(-1, keepdims=True))
    a = _A_ref(x, A_wqkv, A_wo)
    b = _B_ref(x, B_w_gate, B_w_up, B_w_down)
    return g * a + (1 - g) * b
```

```python
OPT = set()
class Asm:
    def __init__(self):
        self.lines = []
        self.vm = []
    def __call__(self, s):
        for l in s.strip('\n').split('\n'):
            l = l.strip()
            if l: self.lines.append(('' if l.endswith(':') else '  ') + l)
    def label(self, n): self.lines.append(n + ':')
    def text(self): return '\n'.join(self.lines) + '\n'
    def vmem(self, s, tag=None):
        self(s); self.vm.append(tag)
    def vmwait_n(self, tags):
        last = -1
        for i, t in enumerate(self.vm):
            if t in tags: last = i
        if last < 0: return None
        n = len(self.vm) - 1 - last
        self.vm = self.vm[last + 1:]
        assert n <= 63
        return n
    def vmwait(self, tags, extra=''):
        n = self.vmwait_n(tags)
        if n is None:
            if extra: self('s_waitcnt ' + extra)
        else:
            self(f's_waitcnt vmcnt({n}) {extra}')

def vr(b, n=1): return f'v{b}' if n == 1 else f'v[{b}:{b+n-1}]'
def sr(b, n=1): return f's{b}' if n == 1 else f's[{b}:{b+n-1}]'

def interleave(main, fill, start=0, per=1):
    out = []; fi = 0
    for i, m in enumerate(main):
        out.append(m)
        if i >= start:
            for _ in range(per):
                if fi < len(fill):
                    out.append(fill[fi]); fi += 1
    out += fill[fi:]
    return out

PS = 16640
WS_QKV = 0
WS_A2 = 0x800000
WS_W2 = 0x1200000
WS_G = 0x1500000
WS_PROF = 0x1600000
WS_O = 0x1700000
WS_SIZE = 0x1A00000

def srd(a, d, base, nrec, add=None):
    if add is None:
        a(f's_mov_b32 s{d}, s{base}\ns_mov_b32 s{d+1}, s{base+1}')
    else:
        a(f's_add_u32 s{d}, s{base}, {add}\ns_addc_u32 s{d+1}, s{base+1}, 0')
    a(f's_mov_b32 s{d+2}, {nrec}\ns_mov_b32 s{d+3}, 0x20000')

S_X, S_WQKV, S_WO, S_WG, S_WU, S_WD, S_GW, S_OUT, S_DBG, S_WS = 4, 6, 8, 12, 14, 16, 18, 20, 22, 24
S_W = 26
SRD_WS = 52

def common_entry(a, name):
    a(f'''
    s_cmp_ge_u32 s2, 256
    s_cbranch_scc1 {name}_end
    s_load_dwordx16 s[4:19], s[0:1], 0
    s_load_dwordx4 s[20:23], s[0:1], 64
    s_load_dwordx2 s[24:25], s[0:1], 80
    v_lshrrev_b32 v1, 6, v0
    v_and_b32 v0, 63, v0
    v_readfirstlane_b32 s26, v1
    ''')

def stamp(a, idx, on):
    if f'fix{idx}' in OPT: a('s_memrealtime s[100:101]\ns_waitcnt lgkmcnt(0)')
    if not on: return
    a(f'''
    {'s_memtime' if 'cyc' in OPT else 's_memrealtime'} s[100:101]
    s_waitcnt lgkmcnt(0)
    v_writelane_b32 v255, s100, {idx}
    ''')
def stamp_flush(a, on, kidx):
    if not on: return
    a(f'''
    s_lshl_b32 s100, s2, 3
    s_add_u32 s100, s100, s26
    s_lshl_b32 s100, s100, 6
    s_add_u32 s100, s100, {WS_PROF + kidx*0x20000}
    v_mbcnt_lo_u32_b32 v254, -1, 0
    v_mbcnt_hi_u32_b32 v254, -1, v254
    v_cmp_gt_u32 vcc, 16, v254
    v_lshlrev_b32 v254, 2, v254
    s_and_saveexec_b64 s[98:99], vcc
    buffer_store_dword v255, v254, s[52:55], s100 offen
    s_mov_b64 exec, s[98:99]
    ''')
```

```python
from base import *
LOG2E = 1.4426950408889634
import struct
def f2u(x): return struct.unpack('<I', struct.pack('<f', x))[0]

SRD_X = 28; SRD_W = 32; SRD_M = 56
S_SW0, S_SW1, S_STW0, S_STW1, S_WDS, S_SX, S_XDS, S_WRS, S_XRS, S_CNT = range(60, 70)
S_MB, S_J, S_LC0, S_T0, S_T1, S_T2, S_T3, S_RU = range(70, 78)
V_ACC = 0 + 16
V_FR = 96
V_OW0, V_OW1, V_OX0, V_OX1, V_WB, V_XB0, V_XB1, V_WA, V_XA = range(1, 10)
V_T = 168
WSLOT = 20480; NWS = 5; XBASE = WSLOT * NWS; XSLOT = 16384; RBASE = XBASE + 3 * XSLOT

def acc(c, t): return V_ACC + (c * 4 + t) * 4
def wfr(st, c): return V_FR + st * 36 + c * 4
def xfr(st, t): return V_FR + st * 36 + 20 + t * 4

def dma_w(a):
    g = []
    for c in range(5):
        g.append(f's_add_u32 m0, s{S_WDS}, {c*4096}\ns_nop 0\nbuffer_load_dwordx4 v{V_OW0 if c == 0 else V_OW1}, {sr(SRD_W+4*c,4)}, s{S_SW0 if c == 0 else S_SW1} offen lds')
    g.append(f'''s_add_u32 s{S_SW0}, s{S_SW0}, s{S_STW0}
    s_add_u32 s{S_SW1}, s{S_SW1}, s{S_STW1}
    s_add_u32 s{S_WDS}, s{S_WDS}, {2*WSLOT}
    s_cmp_ge_u32 s{S_WDS}, {NWS*WSLOT}
    s_cselect_b32 s{S_T0}, {NWS*WSLOT}, 0
    s_sub_u32 s{S_WDS}, s{S_WDS}, s{S_T0}''')
    return g
def dma_x(a):
    g = []
    for i in range(2):
        g.append(f's_add_u32 m0, s{S_XDS}, {i*1024}\ns_nop 0\nbuffer_load_dwordx4 v{V_OX0+i}, {sr(SRD_X,4)}, s{S_SX} offen lds')
    g.append(f'''s_add_u32 s{S_SX}, s{S_SX}, 128
    s_cmp_ge_u32 s{S_SX}, 1280
    s_cselect_b32 s{S_SX}, 0x40000000, s{S_SX}
    s_add_u32 s{S_XDS}, s{S_XDS}, {XSLOT}
    s_cmp_ge_u32 s{S_XDS}, {RBASE}
    s_cselect_b32 s{S_T0}, {3*XSLOT}, 0
    s_sub_u32 s{S_XDS}, s{S_XDS}, s{S_T0}''')
    return g
def reads(st):
    g = []
    order = [('x', 0), ('w', 0), ('x', 1), ('x', 2), ('x', 3), ('w', 1), ('w', 2), ('w', 3), ('w', 4)]
    for k, i in order:
        if k == 'x':
            g.append(f'ds_read_b128 {vr(xfr(st,i),4)}, v{V_XA} offset:{i*2048}')
        else:
            for h in range(2):
                g.append(f'ds_read_b64_tr_b16 {vr(wfr(st,i)+2*h,2)}, v{V_WA} offset:{i*4096+h*512}')
    return g
def next_addr(ks_next):
    s = f'''s_add_u32 s{S_WRS}, s{S_WRS}, {WSLOT}
    s_cmp_ge_u32 s{S_WRS}, {NWS*WSLOT}
    s_cselect_b32 s{S_WRS}, 0, s{S_WRS}
    '''
    if ks_next == 0:
        s += f'''s_add_u32 s{S_XRS}, s{S_XRS}, {XSLOT}
        s_cmp_ge_u32 s{S_XRS}, {RBASE}
        s_cselect_b32 s{S_XRS}, {XBASE}, s{S_XRS}
        '''
    s += f'v_add_u32 v{V_WA}, s{S_WRS}, v{V_WB}\nv_add_u32 v{V_XA}, s{S_XRS}, v{V_XB0+ks_next}'
    return s

def stage1(a, name, prof, sc=''):
    a(f'''
    s_and_b32 s{S_T0}, s2, 7
    s_lshr_b32 s{S_T1}, s2, 3
    s_and_b32 s{S_MB}, s{S_T0}, 1
    s_lshl_b32 s{S_MB}, s{S_MB}, 3
    s_and_b32 s{S_T2}, s{S_T1}, 7
    s_add_u32 s{S_MB}, s{S_MB}, s{S_T2}
    s_lshr_b32 s{S_J}, s{S_T0}, 1
    s_lshr_b32 s{S_T1}, s{S_T1}, 3
    s_lshl_b32 s{S_T1}, s{S_T1}, 2
    s_add_u32 s{S_J}, s{S_J}, s{S_T1}
    ''')
    a(f'''
    s_mul_i32 s{S_T0}, s{S_J}, 5
    s_sub_u32 s{S_T0}, s{S_T0}, 48
    s_min_i32 s{S_T0}, s{S_T0}, 25
    s_cmp_lt_u32 s{S_J}, 12
    s_cselect_b32 s{S_LC0}, s{S_J}, s{S_T0}
    s_mov_b32 s{S_STW0}, 3840
    s_cselect_b32 s{S_STW1}, 3072, s{S_STW0}
    ''')
    t = V_T
    a(f'''
    s_and_b32 s{S_T0}, s{S_W}, 3
    s_lshr_b32 s{S_T1}, s{S_W}, 2
    v_lshrrev_b32 v{t}, 3, v0
    v_and_b32 v{t+1}, 7, v0
    v_bfe_u32 v{t+2}, v0, 4, 1
    s_and_b32 s{S_T2}, s{S_W}, 1
    s_lshl_b32 s{S_T2}, s{S_T2}, 1
    v_or_b32 v{t+2}, s{S_T2}, v{t+2}
    v_lshlrev_b32 v{t+2}, 1, v{t+2}
    v_xor_b32 v{t+2}, v{t+2}, v{t+1}
    v_lshlrev_b32 v{t+2}, 4, v{t+2}
    s_lshl_b32 s{S_T2}, s{S_T0}, 3
    v_add_u32 v{t+3}, s{S_T2}, v{t}
    v_mad_u32_u24 v{V_OW0}, v{t+3}, s{S_STW0}, v{t+2}
    v_mad_u32_u24 v{V_OW1}, v{t+3}, s{S_STW1}, v{t+2}
    s_lshr_b32 s{S_T2}, s{S_W}, 1
    s_lshl_b32 s{S_T2}, s{S_T2}, 5
    s_and_b32 s{S_T3}, s{S_W}, 1
    s_add_u32 s{S_T2}, s{S_T2}, s{S_T3}
    v_lshl_add_u32 v{t+3}, v{t}, 1, s{S_T2}
    v_mul_u32_u24 v{t+3}, 1280, v{t+3}
    v_lshrrev_b32 v{t+4}, 4, v0
    v_xor_b32 v{t+4}, v{t+4}, v{t+1}
    v_lshl_add_u32 v{V_OX0}, v{t+4}, 4, v{t+3}
    v_xor_b32 v{V_OX1}, 64, v{V_OX0}
    v_add_u32 v{V_OX1}, {16*1280}, v{V_OX1}
    ''')
    a(f'''
    s_xor_b32 s{S_T2}, s{S_T1}, 1
    s_mul_i32 s{S_WDS}, s{S_T2}, {WSLOT}
    s_lshl_b32 s{S_T3}, s{S_T0}, 10
    s_add_u32 s{S_WDS}, s{S_WDS}, s{S_T3}
    s_lshl_b32 s{S_T2}, s{S_T2}, 5
    s_mul_i32 s{S_SW0}, s{S_T2}, s{S_STW0}
    s_mul_i32 s{S_SW1}, s{S_T2}, s{S_STW1}
    s_lshl_b32 s{S_STW0}, s{S_STW0}, 6
    s_lshl_b32 s{S_STW1}, s{S_STW1}, 6
    s_mov_b32 s{S_SX}, 0
    s_lshl_b32 s{S_XDS}, s{S_W}, 11
    s_add_u32 s{S_XDS}, s{S_XDS}, {XBASE}
    s_mul_i32 s{S_T2}, s{S_MB}, {128*1280}
    s_lshl_b32 s{S_T3}, s{S_LC0}, 7
    s_waitcnt lgkmcnt(0)
    ''')
    srd(a, SRD_X, S_X, 128 * 1280, f's{S_T2}')
    srd(a, SRD_WS, S_WS, WS_SIZE)
    nq = 639 * 3840 + 128; ng = 639 * 3072 + 128
    srd(a, SRD_W, S_WQKV, nq, f's{S_T3}')
    a(f's_cmp_lt_u32 s{S_J}, 12\ns_cbranch_scc1 {name}_s1g')
    for c in range(1, 5):
        srd(a, SRD_W + 4 * c, SRD_W, nq, 128 * c)
    a(f's_branch {name}_s1h\n{name}_s1g:\ns_lshl_b32 s{S_T3}, s{S_J}, 8')
    srd(a, SRD_W + 4, S_WG, ng, f's{S_T3}')
    srd(a, SRD_W + 8, SRD_W + 4, ng, 128)
    srd(a, SRD_W + 12, S_WU, ng, f's{S_T3}')
    srd(a, SRD_W + 16, SRD_W + 12, ng, 128)
    a(f'{name}_s1h:')
    stamp(a, 1, prof)
    a(f's_cmp_eq_u32 s{S_T1}, 0\ns_cbranch_scc1 {name}_s1p0')
    for grp in (dma_w, dma_x, dma_w, dma_x, dma_w):
        for g in grp(a): a(g)
    a(f's_branch {name}_s1pe\n{name}_s1p0:')
    for grp in (dma_x, dma_w, dma_x, dma_w, dma_x):
        for g in grp(a): a(g)
    a(f'{name}_s1pe:')
    srd(a, SRD_M, S_GW, 1280)
    a(f'''
    s_lshl_b32 s{S_T2}, s{S_J}, 3
    s_add_u32 s{S_T2}, s{S_T2}, s{S_W}
    s_mul_i32 s{S_T3}, s{S_T2}, 1280
    v_lshlrev_b32 v{t}, 2, v0
    ''')
    for i in range(5):
        a(f'buffer_load_dword v{t+1+i}, v{t}, {sr(SRD_X,4)}, s{S_T3} offen offset:{256*i}')
        a(f'buffer_load_dword v{t+6+i}, v{t}, {sr(SRD_M,4)}, 0 offen offset:{256*i}')
    a(f'''
    s_mul_i32 s{S_RU}, s2, 3
    s_add_u32 s{S_RU}, s{S_RU}, s{S_W}
    s_cmp_lt_u32 s{S_W}, 3
    s_cselect_b32 s{S_RU}, s{S_RU}, 1000
    s_cmp_ge_u32 s{S_RU}, 680
    s_cbranch_scc1 {name}_s1r
    s_mul_i32 s78, s{S_RU}, 6554
    s_lshr_b32 s78, s78, 16
    s_mul_i32 s79, s78, 10
    s_sub_u32 s79, s{S_RU}, s79
    s_lshl_b32 s79, s79, 7
    s_lshr_b32 s80, s78, 2
    s_lshl_b32 s80, s80, 7
    s_and_b32 s81, s78, 3
    s_lshl_b32 s81, s81, 4
    s_add_u32 s80, s80, s81
    s_sub_u32 s81, s78, 48
    s_lshl_b32 s81, s81, 5
    s_cmp_lt_u32 s78, 48
    s_cselect_b32 s80, s80, s81
    s_mov_b32 s81, {16*1280}
    s_mov_b32 s86, {640*1280}
    s_cselect_b32 s81, {64*1280}, s81
    s_cselect_b32 s84, s{S_WD}, s{S_WO}
    s_cselect_b32 s85, s{S_WD+1}, s{S_WO+1}
    s_cselect_b32 s86, {1536*1280}, s86
    s_mov_b32 s87, 0x20000
    s_mul_i32 s80, s80, 1280
    s_add_u32 s80, s80, s79
    v_lshrrev_b32 v{t+12}, 3, v0
    v_mul_u32_u24 v{t+12}, 1280, v{t+12}
    v_and_b32 v{t+13}, 7, v0
    v_lshl_add_u32 v{t+12}, v{t+13}, 4, v{t+12}
    s_lshl_b32 s79, s{S_W}, 12
    s_add_u32 s79, s79, {RBASE}
    ''')
    for i in range(4):
        if i == 1 or i == 3: a(f's_add_u32 s82, s80, {8*1280}')
        if i == 2: a('s_add_u32 s80, s80, s81')
        a(f's_add_u32 m0, s79, {i*1024}\ns_nop 0\nbuffer_load_dwordx4 v{t+12}, s[84:87], s{82 if i & 1 else 80} offen lds')
    a(f'{name}_s1r:')
    a(f'''
    v_lshrrev_b32 v{t+12}, 4, v0
    v_bfe_u32 v{t+13}, v0, 2, 2
    v_and_b32 v{t+14}, 3, v0
    v_lshlrev_b32 v{V_WB}, 10, v{t+12}
    v_lshl_add_u32 v{V_WB}, v{t+13}, 7, v{V_WB}
    v_lshl_add_u32 v{V_WB}, v{t+14}, 3, v{V_WB}
    v_bfe_u32 v{t+14}, v0, 3, 2
    s_and_b32 s{S_T0}, s{S_W}, 3
    v_xor_b32 v{t+14}, s{S_T0}, v{t+14}
    v_lshl_add_u32 v{V_WB}, v{t+14}, 5, v{V_WB}
    v_and_b32 v{t+13}, 15, v0
    v_bfe_u32 v{t+14}, v0, 1, 3
    v_xor_b32 v{t+14}, v{t+14}, v{t+12}
    v_lshlrev_b32 v{t+14}, 4, v{t+14}
    v_lshl_add_u32 v{t+14}, v{t+13}, 7, v{t+14}
    s_lshl_b32 s{S_T0}, s{S_T1}, 13
    v_add_u32 v{V_XB0}, s{S_T0}, v{t+14}
    v_xor_b32 v{V_XB1}, 64, v{V_XB0}
    s_mov_b32 s{S_WRS}, 0
    s_mov_b32 s{S_XRS}, {XBASE}
    v_mov_b32 v{V_WA}, v{V_WB}
    v_add_u32 v{V_XA}, s{S_XRS}, v{V_XB0}
    s_mov_b32 s{S_CNT}, 0
    ''')
    for i in range(80): a(f'v_mov_b32 v{V_ACC+i}, 0')
    for P in (1, 0):
        if P == 1: a(f's_cmp_eq_u32 s{S_T1}, 0\ns_cbranch_scc1 {name}_s1l0pre')
        else: a(f'{name}_s1l0pre:')
        a(f's_waitcnt vmcnt({(12+2 if P == 0 else 7+5) + 10})\ns_barrier')
        stamp(a, 2, prof)
        for g in reads(0): a(g)
        a(next_addr(1))
        a(f'{name}_s1l{P}:')
        for par in range(2):
            n = {(0, 0): 9, (0, 1): 12, (1, 1): 7, (1, 0): None}[(P, par)]
            a(f's_waitcnt lgkmcnt(0)' + (f' vmcnt({n})' if n is not None else '') + '\ns_barrier')
            mf = [f'v_mfma_f32_16x16x32_bf16 {vr(acc(c,tt),4)}, {vr(wfr(par,c),4)}, {vr(xfr(par,tt),4)}, {vr(acc(c,tt),4)}' for c in range(5) for tt in range(4)]
            rd = reads(1 - par)
            rd2 = ['\n'.join(rd[i:i+2]) for i in range(0, 14, 2)]
            fill = rd2 + [next_addr(par)] + (dma_w(a) if par == P else dma_x(a))
            for l in interleave(mf, fill): a(l)
        a(f's_add_u32 s{S_CNT}, s{S_CNT}, 1\ns_cmp_lt_u32 s{S_CNT}, 10\ns_cbranch_scc1 {name}_s1l{P}')
        if P == 1: a(f's_branch {name}_s1e')
    a(f'{name}_s1e:\ns_waitcnt lgkmcnt(0)')
    stamp(a, 3, prof)
    u = V_T + 16
    a(f'''
    s_and_b32 s{S_T0}, s{S_W}, 3
    s_lshl_b32 s{S_T2}, s{S_LC0}, 2
    s_add_u32 s{S_T2}, s{S_T2}, s{S_T0}
    s_lshl_b32 s{S_T2}, s{S_T2}, 16
    s_lshl_b32 s{S_T3}, s{S_MB}, 10
    s_add_u32 s{S_T2}, s{S_T2}, s{S_T3}
    s_lshl_b32 s{S_T3}, s{S_T1}, 9
    s_add_u32 s{S_T2}, s{S_T2}, s{S_T3}
    v_lshrrev_b32 v{u}, 4, v0
    v_lshlrev_b32 v{u}, 14, v{u}
    v_and_b32 v{u+1}, 15, v0
    v_lshl_add_u32 v{u}, v{u+1}, 4, v{u}
    s_cmp_lt_u32 s{S_LC0}, 10
    s_cselect_b32 s{S_T3}, {hex(f2u(20 ** -0.5 * LOG2E))}, 1.0
    ''')
    def qkv_tile(c, scale):
        for tp in range(2):
            d = u + 4 + 4 * tp + 8 * (c & 1)
            for tt in range(2):
                b = acc(c, 2 * tp + tt)
                if scale:
                    for r in range(4): a(f'v_mul_f32 v{b+r}, s{S_T3}, v{b+r}')
                a(f'v_cvt_pk_bf16_f32 v{d+2*tt}, v{b}, v{b+1}\nv_cvt_pk_bf16_f32 v{d+2*tt+1}, v{b+2}, v{b+3}')
            a(f'buffer_store_dwordx4 {vr(d,4)}, v{u}, {sr(SRD_WS,4)}, s{S_T2} offen offset:{256*tp} {sc}')
    qkv_tile(0, True)
    a(f'v_mov_b32 v{t+11}, 0')
    for i in range(5):
        a(f'''v_lshlrev_b32 v{t+12}, 16, v{t+1+i}
        v_lshlrev_b32 v{t+13}, 16, v{t+6+i}
        v_and_b32 v{t+14}, 0xffff0000, v{t+1+i}
        v_and_b32 v{t+15}, 0xffff0000, v{t+6+i}
        v_fmac_f32 v{t+11}, v{t+12}, v{t+13}
        v_fmac_f32 v{t+11}, v{t+14}, v{t+15}''')
    g = t + 11
    for dpp in ('row_shr:1', 'row_shr:2', 'row_shr:4', 'row_shr:8', 'row_bcast:15 row_mask:0xa', 'row_bcast:31 row_mask:0xc'):
        a(f's_nop 1\nv_add_f32_dpp v{g}, v{g}, v{g} {dpp}' + (' bound_ctrl:0' if 'shr' in dpp else ''))
    a(f'''
    v_mul_f32 v{g}, {hex(f2u(-LOG2E))}, v{g}
    v_exp_f32 v{g}, v{g}
    s_lshl_b32 s78, s{S_MB}, 4
    s_add_u32 s78, s78, s{S_J}
    v_add_f32 v{g}, 1.0, v{g}
    v_rcp_f32 v{g}, v{g}
    s_lshl_b32 s78, s78, 3
    s_add_u32 s78, s78, s{S_W}
    s_lshl_b32 s78, s78, 2
    s_add_u32 s78, s78, {WS_G - 252}
    s_mov_b32 exec_lo, 0
    s_brev_b32 exec_hi, 1
    buffer_store_dword v{g}, v{t}, {sr(SRD_WS,4)}, s78 offen {sc}
    s_mov_b64 exec, -1
    s_cmp_lt_u32 s{S_J}, 12
    s_cbranch_scc1 {name}_s1eg
    ''')
    for c in range(1, 5):
        a(f's_add_u32 s{S_T2}, s{S_T2}, {16*16384}')
        qkv_tile(c, False)
    a(f's_branch {name}_s1ef\n{name}_s1eg:')
    a(f'''
    s_lshl_b32 s{S_T2}, s{S_MB}, 1
    s_add_u32 s{S_T2}, s{S_T2}, s{S_T1}
    s_mul_i32 s{S_T2}, s{S_T2}, {4*68}
    s_lshl_b32 s{S_T3}, s{S_J}, 2
    s_add_u32 s{S_T2}, s{S_T2}, s{S_T3}
    s_add_u32 s{S_T2}, s{S_T2}, s{S_T0}
    s_lshl_b32 s{S_T2}, s{S_T2}, 10
    s_add_u32 s{S_T2}, s{S_T2}, {WS_A2}
    v_lshlrev_b32 v{u+1}, 4, v0
    s_mov_b32 s{S_T3}, {hex(f2u(-LOG2E))}
    ''')
    e = V_FR
    for tt in range(4):
        d = u + 12 + 4 * (tt & 1)
        idx = [(c, r) for c in range(2) for r in range(4)]
        for k, (c, r) in enumerate(idx): a(f'v_mul_f32 v{e+k}, s{S_T3}, v{acc(1+c,tt)+r}')
        for k in range(8): a(f'v_exp_f32 v{e+k}, v{e+k}')
        for k, (c, r) in enumerate(idx):
            a(f'v_mul_f32 v{acc(1+c,tt)+r}, v{acc(1+c,tt)+r}, v{acc(3+c,tt)+r}\nv_add_f32 v{e+k}, 1.0, v{e+k}')
        for k in range(8): a(f'v_rcp_f32 v{e+k}, v{e+k}')
        a('s_nop 0')
        for k, (c, r) in enumerate(idx): a(f'v_mul_f32 v{e+k}, v{e+k}, v{acc(1+c,tt)+r}')
        for k in range(4): a(f'v_cvt_pk_bf16_f32 v{d+k}, v{e+2*k}, v{e+2*k+1}')
        a(f'buffer_store_dwordx4 {vr(d,4)}, v{u+1}, {sr(SRD_WS,4)}, s{S_T2} offen {sc}')
        if tt < 3: a(f's_add_u32 s{S_T2}, s{S_T2}, {68*1024}')
    a(f'{name}_s1ef:')
    a(f'''
    s_cmp_ge_u32 s{S_RU}, 680
    s_cbranch_scc1 {name}_s1rf
    v_lshrrev_b32 v{e}, 2, v0
    v_lshlrev_b32 v{e}, 7, v{e}
    v_and_b32 v{e+1}, 3, v0
    v_lshl_add_u32 v{e}, v{e+1}, 3, v{e}
    s_lshl_b32 s79, s{S_W}, 12
    s_add_u32 s79, s79, {RBASE}
    v_add_u32 v{e}, s79, v{e}
    v_lshlrev_b32 v{e+1}, 4, v0
    s_lshl_b32 s79, s{S_RU}, 12
    s_add_u32 s79, s79, {WS_W2}
    ''')
    for uu in range(4):
        for h in range(2):
            a(f'ds_read_b64_tr_b16 {vr(e+4+4*uu+2*h,2)}, v{e} offset:{h*2048+uu*32}')
    a('s_waitcnt lgkmcnt(0)')
    for uu in range(4):
        a(f'buffer_store_dwordx4 {vr(e+4+4*uu,4)}, v{e+1}, {sr(SRD_WS,4)}, s79 offen offset:{1024*uu} {sc}')
    a(f'{name}_s1rf:')
    stamp(a, 4, prof)
```

```python
from base import *
PL = 4128; KB = 0; VB = 6 * PL
S_H, S_QB, T0, T1, T2, T3 = 60, 61, 62, 63, 64, 65
S_MSK = 66
V_Q0, V_Q1 = 4, 8
V_G, V_KA0, V_KA1, V_VA, V_M = 1, 2, 3, 12, 13
V_PM = 14
V_OA = 22
V_K = 26
V_S = 82
V_MG = 130
V_NM = 146
V_O = 162
V_V = 178
V_P = 194
MF = 'v_mfma_f32_32x32x16_bf16'

def ids(a):
    a(f's_and_b32 s{S_H}, s2, 31\ns_lshr_b32 s{S_QB}, s2, 5')

def setup(a):
    t = V_S
    a(f'''
    s_lshl_b32 s{T0}, s{S_W}, 9
    v_lshl_add_u32 v{t}, v0, 3, s{T0}
    s_lshr_b32 s{T1}, s{S_W}, 2
    s_or_b32 s{T1}, s{T1}, s{S_QB}
    s_cmp_eq_u32 s{T1}, 0
    s_cselect_b32 s{T1}, 0xf149, 0
    v_mov_b32 v{t+2}, s{T1}
    v_mov_b32 v{t+3}, 0
    v_mov_b32 v{t+4}, 0x3f803f80
    v_mov_b32 v{t+5}, 0x3f803f80
    ds_write_b64 v{t}, v[{t+2}:{t+3}] offset:{KB+5*PL}
    ds_write_b64 v{t}, v[{t+4}:{t+5}] offset:{VB+5*PL}
    ''')
    a(f'''
    v_and_b32 v{t}, 31, v0
    v_lshrrev_b32 v{t+1}, 5, v0
    s_lshl_b32 s{T0}, s{S_W}, 8
    v_lshl_add_u32 v{t+2}, v{t}, 3, s{T0}
    v_mul_u32_u24 v{t+3}, {PL}, v{t+1}
    v_add_u32 v{V_KA1}, v{t+2}, v{t+3}
    v_add_u32 v{V_KA0}, v{V_KA1}, v{t+3}
    v_and_b32 v{t+3}, 3, v0
    v_min_u32 v{t+4}, 1, v{t+3}
    v_add_u32 v{t+4}, 4, v{t+4}
    v_and_b32 v{t+5}, 16, v0
    v_cmp_eq_u32 vcc, 0, v{t+5}
    v_bfe_u32 v{t+5}, v0, 2, 2
    v_lshl_add_u32 v{t+5}, v{t+1}, 2, v{t+5}
    v_cndmask_b32 v{t+3}, v{t+4}, v{t+3}, vcc
    v_mul_u32_u24 v{t+3}, {PL}, v{t+3}
    v_lshl_add_u32 v{t+3}, v{t+5}, 3, v{t+3}
    v_add_u32 v{V_VA}, s{T0}, v{t+3}
    ''')
    for e in range(16):
        g, r = e >> 2, e & 3
        for hf in range(2):
            i = 8 * g + 4 * hf + r
            a(f's_mov_b32 s{S_MSK+2*e+hf}, {hex((0xffffffff << i) & 0xffffffff)}')
    a(f'v_mov_b32 v{t+4}, 0xffff')
    for k in range(8):
        a(f'v_cndmask_b32 v{V_PM+k}, 0, v{t+4}, {sr(S_MSK+4*k,2)}\nv_cndmask_b32 v{V_PM+k}, v{V_PM+k}, -1, {sr(S_MSK+4*k+2,2)}')
    a(f'''
    s_lshl_b32 s{T0}, s{S_QB}, 3
    s_add_u32 s{T0}, s{T0}, s{S_W}
    s_mul_i32 s{T0}, s{T0}, {2*68*1024}
    s_add_u32 s{T0}, s{T0}, {WS_A2 + 48*1024}
    v_and_b32 v{t+2}, 1, v0
    v_mul_u32_u24 v{t+2}, {68*1024}, v{t+2}
    v_bfe_u32 v{t+3}, v0, 1, 4
    v_lshl_add_u32 v{t+2}, v{t+3}, 4, v{t+2}
    v_add_u32 v{t+2}, s{T0}, v{t+2}
    s_mul_i32 s{T0}, s{S_H}, 5
    ''')
    for g in range(3):
        a(f'''
        v_add_u32 v{t+3}, s{T0}, v{t+1}
        v_lshrrev_b32 v{t+4}, 3, v{t+3}
        v_lshl_add_u32 v{V_OA+g}, v{t+4}, 10, v{t+2}
        v_and_b32 v{t+4}, 3, v{t+3}
        v_lshl_add_u32 v{V_OA+g}, v{t+4}, 8, v{V_OA+g}
        v_bfe_u32 v{t+4}, v{t+3}, 2, 1
        v_lshl_add_u32 v{V_OA+g}, v{t+4}, 3, v{V_OA+g}
        s_add_u32 s{T0}, s{T0}, 2
        ''')
    a(f'''
    v_lshlrev_b32 v{t+4}, 30, v{t+1}
    v_add_u32 v{V_OA+2}, v{V_OA+2}, v{t+4}
    v_mov_b32 v{V_K+54}, 0
    v_mov_b32 v{V_K+55}, 0
    v_mov_b32 v{V_Q1+2}, 0
    v_mov_b32 v{V_Q1+3}, 0
    ''')

def loads(a, sc=''):
    t = V_S + 16
    a(f'''
    s_and_b32 s{T0}, s{S_W}, 3
    s_lshr_b32 s{T1}, s{S_W}, 2
    s_lshl_b32 s{T2}, s{S_QB}, 1
    s_add_u32 s{T2}, s{T2}, s{T0}
    s_sub_u32 s{T2}, s{T2}, 2
    s_cselect_b32 s{T2}, s{T0}, s{T2}
    s_lshl_b32 s{T2}, s{T2}, 10
    s_add_u32 s{T3}, s{T1}, 1
    s_lshl_b32 s{T3}, s{T3}, 5
    s_add_u32 s{T3}, s{T3}, s{S_H}
    s_mul_i32 s{T3}, s{T3}, {5*16384}
    s_add_u32 s{T2}, s{T2}, s{T3}
    s_mul_i32 s{T1}, s{T1}, {VB}
    s_lshl_b32 s{T0}, s{T0}, 10
    s_add_u32 s{T0}, s{T0}, s{T1}
    v_lshlrev_b32 v{t}, 4, v0
    ''')
    for p in range(5):
        a(f's_add_u32 m0, s{T0}, {KB+p*PL}\ns_nop 0')
        a.vmem(f'buffer_load_dwordx4 v{t}, {sr(SRD_WS,4)}, s{T2} offen lds {sc}', 'kv')
        if p < 4: a(f's_add_u32 s{T2}, s{T2}, 16384')
    a(f'''
    v_and_b32 v{t+1}, 31, v0
    v_lshrrev_b32 v{t+2}, 5, v0
    v_lshlrev_b32 v{t+3}, 3, v{t+1}
    v_lshl_add_u32 v{t+2}, v{t+2}, 15, v{t+3}
    v_lshlrev_b32 v{t+1}, 2, v{t+1}
    s_lshl_b32 s{T0}, s{S_QB}, 3
    s_add_u32 s{T0}, s{T0}, s{S_W}
    s_lshl_b32 s{T1}, s{T0}, 8
    s_mul_i32 s{T2}, s{S_H}, {5*16384}
    s_add_u32 s{T1}, s{T1}, s{T2}
    s_add_u32 s{T2}, s{T1}, 16384
    s_add_u32 s{T3}, s{T1}, {4*16384}
    s_lshl_b32 s{T0}, s{T0}, 7
    s_add_u32 s{T0}, s{T0}, {WS_G}
    ''')
    a.vmem(f'buffer_load_dwordx2 {vr(V_Q0,2)}, v{t+2}, {sr(SRD_WS,4)}, s{T1} offen {sc}', 'kv')
    a.vmem(f'buffer_load_dwordx2 {vr(V_Q0+2,2)}, v{t+2}, {sr(SRD_WS,4)}, s{T2} offen {sc}', 'kv')
    a.vmem(f'buffer_load_dwordx2 {vr(V_Q1,2)}, v{t+3}, {sr(SRD_WS,4)}, s{T3} offen {sc}', 'kv')
    a.vmem(f'buffer_load_dword v{V_G}, v{t+1}, {sr(SRD_WS,4)}, s{T0} offen {sc}', 'kv')

def qk(T, d, c):
    k = V_K + 6 * T
    return [f'{MF} {vr(d,16)}, {vr(k,4)}, {vr(V_Q0,4)}, {c}', f'{MF} {vr(d,16)}, {vr(k+4,4)}, {vr(V_Q1,4)}, {vr(d,16)}']
def vread(T, st):
    return [f'ds_read_b64_tr_b16 {vr(V_V+8*st+4*m+2*h,2)}, v{V_VA} offset:{VB+(32*T+16*m+8*h)*8}' for m in range(2) for h in range(2)]
def pv(st, pst, first=False):
    return [f'{MF} {vr(V_O,16)}, {vr(V_V+8*st+4*m,4)}, {vr(V_P+8*pst+4*m,4)}, ' + ('0' if first and m == 0 else vr(V_O, 16)) for m in range(2)]
def spread(valu, mf):
    out = []; n = len(valu); k = len(mf)
    pos = [(i * n) // k for i in range(k)]
    j = 0
    for i, v in enumerate(valu):
        while j < k and pos[j] == i:
            out.append(mf[j]); j += 1
        out.append(v)
    return out + mf[j:]

def compute(a, prof, sc=''):
    a.vmwait(['kv'], 'lgkmcnt(0)')
    a('s_barrier')
    stamp(a, 6, prof)
    order = [0, 8, 1, 2, 3, 4, 5, 6, 7]
    def kread(T):
        k = V_K + 6 * T
        return [f'ds_read_b64 {vr(k,2)}, v{V_KA0} offset:{KB+256*T}', f'ds_read_b64 {vr(k+2,2)}, v{V_KA0} offset:{KB+PL+256*T}',
                f'ds_read_b64 {vr(k+4,2)}, v{V_KA1} offset:{KB+4*PL+256*T}']
    for T in (0, 1, 8, 2, 3):
        for l in kread(T): a(l)
    a(f'''
    s_mov_b32 exec_lo, 0
    v_mov_b32 v{V_Q1}, 0x3f80
    v_mov_b32 v{V_Q1+1}, 0
    s_mov_b32 exec_lo, -1
    s_waitcnt lgkmcnt(6)
    ''')
    S = lambda i: V_S + 16 * i
    for l in qk(0, S(0), '0') + qk(8, S(1), '0'): a(l)
    a('s_waitcnt lgkmcnt(0)')
    for T in (4, 5, 6, 7):
        for l in kread(T): a(l)
    for l in qk(1, S(2), '0'): a(l)
    cn = [f'v_cndmask_b32 v{V_MG+e}, v{S(0)+e}, v{S(1)+e}, {sr(S_MSK+2*e,2)}' for e in range(16)]
    def mx(b, first=False):
        o = []
        for e in range(0, 16, 2):
            o.append(f'v_max_f32 v{V_M}, v{b}, v{b+1}' if first and e == 0 else f'v_max3_f32 v{V_M}, v{b+e}, v{b+e+1}, v{V_M}')
        return o
    for l in cn: a(l)
    a('s_waitcnt lgkmcnt(0)')
    for l in vread(0, 0) + vread(8, 1): a(l)
    for l in spread(mx(V_MG, True), qk(2, S(0), '0')): a(l)
    buf = {1: 2, 2: 0, 3: 1, 4: 2, 5: 0, 6: 1, 7: 2}
    for l in spread(mx(S(2)), qk(3, S(1), '0')): a(l)
    for T in range(2, 8):
        if T + 2 <= 7:
            for l in spread(mx(S(buf[T])), qk(T + 2, S(buf[T+2]), '0')): a(l)
        else:
            if T == 7: a('s_nop 1')
            for l in mx(S(buf[T])): a(l)
    a(f'''
    v_mov_b32 v{V_NM}, v{V_M}
    s_nop 1
    v_permlane32_swap_b32 v{V_NM}, v{V_M}
    s_nop 1
    v_max_f32 v{V_M}, v{V_M}, v{V_NM}
    ''')
    for e in range(16): a(f'v_sub_f32 v{V_NM+e}, 0, v{V_M}')
    NM = vr(V_NM, 16)
    val = [f'v_sub_f32 v{V_MG+e}, v{V_MG+e}, v{V_M}' for e in range(16)] + [f'v_exp_f32 v{V_MG+e}, v{V_MG+e}' for e in range(16)]
    val += [f'v_cvt_pk_bf16_f32 v{V_P+k}, v{V_MG+2*k}, v{V_MG+2*k+1}' for k in range(8)]
    val += [f'v_and_b32 v{V_P+8+k}, v{V_P+k}, v{V_PM+k}' for k in range(8)] + [f'v_xor_b32 v{V_P+k}, v{V_P+k}, v{V_P+8+k}' for k in range(8)]
    for l in val[:2]: a(l)
    for l in spread(val[2:], qk(1, S(1 % 3), NM) + qk(2, S(2 % 3), NM)): a(l)
    pend = pv(0, 0, True) + pv(1, 1)
    for T in range(1, 8):
        b = S(T % 3); ps = (T + 1) & 1
        ex = [f'v_exp_f32 v{b+e}, v{b+e}' for e in range(16)]
        cv = [f'v_cvt_pk_bf16_f32 v{V_P+8*ps+k}, v{b+2*k}, v{b+2*k+1}' for k in range(8)]
        pend[0] = 's_waitcnt lgkmcnt(0)\n' + pend[0]
        pend[-1] += '\n' + '\n'.join(vread(T, ps))
        mf = pend + (qk(T + 2, S((T + 2) % 3), NM) if T + 2 <= 7 else [])
        for l in ex[:2]: a(l)
        if T == 1:
            for l in spread(ex[2:], pend): a(l)
            for l in spread(cv, mf[4:]): a(l)
        else:
            for l in spread(ex[2:] + cv, mf): a(l)
        pend = pv(ps, ps)
    a('s_waitcnt lgkmcnt(0)\ns_nop 0')
    for l in pend: a(l)
    a(f's_nop 11\nv_rcp_f32 v{V_M}, v{V_O+12}\ns_nop 0\nv_mul_f32 v{V_M}, v{V_M}, v{V_G}')
    for e in range(12): a(f'v_mul_f32 v{V_O+e}, v{V_O+e}, v{V_M}')
    for k in range(6): a(f'v_cvt_pk_bf16_f32 v{V_P+k}, v{V_O+2*k}, v{V_O+2*k+1}')
    for g in range(3):
        a.vmem(f'buffer_store_dwordx2 {vr(V_P+2*g,2)}, v{V_OA+g}, {sr(SRD_WS,4)}, 0 offen {sc}', 'ost')
    stamp(a, 7, prof)
```

```python
from base import *
SRD_O = 28
S_MT, S_N, T0, T1, T2, T3, S_A0, S_A1, S_WO_, S_WL = range(60, 70)
V_L16, V_RA, V_G1 = 1, 2, 4
V_RA2, V_RA3 = 3, 6
V_ACC = 8
V_F = 48
V_A = 88
V_T = 224
SLOT = 20480; NS = 7
def acc(f, t): return V_ACC + (f * 2 + t) * 4

def stage4(a, name, prof, sc=''):
    a(f'''
    s_and_b32 s{T0}, s2, 7
    s_lshr_b32 s{T1}, s2, 3
    s_lshr_b32 s{S_MT}, s{T0}, 1
    s_lshl_b32 s{S_MT}, s{S_MT}, 3
    s_and_b32 s{T2}, s{T1}, 7
    s_add_u32 s{S_MT}, s{S_MT}, s{T2}
    s_and_b32 s{S_N}, s{T0}, 1
    s_lshl_b32 s{S_N}, s{S_N}, 2
    s_lshr_b32 s{T1}, s{T1}, 3
    s_add_u32 s{S_N}, s{S_N}, s{T1}
    s_and_b32 s{T0}, s{S_W}, 3
    s_lshr_b32 s{T1}, s{S_W}, 2
    s_lshl_b32 s{T2}, s{S_MT}, 1
    s_add_u32 s{T2}, s{T2}, s{T1}
    s_lshl_b32 s{T3}, s{T2}, 7
    s_add_u32 s{T3}, s{T3}, {WS_G}
    s_mul_i32 s{S_A0}, s{T2}, {2*68}
    s_add_u32 s{S_A0}, s{S_A0}, s{T0}
    s_lshl_b32 s{S_A0}, s{S_A0}, 10
    s_add_u32 s{S_A0}, s{S_A0}, {WS_A2}
    s_add_u32 s{S_A1}, s{S_A0}, {68*1024}
    s_lshl_b32 s{T2}, s{T0}, 3
    s_add_u32 s{T2}, s{T2}, s{S_N}
    s_mul_i32 s{S_WO_}, s{T2}, 5120
    s_add_u32 s{S_WO_}, s{S_WO_}, {WS_W2}
    s_mul_i32 s{S_WL}, s{T0}, 5120
    v_lshlrev_b32 v{V_L16}, 4, v0
    v_add_u32 v{V_RA}, s{S_WL}, v{V_L16}
    v_add_u32 v{V_RA2}, {3*SLOT}, v{V_RA}
    v_add_u32 v{V_RA3}, {6*SLOT}, v{V_RA}
    v_and_b32 v{V_T}, 15, v0
    v_lshlrev_b32 v{V_T}, 3, v{V_T}
    s_waitcnt lgkmcnt(0)
    ''')
    srd(a, SRD_WS, S_WS, WS_SIZE)
    srd(a, SRD_O, S_OUT, 2048 * 1280)
    stamp(a, 8, prof)
    a(f's_cmp_eq_u32 s{T1}, 0\ns_cbranch_scc1 {name}_s4p0')
    for P in (1, 0):
        if P == 0: a(f'{name}_s4p0:')
        a.vm = []
        def issue(r):
            g = []
            if r > 16: return g
            if r % 2 == P:
                for f in range(5):
                    pre = f's_add_u32 s{T2}, s{S_WO_}, {r*160*1024}\ns_add_u32 m0, s{S_WL}, {(r%NS)*SLOT}\ns_nop 0\n' if f == 0 else ''
                    if f == 4: pre = f's_add_u32 s{T2}, s{T2}, 4096\ns_add_u32 m0, m0, 4096\ns_nop 0\n'
                    g.append((pre + f'buffer_load_dwordx4 v{V_L16}, {sr(SRD_WS,4)}, s{T2} offen offset:{(f&3)*1024} lds {sc}', f'w{r}'))
            for t in range(2):
                s = S_A0 + t
                g.append((f'buffer_load_dwordx4 {vr(V_A+8*r+4*t,4)}, v{V_L16}, {sr(SRD_WS,4)}, s{s} offen {sc}\ns_add_u32 s{s}, s{s}, 4096', f'a{r}'))
            return g
        def reads(r):
            sl = r % NS
            return [f'ds_read_b128 {vr(V_F+20*(r&1)+4*f,4)}, v{[V_RA,V_RA2,V_RA3][sl//3]} offset:{(sl%3)*SLOT+f*1024}' for f in range(5)]
        for r in range(NS):
            for s, tag in issue(r): a.vmem(s, tag)
            if r == 1: a.vmem(f'buffer_load_dwordx2 {vr(V_G1,2)}, v{V_T}, {sr(SRD_WS,4)}, s{T3} offen {sc}', 'g')
        a.vmwait(['w0'])
        a('s_barrier')
        for l in reads(0): a(l)
        for r in range(17):
            a.vmwait([f'w{r+1}', f'a{r}'], 'lgkmcnt(0)')
            if r < 16: a('s_barrier')
            if r == 12:
                a(f'v_sub_f32 v{V_G1}, 1.0, v{V_G1}\nv_sub_f32 v{V_G1+1}, 1.0, v{V_G1+1}\ns_nop 4')
                for f in range(5):
                    for t in range(2):
                        for i in range(4): a(f'v_mul_f32 v{acc(f,t)+i}, v{V_G1+t}, v{acc(f,t)+i}')
                a('s_nop 0')
            mf = [f'v_mfma_f32_16x16x32_bf16 {vr(acc(f,t),4)}, {vr(V_F+20*(r&1)+4*f,4)}, {vr(V_A+8*r+4*t,4)}, ' + ('0' if r == 0 else vr(acc(f, t), 4)) for f in range(5) for t in range(2)]
            iss = issue(r + NS)
            for s, tag in iss: a.vm.append(tag)
            fill = (reads(r + 1) if r < 16 else []) + [s for s, tag in iss]
            for l in interleave(mf, fill): a(l)
        if P == 1: a(f's_branch {name}_s4e')
    a(f'{name}_s4e:')
    stamp(a, 9, prof)
    t = V_T
    a(f'''
    v_and_b32 v{t}, 15, v0
    v_mul_u32_u24 v{t}, 336, v{t}
    v_lshrrev_b32 v{t+1}, 4, v0
    v_lshl_add_u32 v{t}, v{t+1}, 4, v{t}
    s_mul_i32 s{T2}, s{S_W}, 10752
    v_add_u32 v{t}, s{T2}, v{t}
    v_mul_u32_u24 v{t+1}, 26, v0
    v_lshrrev_b32 v{t+1}, 8, v{t+1}
    v_mul_u32_u24 v{t+2}, 10, v{t+1}
    v_sub_u32 v{t+2}, v0, v{t+2}
    v_and_b32 v{t+3}, 1, v{t+1}
    v_lshlrev_b32 v{t+3}, 4, v{t+3}
    v_bfe_u32 v{t+4}, v{t+1}, 1, 1
    s_lshl_b32 s{T2}, s{T0}, 2
    v_add3_u32 v{t+3}, v{t+3}, v{t+4}, s{T2}
    v_mul_u32_u24 v{t+3}, 336, v{t+3}
    v_lshl_add_u32 v{t+3}, v{t+2}, 5, v{t+3}
    s_mul_i32 s{T2}, s{T1}, {4*10752}
    v_add_u32 v{t+3}, s{T2}, v{t+3}
    v_mul_u32_u24 v{t+1}, 1280, v{t+1}
    v_lshl_add_u32 v{t+1}, v{t+2}, 4, v{t+1}
    s_lshl_b32 s{T2}, s{S_MT}, 3
    s_add_u32 s{T2}, s{T2}, s{S_W}
    s_mul_i32 s{T2}, s{T2}, {8*1280}
    s_mul_i32 s{T3}, s{S_N}, 160
    s_add_u32 s{T2}, s{T2}, s{T3}
    s_add_u32 s{T3}, s{T2}, {4*1280}
    s_barrier
    ''')
    for f in range(5):
        for tt in range(2):
            a(f'ds_write_b128 v{t}, {vr(acc(f,tt),4)} offset:{tt*16*336+f*64}')
    a(f'''
    s_waitcnt lgkmcnt(0)
    s_barrier
    s_mov_b32 exec_hi, 0xff
    ''')
    R = V_A
    for ps in range(2):
        for kq in range(4):
            for h in range(2):
                if ps == 1 and kq == 3 and h == 1: a('s_waitcnt lgkmcnt(14)')
                a(f'ds_read_b128 {vr(R+32*ps+8*kq+4*h,4)}, v{t+3} offset:{kq*10752+ps*2*336+h*16}')
        if ps == 0: continue
    for ps in range(2):
        b = R + 32 * ps
        a(f's_waitcnt lgkmcnt({8 if ps == 0 else 0})')
        for i in range(8): a(f'v_add_f32 v{b+i}, v{b+i}, v{b+8+i}\nv_add_f32 v{b+16+i}, v{b+16+i}, v{b+24+i}')
        for i in range(8): a(f'v_add_f32 v{b+i}, v{b+i}, v{b+16+i}')
        for k in range(4): a(f'v_cvt_pk_bf16_f32 v{b+8+k}, v{b+2*k}, v{b+2*k+1}')
        a(f'buffer_store_dwordx4 {vr(b+8,4)}, v{t+1}, {sr(SRD_O,4)}, s{T2 if ps == 0 else T3} offen')
    a('s_mov_b64 exec, -1')
    stamp(a, 10, prof)
```

```python
import sys
from base import *
import st1, st3, st4
def kd(name):
    return f""".p2align 6
.amdhsa_kernel {name}
  .amdhsa_next_free_vgpr 256
  .amdhsa_next_free_sgpr 102
  .amdhsa_accum_offset 256
  .amdhsa_group_segment_fixed_size 0
  .amdhsa_kernarg_size 88
  .amdhsa_user_sgpr_count 2
  .amdhsa_user_sgpr_kernarg_segment_ptr 1
  .amdhsa_system_sgpr_workgroup_id_x 1
.end_amdhsa_kernel
"""
def build(prof=False, extra=0):
    hdr = open('gated_mix__sliding_block__swiglu_ffn__prompt.s.ref').read().split('; Override')[0]
    ks = [('k1_kernel', 163840), ('k2_kernel', 12 * 4128), ('k3_kernel', 7 * 20480)] + [(f'e{i}_kernel', 0) for i in range(extra)]
    s = hdr
    for n, l in ks: s += f'; @launch kernel={n} grid=(256,1,1) block=(512,1,1) lds={l}\n'
    s += '.amdgcn_target "amdgcn-amd-amdhsa--gfx950"\n.text\n'
    for i, (n, l) in enumerate(ks):
        a = Asm()
        if i < 3:
            common_entry(a, n)
            stamp(a, 0, prof)
            if i == 0: st1.stage1(a, n, prof)
            if i == 1:
                st3.ids(a)
                a('s_waitcnt lgkmcnt(0)')
                srd(a, SRD_WS, S_WS, WS_SIZE)
                stamp(a, 5, prof)
                st3.loads(a); st3.setup(a); st3.compute(a, prof)
            if i == 2: st4.stage4(a, n, prof)
            stamp_flush(a, prof, i)
        a(f'{n}_end:\ns_endpgm')
        s += f'.globl {n}\n.p2align 8\n.type {n},@function\n{n}:\n' + a.text()
    s += '.section .rodata,"a"\n' + ''.join(kd(n) for n, l in ks)
    return s
if __name__ == '__main__':
    open('gated_mix__sliding_block__swiglu_ffn__prompt.s', 'w').write(build())
    open('prof.s', 'w').write(build(True))
    for o in sys.argv[1:]:
        OPT.clear(); OPT.update(o.split('+'))
        open(f'prof_{o}.s', 'w').write(build(True))
```

```python
from base import *
LOG2E = 1.4426950408889634
import struct
def f2u(x): return struct.unpack('<I', struct.pack('<f', x))[0]

SRD_X = 28; SRD_W = 32; SRD_M = 56
S_SW0, S_SW1, S_STW0, S_STW1, S_WDS, S_SX, S_XDS, S_WRS, S_XRS, S_CNT = range(60, 70)
S_MB, S_J, S_LC0, S_T0, S_T1, S_T2, S_T3, S_RU = range(70, 78)
V_ACC = 0 + 16
V_FR = 96
V_OW0, V_OW1, V_OX0, V_OX1, V_WB, V_XB0, V_XB1, V_WA, V_XA = range(1, 10)
V_T = 168
WSLOT = 20480; XSLOT = 16384
NWS = 3; WBASE = 0; XBASE = 0; RBASE = 0
S_WEND0, S_WEND1, S_CW, S_CX, S_XM = 88, 89, 90, 91, 92
def config(d):
    global NWS, XBASE, RBASE, WBASE
    NWS = d; RBASE = 163840 - 3 * 4096; XBASE = RBASE - 3 * XSLOT; WBASE = XBASE - NWS * WSLOT

def acc(c, t): return V_ACC + (c * 4 + t) * 4
def wfr(st, c): return V_FR + st * 36 + c * 4
def xfr(st, t): return V_FR + st * 36 + 20 + t * 4

def chunk_of(c):
    if 'rot' in OPT:
        return f'''s_add_u32 s{c}, s{c}, 1
        s_cmp_ge_u32 s{c}, 10
        s_cselect_b32 s{c}, 0, s{c}
        s_mov_b32 s{S_T0}, s{c}'''
    if 'x3' in OPT:
        return f'''s_add_u32 s{c}, s{c}, 1
        s_cmp_lt_u32 s{c}, 8
        s_cselect_b32 s{S_T0}, 3, 1
        s_and_b32 s{S_T0}, s{S_T0}, s{S_XM}
        s_xor_b32 s{S_T0}, s{S_T0}, s{c}'''
    return f's_add_u32 s{c}, s{c}, 1\ns_xor_b32 s{S_T0}, s{c}, s{S_XM}'
def dma_w(a):
    g = []
    for c in range(5):
        g.append(f's_add_u32 m0, s{S_WDS}, {c*4096}\ns_nop 0\nbuffer_load_dwordx4 v{V_OW0 if c == 0 else V_OW1}, {sr(SRD_W+4*c,4)}, s{S_SW0 if c == 0 else S_SW1} offen' + (' nt' if 'ntw' in OPT else '') + ' lds')
    g.append(chunk_of(S_CW) + f'''
    s_mul_i32 s{S_SW0}, s{S_T0}, s{S_STW0}
    s_mul_i32 s{S_SW1}, s{S_T0}, s{S_STW1}
    s_add_u32 s{S_SW0}, s{S_SW0}, s{S_WEND0}
    s_add_u32 s{S_SW1}, s{S_SW1}, s{S_WEND1}
    s_add_u32 s{S_WDS}, s{S_WDS}, {2*WSLOT}
    s_cmp_ge_u32 s{S_WDS}, {XBASE}
    s_cselect_b32 s{S_T0}, {NWS*WSLOT}, 0
    s_sub_u32 s{S_WDS}, s{S_WDS}, s{S_T0}''')
    return g
def dma_x(a):
    g = []
    for i in range(2):
        g.append(f's_add_u32 m0, s{S_XDS}, {i*1024}\ns_nop 0\nbuffer_load_dwordx4 v{V_OX0+i}, {sr(SRD_X,4)}, s{S_SX} offen' + (' nt' if 'ntx' in OPT else '') + ' lds')
    g.append(chunk_of(S_CX) + f'''
    s_lshl_b32 s{S_SX}, s{S_T0}, 7
    s_add_u32 s{S_XDS}, s{S_XDS}, {XSLOT}
    s_cmp_ge_u32 s{S_XDS}, {RBASE}
    s_cselect_b32 s{S_T0}, {3*XSLOT}, 0
    s_sub_u32 s{S_XDS}, s{S_XDS}, s{S_T0}''')
    return g
def reads(st):
    g = []
    order = [('x', 0), ('w', 0), ('x', 1), ('x', 2), ('x', 3), ('w', 1), ('w', 2), ('w', 3), ('w', 4)]
    for k, i in order:
        if k == 'x':
            g.append(f'ds_read_b128 {vr(xfr(st,i),4)}, v{V_XA} offset:{i*2048}')
        else:
            for h in range(2):
                g.append(f'ds_read_b64_tr_b16 {vr(wfr(st,i)+2*h,2)}, v{V_WA} offset:{i*4096+h*512}')
    return g
def next_addr(ks_next):
    s = f'''s_add_u32 s{S_WRS}, s{S_WRS}, {WSLOT}
    s_cmp_ge_u32 s{S_WRS}, {XBASE}
    s_cselect_b32 s{S_WRS}, {WBASE}, s{S_WRS}
    '''
    if ks_next == 0:
        s += f'''s_add_u32 s{S_XRS}, s{S_XRS}, {XSLOT}
        s_cmp_ge_u32 s{S_XRS}, {RBASE}
        s_cselect_b32 s{S_XRS}, {XBASE}, s{S_XRS}
        '''
    s += f'v_add_u32 v{V_WA}, s{S_WRS}, v{V_WB}\nv_add_u32 v{V_XA}, s{S_XRS}, v{V_XB0+ks_next}'
    return s

def stage1(a, name, prof, sc='', fused=None):
    config(5 if 'd5' in OPT else 3)
    a(f'''
    s_and_b32 s{S_T0}, s2, 7
    s_lshr_b32 s{S_T1}, s2, 3
    s_and_b32 s{S_MB}, s{S_T0}, 1
    s_lshl_b32 s{S_MB}, s{S_MB}, 3
    s_and_b32 s{S_T2}, s{S_T1}, 7
    s_add_u32 s{S_MB}, s{S_MB}, s{S_T2}
    s_lshr_b32 s{S_J}, s{S_T0}, 1
    s_lshr_b32 s{S_T1}, s{S_T1}, 3
    ''')
    if 'rot' in OPT:
        a(f'''
        s_lshl_b32 s{S_SX}, s{S_T1}, 1
        s_add_u32 s{S_SX}, s{S_SX}, s{S_T2}
        s_and_b32 s{S_SX}, s{S_SX}, 7
        s_mul_i32 s{S_SX}, s{S_SX}, 5
        s_lshr_b32 s{S_SX}, s{S_SX}, 2
        s_mov_b32 s{S_CW}, s{S_SX}
        s_mov_b32 s{S_CX}, s{S_SX}''')
    else:
        a(f'''
        s_add_u32 s{S_SX}, s{S_T1}, s{S_T2}
        s_and_b32 s{S_SX}, s{S_SX}, {0 if 'x0' in OPT else 3 if 'x3' in OPT else 1}
        s_mov_b32 s{S_XM}, s{S_SX}
        s_mov_b32 s{S_CW}, 0
        s_mov_b32 s{S_CX}, 0''')
    a(f'''
    ''')
    if 'map2' in OPT: a(f's_lshl_b32 s{S_J}, s{S_J}, 2')
    else: a(f's_lshl_b32 s{S_T1}, s{S_T1}, 2')
    a(f's_add_u32 s{S_J}, s{S_J}, s{S_T1}')
    if 'map3' in OPT: a(f's_lshr_b32 s{S_MB}, s2, 4\ns_and_b32 s{S_J}, s2, 15')
    if 'map4' in OPT: a(f's_lshr_b32 s{S_J}, s2, 4\ns_and_b32 s{S_MB}, s2, 15')
    if 'twice' in OPT: a(f's_mov_b32 s96, 0\n{name}_again:')
    a(f'''
    s_mul_i32 s{S_T0}, s{S_J}, 5
    s_sub_u32 s{S_T0}, s{S_T0}, 48
    s_min_i32 s{S_T0}, s{S_T0}, 25
    s_cmp_lt_u32 s{S_J}, 12
    s_cselect_b32 s{S_LC0}, s{S_J}, s{S_T0}
    s_mov_b32 s{S_STW0}, 3840
    s_cselect_b32 s{S_STW1}, 3072, s{S_STW0}
    ''')
    t = V_T
    a(f'''
    s_and_b32 s{S_T0}, s{S_W}, 3
    s_lshr_b32 s{S_T1}, s{S_W}, 2
    v_lshrrev_b32 v{t}, 3, v0
    v_and_b32 v{t+1}, 7, v0
    v_bfe_u32 v{t+2}, v0, 4, 1
    s_and_b32 s{S_T2}, s{S_W}, 1
    s_lshl_b32 s{S_T2}, s{S_T2}, 1
    v_or_b32 v{t+2}, s{S_T2}, v{t+2}
    v_lshlrev_b32 v{t+2}, 1, v{t+2}
    v_xor_b32 v{t+2}, v{t+2}, v{t+1}
    v_lshlrev_b32 v{t+2}, 4, v{t+2}
    s_lshl_b32 s{S_T2}, s{S_T0}, 3
    v_add_u32 v{t+3}, s{S_T2}, v{t}
    v_mad_u32_u24 v{V_OW0}, v{t+3}, s{S_STW0}, v{t+2}
    v_mad_u32_u24 v{V_OW1}, v{t+3}, s{S_STW1}, v{t+2}
    s_lshr_b32 s{S_T2}, s{S_W}, 1
    s_lshl_b32 s{S_T2}, s{S_T2}, 5
    s_and_b32 s{S_T3}, s{S_W}, 1
    s_add_u32 s{S_T2}, s{S_T2}, s{S_T3}
    v_lshl_add_u32 v{t+3}, v{t}, 1, s{S_T2}
    v_mul_u32_u24 v{t+3}, 1280, v{t+3}
    v_lshrrev_b32 v{t+4}, 4, v0
    v_xor_b32 v{t+4}, v{t+4}, v{t+1}
    v_lshl_add_u32 v{V_OX0}, v{t+4}, 4, v{t+3}
    v_xor_b32 v{V_OX1}, 64, v{V_OX0}
    v_add_u32 v{V_OX1}, {16*1280}, v{V_OX1}
    ''')
    a(f'''
    s_xor_b32 s{S_T2}, s{S_T1}, 1
    s_mul_i32 s{S_WDS}, s{S_T2}, {WSLOT}
    s_lshl_b32 s{S_T3}, s{S_T0}, 10
    s_add_u32 s{S_WDS}, s{S_WDS}, s{S_T3}
    s_add_u32 s{S_WDS}, s{S_WDS}, {WBASE}
    s_lshl_b32 s{S_T2}, s{S_T2}, 5
    s_mul_i32 s{S_WEND0}, s{S_T2}, s{S_STW0}
    s_mul_i32 s{S_WEND1}, s{S_T2}, s{S_STW1}
    s_lshl_b32 s{S_STW0}, s{S_STW0}, 6
    s_lshl_b32 s{S_STW1}, s{S_STW1}, 6
    s_mul_i32 s{S_SW0}, s{S_SX}, s{S_STW0}
    s_mul_i32 s{S_SW1}, s{S_SX}, s{S_STW1}
    s_add_u32 s{S_SW0}, s{S_SW0}, s{S_WEND0}
    s_add_u32 s{S_SW1}, s{S_SW1}, s{S_WEND1}
    s_lshl_b32 s{S_SX}, s{S_SX}, 7
    s_lshl_b32 s{S_XDS}, s{S_W}, 11
    s_add_u32 s{S_XDS}, s{S_XDS}, {XBASE}
    s_mul_i32 s{S_T2}, s{S_MB}, {128*1280}
    s_lshl_b32 s{S_T3}, s{S_LC0}, 7
    s_waitcnt lgkmcnt(0)
    ''')
    srd(a, SRD_X, S_X, 128 * 1280, f's{S_T2}')
    srd(a, SRD_WS, S_WS, WS_SIZE)
    nq = 639 * 3840 + 128; ng = 639 * 3072 + 128
    srd(a, SRD_W, S_WQKV, nq, f's{S_T3}')
    a(f's_cmp_lt_u32 s{S_J}, 12\ns_cbranch_scc1 {name}_s1g')
    for c in range(1, 5):
        srd(a, SRD_W + 4 * c, SRD_W, nq, 128 * c)
    a(f's_branch {name}_s1h\n{name}_s1g:\ns_lshl_b32 s{S_T3}, s{S_J}, 8')
    srd(a, SRD_W + 4, S_WG, ng, f's{S_T3}')
    srd(a, SRD_W + 8, SRD_W + 4, ng, 128)
    srd(a, SRD_W + 12, S_WU, ng, f's{S_T3}')
    srd(a, SRD_W + 16, SRD_W + 12, ng, 128)
    a(f'{name}_s1h:')
    stamp(a, 1, prof)
    a(f's_cmp_eq_u32 s{S_T1}, 0\ns_cbranch_scc1 {name}_s1p0')
    for grp in ((dma_w, dma_x, dma_w, dma_x, dma_w) if NWS == 5 else (dma_x, dma_w, dma_x, dma_w)):
        for g in grp(a): a(g)
    a(f's_branch {name}_s1pe\n{name}_s1p0:')
    for grp in ((dma_x, dma_w, dma_x, dma_w, dma_x) if NWS == 5 else (dma_x, dma_w, dma_x)):
        for g in grp(a): a(g)
    a(f'{name}_s1pe:')
    a(f'''
    v_lshrrev_b32 v{t+12}, 4, v0
    v_bfe_u32 v{t+13}, v0, 2, 2
    v_and_b32 v{t+14}, 3, v0
    v_lshlrev_b32 v{V_WB}, 10, v{t+12}
    v_lshl_add_u32 v{V_WB}, v{t+13}, 7, v{V_WB}
    v_lshl_add_u32 v{V_WB}, v{t+14}, 3, v{V_WB}
    v_bfe_u32 v{t+14}, v0, 3, 2
    s_and_b32 s{S_T0}, s{S_W}, 3
    v_xor_b32 v{t+14}, s{S_T0}, v{t+14}
    v_lshl_add_u32 v{V_WB}, v{t+14}, 5, v{V_WB}
    v_and_b32 v{t+13}, 15, v0
    v_bfe_u32 v{t+14}, v0, 1, 3
    v_xor_b32 v{t+14}, v{t+14}, v{t+12}
    v_lshlrev_b32 v{t+14}, 4, v{t+14}
    v_lshl_add_u32 v{t+14}, v{t+13}, 7, v{t+14}
    s_lshl_b32 s{S_T0}, s{S_T1}, 13
    v_add_u32 v{V_XB0}, s{S_T0}, v{t+14}
    v_xor_b32 v{V_XB1}, 64, v{V_XB0}
    s_mov_b32 s{S_WRS}, {WBASE}
    s_mov_b32 s{S_XRS}, {XBASE}
    v_add_u32 v{V_WA}, s{S_WRS}, v{V_WB}
    v_add_u32 v{V_XA}, s{S_XRS}, v{V_XB0}
    s_mov_b32 s{S_CNT}, 0
    ''')
    for i in range(80): a(f'v_mov_b32 v{V_ACC+i}, 0')
    def step(par, n, dma):
        a(f's_waitcnt lgkmcnt(0)' + (f' vmcnt({n})' if n is not None else '') + '\ns_barrier')
        mf = [f'v_mfma_f32_16x16x32_bf16 {vr(acc(c,tt),4)}, {vr(wfr(par,c),4)}, {vr(xfr(par,tt),4)}, {vr(acc(c,tt),4)}' for c in range(5) for tt in range(4)]
        rd = reads(1 - par)
        rd2 = ['\n'.join(rd[i:i+2]) for i in range(0, 14, 2)]
        fill = rd2 + [next_addr(par)] + dma
        if 'nospread' in OPT:
            for l in interleave(mf, fill): a(l)
            return
        slots = [[] for _ in range(20)]
        if 'rd1' in OPT:
            for i in range(14): slots[i].append(rd[i])
            slots[14].append(next_addr(par))
        else:
            for i in range(7): slots[i].append(rd2[i])
            slots[8].append(next_addr(par))
        pos = {6: [1, 5, 9, 13, 16, 17], 3: [3, 11, 12], 0: []}[len(dma)]
        if 'sp2' in OPT: pos = {6: [0, 3, 6, 9, 12, 13], 3: [7, 14, 15], 0: []}[len(dma)]
        for p_, d_ in zip(pos, dma): slots[p_].append(d_)
        for m_, sl in zip(mf, slots):
            if 'nomfma' not in OPT: a(m_)
            for l in sl: a(l)
    last = 7 if NWS == 5 else 8
    for P in (1, 0):
        if P == 1: a(f's_cmp_eq_u32 s{S_T1}, 0\ns_cbranch_scc1 {name}_s1l0pre')
        else: a(f'{name}_s1l0pre:')
        a(f's_waitcnt vmcnt({(14 if P == 0 else 12) if NWS == 5 else 7})\ns_barrier')
        stamp(a, 2, prof)
        for g in reads(0): a(g)
        a(next_addr(1))
        a(f'{name}_s1l{P}:')
        for par in range(2):
            if NWS == 5: n = {(0, 0): 9, (0, 1): 12, (1, 1): 7, (1, 0): None}[(P, par)]
            else: n = {(0, 0): 2, (0, 1): 5, (1, 1): 2, (1, 0): None}[(P, par)]
            step(par, n, dma_w(a) if par == P else dma_x(a))
            if par == 0 and (NWS == 5 or P == 0): a(f's_cmp_eq_u32 s{S_CNT}, {last}\ns_cbranch_scc1 {name}_s1todd')
        a(f's_add_u32 s{S_CNT}, s{S_CNT}, 1')
        if NWS == 3 and P == 1: a(f's_cmp_eq_u32 s{S_CNT}, {last}\ns_cbranch_scc1 {name}_s1teven')
        a(f's_bitcmp1_b32 {0b1010100 if fused else 0b10100}, s{S_CNT}\ns_cbranch_scc0 {name}_s1l{P}')
        if P == 1: a(f's_branch {name}_s1side')
    a(f'{name}_s1side:\ns_cmp_eq_u32 s{S_CNT}, 2\ns_cbranch_scc0 {name}_s1side2')
    srd(a, SRD_M, S_GW, 1280)
    a(f'''
    s_lshl_b32 s{S_T2}, s{S_J}, 3
    s_add_u32 s{S_T2}, s{S_T2}, s{S_W}
    s_mul_i32 s{S_T3}, s{S_T2}, 1280
    v_lshlrev_b32 v{t}, 2, v0
    ''')
    for i in range(5):
        a(f'buffer_load_dword v{t+1+i}, v{t}, {sr(SRD_X,4)}, s{S_T3} offen offset:{256*i}')
        a(f'buffer_load_dword v{t+6+i}, v{t}, {sr(SRD_M,4)}, 0 offen offset:{256*i}')
    a(f'''
    s_mul_i32 s{S_RU}, s2, 3
    s_add_u32 s{S_RU}, s{S_RU}, s{S_W}
    s_cmp_lt_u32 s{S_W}, 3
    s_cselect_b32 s{S_RU}, s{S_RU}, 1000
    s_cmp_ge_u32 s{S_RU}, 680
    s_cbranch_scc1 {name}_s1r
    s_mul_i32 s78, s{S_RU}, 6554
    s_lshr_b32 s78, s78, 16
    s_mul_i32 s79, s78, 10
    s_sub_u32 s79, s{S_RU}, s79
    s_lshl_b32 s79, s79, 7
    s_lshr_b32 s80, s78, 2
    s_lshl_b32 s80, s80, 7
    s_and_b32 s81, s78, 3
    s_lshl_b32 s81, s81, 4
    s_add_u32 s80, s80, s81
    s_sub_u32 s81, s78, 48
    s_lshl_b32 s81, s81, 5
    s_cmp_lt_u32 s78, 48
    s_cselect_b32 s80, s80, s81
    s_mov_b32 s81, {16*1280}
    s_mov_b32 s86, {640*1280}
    s_cselect_b32 s81, {64*1280}, s81
    s_cselect_b32 s84, s{S_WD}, s{S_WO}
    s_cselect_b32 s85, s{S_WD+1}, s{S_WO+1}
    s_cselect_b32 s86, {1536*1280}, s86
    s_mov_b32 s87, 0x20000
    s_mul_i32 s80, s80, 1280
    s_add_u32 s80, s80, s79
    v_lshrrev_b32 v{t+12}, 3, v0
    v_mul_u32_u24 v{t+12}, 1280, v{t+12}
    v_and_b32 v{t+13}, 7, v0
    v_lshl_add_u32 v{t+12}, v{t+13}, 4, v{t+12}
    s_lshl_b32 s79, s{S_W}, 12
    s_add_u32 s79, s79, {RBASE}
    ''')
    for i in range(4):
        if i == 1 or i == 3: a(f's_add_u32 s82, s80, {8*1280}')
        if i == 2: a('s_add_u32 s80, s80, s81')
        a(f's_add_u32 m0, s79, {i*1024}\ns_nop 0\nbuffer_load_dwordx4 v{t+12}, s[84:87], s{82 if i & 1 else 80} offen lds')
    a(f'{name}_s1r:')
    if fused: fused('clear')
    a(f's_branch {name}_s1back\n{name}_s1side2:')
    if fused: a(f's_cmp_eq_u32 s{S_CNT}, 4\ns_cbranch_scc0 {name}_s1side3')
    a(f'v_mov_b32 v{t+11}, 0')
    for i in range(5):
        a(f'''v_lshlrev_b32 v{t+12}, 16, v{t+1+i}
        v_lshlrev_b32 v{t+13}, 16, v{t+6+i}
        v_and_b32 v{t+14}, 0xffff0000, v{t+1+i}
        v_and_b32 v{t+15}, 0xffff0000, v{t+6+i}
        v_fmac_f32 v{t+11}, v{t+12}, v{t+13}
        v_fmac_f32 v{t+11}, v{t+14}, v{t+15}''')
    g = t + 11
    for dpp in ('row_shr:1', 'row_shr:2', 'row_shr:4', 'row_shr:8', 'row_bcast:15 row_mask:0xa', 'row_bcast:31 row_mask:0xc'):
        a(f's_nop 1\nv_add_f32_dpp v{g}, v{g}, v{g} {dpp}' + (' bound_ctrl:0' if 'shr' in dpp else ''))
    a(f'''
    v_mul_f32 v{g}, {hex(f2u(-LOG2E))}, v{g}
    v_exp_f32 v{g}, v{g}
    s_lshl_b32 s78, s{S_MB}, 4
    s_add_u32 s78, s78, s{S_J}
    v_add_f32 v{g}, 1.0, v{g}
    v_rcp_f32 v{g}, v{g}
    s_lshl_b32 s78, s78, 3
    s_add_u32 s78, s78, s{S_W}
    s_lshl_b32 s78, s78, 2
    s_add_u32 s78, s78, {WS_G - 252}
    s_mov_b32 exec_lo, 0
    s_brev_b32 exec_hi, 1
    buffer_store_dword v{g}, v{t}, {sr(SRD_WS,4)}, s78 offen {sc}
    s_mov_b64 exec, -1
    ''')
    a(f'''
    s_cmp_ge_u32 s{S_RU}, 680
    s_cbranch_scc1 {name}_s1rf
    v_lshrrev_b32 v{t+16}, 2, v0
    v_lshlrev_b32 v{t+16}, 7, v{t+16}
    v_and_b32 v{t+16+1}, 3, v0
    v_lshl_add_u32 v{t+16}, v{t+16+1}, 3, v{t+16}
    s_lshl_b32 s79, s{S_W}, 12
    s_add_u32 s79, s79, {RBASE}
    v_add_u32 v{t+16}, s79, v{t+16}
    v_lshlrev_b32 v{t+16+1}, 4, v0
    s_lshl_b32 s79, s{S_RU}, 12
    s_add_u32 s79, s79, {WS_W2}
    ''')
    for uu in range(4):
        for h in range(2):
            a(f'ds_read_b64_tr_b16 {vr(t+16+4+4*uu+2*h,2)}, v{t+16} offset:{h*2048+uu*32}')
    a('s_waitcnt lgkmcnt(0)')
    for uu in range(4):
        a(f'buffer_store_dwordx4 {vr(t+16+4+4*uu,4)}, v{t+16+1}, {sr(SRD_WS,4)}, s79 offen offset:{1024*uu} {sc}')
    a(f'{name}_s1rf:')
    if fused:
        a(f's_branch {name}_s1back\n{name}_s1side3:')
        fused('ready')
    a(f'{name}_s1back:\ns_cmp_eq_u32 s{S_T1}, 0\ns_cbranch_scc1 {name}_s1l0\ns_branch {name}_s1l1')
    a(f'{name}_s1teven:')
    step(0, 0, [])
    a(f'{name}_s1todd:')
    step(1, 7 if NWS == 5 else 5, [])
    a(f's_add_u32 s{S_CNT}, s{S_CNT}, 1\ns_cmp_lt_u32 s{S_CNT}, 10\ns_cbranch_scc1 {name}_s1teven')
    a(f'{name}_s1e:\ns_waitcnt lgkmcnt(0)')
    stamp(a, 3, prof)
    if 'twice' in OPT: a(f's_waitcnt vmcnt(0)\ns_barrier\ns_add_u32 s96, s96, 1\ns_cmp_lt_u32 s96, 2\ns_cbranch_scc1 {name}_again')
    u = V_T + 16
    a(f'''
    s_and_b32 s{S_T0}, s{S_W}, 3
    s_lshl_b32 s{S_T2}, s{S_LC0}, 2
    s_add_u32 s{S_T2}, s{S_T2}, s{S_T0}
    s_lshl_b32 s{S_T2}, s{S_T2}, 16
    s_lshl_b32 s{S_T3}, s{S_MB}, 10
    s_add_u32 s{S_T2}, s{S_T2}, s{S_T3}
    s_lshl_b32 s{S_T3}, s{S_T1}, 9
    s_add_u32 s{S_T2}, s{S_T2}, s{S_T3}
    v_lshrrev_b32 v{u}, 4, v0
    v_lshlrev_b32 v{u}, 14, v{u}
    v_and_b32 v{u+1}, 15, v0
    v_lshl_add_u32 v{u}, v{u+1}, 4, v{u}
    s_cmp_lt_u32 s{S_LC0}, 10
    s_cselect_b32 s{S_T3}, {hex(f2u(20 ** -0.5 * LOG2E))}, 1.0
    ''')
    def qkv_tile(c, scale):
        for tp in range(2):
            d = u + 4 + 4 * tp + 8 * (c & 1)
            for tt in range(2):
                b = acc(c, 2 * tp + tt)
                if scale:
                    for r in range(4): a(f'v_mul_f32 v{b+r}, s{S_T3}, v{b+r}')
                a(f'v_cvt_pk_bf16_f32 v{d+2*tt}, v{b}, v{b+1}\nv_cvt_pk_bf16_f32 v{d+2*tt+1}, v{b+2}, v{b+3}')
            a(f'buffer_store_dwordx4 {vr(d,4)}, v{u}, {sr(SRD_WS,4)}, s{S_T2} offen offset:{256*tp} {sc}')
    qkv_tile(0, True)
    a(f'''
    s_cmp_lt_u32 s{S_J}, 12
    s_cbranch_scc1 {name}_s1eg
    ''')
    for c in range(1, 5):
        a(f's_add_u32 s{S_T2}, s{S_T2}, {16*16384}')
        qkv_tile(c, False)
    if fused: fused('qkv')
    a(f's_branch {name}_s1ef\n{name}_s1eg:')
    if fused: fused('qkv')
    a(f'''
    s_lshl_b32 s{S_T2}, s{S_MB}, 1
    s_add_u32 s{S_T2}, s{S_T2}, s{S_T1}
    s_mul_i32 s{S_T2}, s{S_T2}, {4*68}
    s_lshl_b32 s{S_T3}, s{S_J}, 2
    s_add_u32 s{S_T2}, s{S_T2}, s{S_T3}
    s_add_u32 s{S_T2}, s{S_T2}, s{S_T0}
    s_lshl_b32 s{S_T2}, s{S_T2}, 10
    s_add_u32 s{S_T2}, s{S_T2}, {WS_A2}
    v_lshlrev_b32 v{u+1}, 4, v0
    s_mov_b32 s{S_T3}, {hex(f2u(-LOG2E))}
    ''')
    e = V_FR
    for tt in range(4):
        d = u + 12 + 4 * (tt & 1)
        idx = [(c, r) for c in range(2) for r in range(4)]
        for k, (c, r) in enumerate(idx): a(f'v_mul_f32 v{e+k}, s{S_T3}, v{acc(1+c,tt)+r}')
        for k in range(8): a(f'v_exp_f32 v{e+k}, v{e+k}')
        for k, (c, r) in enumerate(idx):
            a(f'v_mul_f32 v{acc(1+c,tt)+r}, v{acc(1+c,tt)+r}, v{acc(3+c,tt)+r}\nv_add_f32 v{e+k}, 1.0, v{e+k}')
        for k in range(8): a(f'v_rcp_f32 v{e+k}, v{e+k}')
        a('s_nop 0')
        for k, (c, r) in enumerate(idx): a(f'v_mul_f32 v{e+k}, v{e+k}, v{acc(1+c,tt)+r}')
        for k in range(4): a(f'v_cvt_pk_bf16_f32 v{d+k}, v{e+2*k}, v{e+2*k+1}')
        a(f'buffer_store_dwordx4 {vr(d,4)}, v{u+1}, {sr(SRD_WS,4)}, s{S_T2} offen {sc}')
        if tt < 3: a(f's_add_u32 s{S_T2}, s{S_T2}, {68*1024}')
    a(f'{name}_s1ef:')
    stamp(a, 4, prof)
```

```python
from base import *
PL = 4128; KB = 0; VB = 6 * PL; LB = 0
S_H, S_QB, T0, T1, T2, T3 = 60, 61, 62, 63, 64, 65
S_MSK = 66
V_Q0, V_Q1 = 4, 8
V_G, V_KA0, V_KA1, V_VA, V_M = 1, 2, 3, 12, 13
V_PM = 14
V_OA = 22
V_K = 26
V_S = 82
V_MG = 130
V_NM = 146
V_O = 162
V_V = 178
V_P = 194
MF = 'v_mfma_f32_32x32x16_bf16'

def ids(a):
    a(f's_and_b32 s{S_H}, s2, 31\ns_lshr_b32 s{S_QB}, s2, 5')

def setup(a):
    t = V_S
    a(f'''
    s_lshl_b32 s{T0}, s{S_W}, 9
    s_add_u32 s{T0}, s{T0}, {LB}
    v_lshl_add_u32 v{t}, v0, 3, s{T0}
    s_lshr_b32 s{T1}, s{S_W}, 2
    s_or_b32 s{T1}, s{T1}, s{S_QB}
    s_cmp_eq_u32 s{T1}, 0
    s_cselect_b32 s{T1}, 0xf149, 0
    v_mov_b32 v{t+2}, s{T1}
    v_mov_b32 v{t+3}, 0
    v_mov_b32 v{t+4}, 0x3f803f80
    v_mov_b32 v{t+5}, 0x3f803f80
    ds_write_b64 v{t}, v[{t+2}:{t+3}] offset:{KB+5*PL}
    ds_write_b64 v{t}, v[{t+4}:{t+5}] offset:{VB+5*PL}
    ''')
    a(f'''
    v_and_b32 v{t}, 31, v0
    v_lshrrev_b32 v{t+1}, 5, v0
    s_lshl_b32 s{T0}, s{S_W}, 8
    s_add_u32 s{T0}, s{T0}, {LB}
    v_lshl_add_u32 v{t+2}, v{t}, 3, s{T0}
    v_mul_u32_u24 v{t+3}, {PL}, v{t+1}
    v_add_u32 v{V_KA1}, v{t+2}, v{t+3}
    v_add_u32 v{V_KA0}, v{V_KA1}, v{t+3}
    v_and_b32 v{t+3}, 3, v0
    v_min_u32 v{t+4}, 1, v{t+3}
    v_add_u32 v{t+4}, 4, v{t+4}
    v_and_b32 v{t+5}, 16, v0
    v_cmp_eq_u32 vcc, 0, v{t+5}
    v_bfe_u32 v{t+5}, v0, 2, 2
    v_lshl_add_u32 v{t+5}, v{t+1}, 2, v{t+5}
    v_cndmask_b32 v{t+3}, v{t+4}, v{t+3}, vcc
    v_mul_u32_u24 v{t+3}, {PL}, v{t+3}
    v_lshl_add_u32 v{t+3}, v{t+5}, 3, v{t+3}
    v_add_u32 v{V_VA}, s{T0}, v{t+3}
    ''')
    for e in range(16):
        g, r = e >> 2, e & 3
        for hf in range(2):
            i = 8 * g + 4 * hf + r
            a(f's_mov_b32 s{S_MSK+2*e+hf}, {hex((0xffffffff << i) & 0xffffffff)}')
    a(f'v_mov_b32 v{t+4}, 0xffff')
    for k in range(8):
        a(f'v_cndmask_b32 v{V_PM+k}, 0, v{t+4}, {sr(S_MSK+4*k,2)}\nv_cndmask_b32 v{V_PM+k}, v{V_PM+k}, -1, {sr(S_MSK+4*k+2,2)}')
    a(f'''
    s_lshl_b32 s{T0}, s{S_QB}, 3
    s_add_u32 s{T0}, s{T0}, s{S_W}
    s_mul_i32 s{T0}, s{T0}, {2*68*1024}
    s_add_u32 s{T0}, s{T0}, {WS_A2 + 48*1024}
    v_and_b32 v{t+2}, 1, v0
    v_mul_u32_u24 v{t+2}, {68*1024}, v{t+2}
    v_bfe_u32 v{t+3}, v0, 1, 4
    v_lshl_add_u32 v{t+2}, v{t+3}, 4, v{t+2}
    v_add_u32 v{t+2}, s{T0}, v{t+2}
    s_mul_i32 s{T0}, s{S_H}, 5
    ''')
    for g in range(3):
        a(f'''
        v_add_u32 v{t+3}, s{T0}, v{t+1}
        v_lshrrev_b32 v{t+4}, 3, v{t+3}
        v_lshl_add_u32 v{V_OA+g}, v{t+4}, 10, v{t+2}
        v_and_b32 v{t+4}, 3, v{t+3}
        v_lshl_add_u32 v{V_OA+g}, v{t+4}, 8, v{V_OA+g}
        v_bfe_u32 v{t+4}, v{t+3}, 2, 1
        v_lshl_add_u32 v{V_OA+g}, v{t+4}, 3, v{V_OA+g}
        s_add_u32 s{T0}, s{T0}, 2
        ''')
    a(f'''
    v_lshlrev_b32 v{t+4}, 30, v{t+1}
    v_add_u32 v{V_OA+2}, v{V_OA+2}, v{t+4}
    v_mov_b32 v{V_K+54}, 0
    v_mov_b32 v{V_K+55}, 0
    v_mov_b32 v{V_Q1+2}, 0
    v_mov_b32 v{V_Q1+3}, 0
    ''')

U0, U1, U2, U3, U4, U5 = 4, 5, 6, 7, 8, 9
def loads_pre(a):
    t = V_S + 16
    a(f'''
    s_and_b32 s{T0}, s{S_W}, 3
    s_lshr_b32 s{T1}, s{S_W}, 2
    s_lshl_b32 s{U1}, s{S_QB}, 1
    s_add_u32 s{U1}, s{U1}, s{T0}
    s_sub_u32 s{U1}, s{U1}, 2
    s_cselect_b32 s{U1}, s{T0}, s{U1}
    s_lshl_b32 s{U1}, s{U1}, 10
    s_add_u32 s{T3}, s{T1}, 1
    s_lshl_b32 s{T3}, s{T3}, 5
    s_add_u32 s{T3}, s{T3}, s{S_H}
    s_mul_i32 s{T3}, s{T3}, {5*16384}
    s_add_u32 s{U1}, s{U1}, s{T3}
    s_mul_i32 s{T1}, s{T1}, {VB}
    s_lshl_b32 s{T0}, s{T0}, 10
    s_add_u32 s{U0}, s{T0}, s{T1}
    v_lshlrev_b32 v{t}, 4, v0
    v_and_b32 v{t+1}, 31, v0
    v_lshrrev_b32 v{t+2}, 5, v0
    v_lshlrev_b32 v{t+3}, 3, v{t+1}
    v_lshl_add_u32 v{t+2}, v{t+2}, 15, v{t+3}
    v_lshlrev_b32 v{t+1}, 2, v{t+1}
    s_lshl_b32 s{T0}, s{S_QB}, 3
    s_add_u32 s{T0}, s{T0}, s{S_W}
    s_lshl_b32 s{T1}, s{T0}, 8
    s_mul_i32 s{T2}, s{S_H}, {5*16384}
    s_add_u32 s{U2}, s{T1}, s{T2}
    s_add_u32 s{U3}, s{U2}, 16384
    s_add_u32 s{U4}, s{U2}, {4*16384}
    s_lshl_b32 s{T0}, s{T0}, 7
    s_add_u32 s{U5}, s{T0}, {WS_G}
    ''')
def loads(a, sc=''):
    t = V_S + 16
    for p in range(5):
        a(f's_add_u32 m0, s{U0}, {LB+KB+p*PL}')
        a(f's_add_u32 s{U1}, s{U1}, 16384' if p else 's_nop 0')
        a.vmem(f'buffer_load_dwordx4 v{t}, {sr(SRD_WS,4)}, s{U1} offen {sc} lds', 'kv')
    a.vmem(f'buffer_load_dwordx2 {vr(V_Q0,2)}, v{t+2}, {sr(SRD_WS,4)}, s{U2} offen {sc}', 'kv')
    a.vmem(f'buffer_load_dwordx2 {vr(V_Q0+2,2)}, v{t+2}, {sr(SRD_WS,4)}, s{U3} offen {sc}', 'kv')
    a.vmem(f'buffer_load_dwordx2 {vr(V_Q1,2)}, v{t+3}, {sr(SRD_WS,4)}, s{U4} offen {sc}', 'kv')
    a.vmem(f'buffer_load_dword v{V_G}, v{t+1}, {sr(SRD_WS,4)}, s{U5} offen {sc}', 'kv')

def qk(T, d, c):
    k = V_K + 6 * T
    return [f'{MF} {vr(d,16)}, {vr(k,4)}, {vr(V_Q0,4)}, {c}', f'{MF} {vr(d,16)}, {vr(k+4,4)}, {vr(V_Q1,4)}, {vr(d,16)}']
def vread(T, st):
    return [f'ds_read_b64_tr_b16 {vr(V_V+8*st+4*m+2*h,2)}, v{V_VA} offset:{VB+(32*T+16*m+8*h)*8}' for m in range(2) for h in range(2)]
def pv(st, pst, first=False):
    return [f'{MF} {vr(V_O,16)}, {vr(V_V+8*st+4*m,4)}, {vr(V_P+8*pst+4*m,4)}, ' + ('0' if first and m == 0 else vr(V_O, 16)) for m in range(2)]
def spread(valu, mf):
    out = []; n = len(valu); k = len(mf)
    pos = [(i * n) // k for i in range(k)]
    j = 0
    for i, v in enumerate(valu):
        while j < k and pos[j] == i:
            out.append(mf[j]); j += 1
        out.append(v)
    return out + mf[j:]

def compute(a, prof, sc='', hook=lambda x: None):
    a.vmwait(['kv'], 'lgkmcnt(0)')
    a('s_barrier')
    stamp(a, 6, prof)
    order = [0, 8, 1, 2, 3, 4, 5, 6, 7]
    def kread(T):
        k = V_K + 6 * T
        return [f'ds_read_b64 {vr(k,2)}, v{V_KA0} offset:{KB+256*T}', f'ds_read_b64 {vr(k+2,2)}, v{V_KA0} offset:{KB+PL+256*T}',
                f'ds_read_b64 {vr(k+4,2)}, v{V_KA1} offset:{KB+4*PL+256*T}']
    for T in (0, 1, 8, 2, 3):
        for l in kread(T): a(l)
    a(f'''
    s_mov_b32 exec_lo, 0
    v_mov_b32 v{V_Q1}, 0x3f80
    v_mov_b32 v{V_Q1+1}, 0
    s_mov_b32 exec_lo, -1
    s_waitcnt lgkmcnt(6)
    ''')
    S = lambda i: V_S + 16 * i
    for l in qk(0, S(0), '0') + qk(8, S(1), '0'): a(l)
    a('s_waitcnt lgkmcnt(0)')
    for T in (4, 5, 6, 7):
        for l in kread(T): a(l)
    for l in qk(1, S(2), '0'): a(l)
    cn = [f'v_cndmask_b32 v{V_MG+e}, v{S(0)+e}, v{S(1)+e}, {sr(S_MSK+2*e,2)}' for e in range(16)]
    def mx(b, first=False):
        o = []
        for e in range(0, 16, 2):
            o.append(f'v_max_f32 v{V_M}, v{b}, v{b+1}' if first and e == 0 else f'v_max3_f32 v{V_M}, v{b+e}, v{b+e+1}, v{V_M}')
        return o
    for l in cn: a(l)
    a('s_waitcnt lgkmcnt(0)')
    for l in vread(0, 0) + vread(8, 1): a(l)
    for l in spread(mx(V_MG, True), qk(2, S(0), '0')): a(l)
    buf = {1: 2, 2: 0, 3: 1, 4: 2, 5: 0, 6: 1, 7: 2}
    for l in spread(mx(S(2)), qk(3, S(1), '0')): a(l)
    for T in range(2, 8):
        if T + 2 <= 7:
            for l in spread(mx(S(buf[T])), qk(T + 2, S(buf[T+2]), '0')): a(l)
        else:
            if T == 7: a('s_nop 1')
            for l in mx(S(buf[T])): a(l)
    hook('p1end')
    a(f'''
    v_mov_b32 v{V_NM}, v{V_M}
    s_nop 1
    v_permlane32_swap_b32 v{V_NM}, v{V_M}
    s_nop 1
    v_max_f32 v{V_M}, v{V_M}, v{V_NM}
    ''')
    for e in range(16): a(f'v_sub_f32 v{V_NM+e}, 0, v{V_M}')
    NM = vr(V_NM, 16)
    val = [f'v_sub_f32 v{V_MG+e}, v{V_MG+e}, v{V_M}' for e in range(16)] + [f'v_exp_f32 v{V_MG+e}, v{V_MG+e}' for e in range(16)]
    val += [f'v_cvt_pk_bf16_f32 v{V_P+k}, v{V_MG+2*k}, v{V_MG+2*k+1}' for k in range(8)]
    val += [f'v_and_b32 v{V_P+8+k}, v{V_P+k}, v{V_PM+k}' for k in range(8)] + [f'v_xor_b32 v{V_P+k}, v{V_P+k}, v{V_P+8+k}' for k in range(8)]
    for l in val[:2]: a(l)
    for l in spread(val[2:], qk(1, S(1 % 3), NM) + qk(2, S(2 % 3), NM)): a(l)
    pend = pv(0, 0, True) + pv(1, 1)
    for T in range(1, 8):
        b = S(T % 3); ps = (T + 1) & 1
        ex = [f'v_exp_f32 v{b+e}, v{b+e}' for e in range(16)]
        cv = [f'v_cvt_pk_bf16_f32 v{V_P+8*ps+k}, v{b+2*k}, v{b+2*k+1}' for k in range(8)]
        pend[0] = 's_waitcnt lgkmcnt(0)\n' + pend[0]
        pend[-1] += '\n' + '\n'.join(vread(T, ps))
        mf = pend + (qk(T + 2, S((T + 2) % 3), NM) if T + 2 <= 7 else [])
        for l in ex[:2]: a(l)
        if T == 1:
            for l in spread(ex[2:], pend): a(l)
            for l in spread(cv, mf[4:]): a(l)
        else:
            for l in spread(ex[2:] + cv, mf): a(l)
        pend = pv(ps, ps)
        hook(f'T{T}')
    a('s_waitcnt lgkmcnt(0)\ns_nop 0')
    for l in pend: a(l)
    a(f's_nop 11\nv_rcp_f32 v{V_M}, v{V_O+12}\ns_nop 0\nv_mul_f32 v{V_M}, v{V_M}, v{V_G}')
    for e in range(12): a(f'v_mul_f32 v{V_O+e}, v{V_O+e}, v{V_M}')
    for k in range(6): a(f'v_cvt_pk_bf16_f32 v{V_P+k}, v{V_O+2*k}, v{V_O+2*k+1}')
    for g in range(3):
        a.vmem(f'buffer_store_dwordx2 {vr(V_P+2*g,2)}, v{V_OA+g}, {sr(SRD_WS,4)}, 0 offen {sc}', 'ost')
    stamp(a, 7, prof)
```

```python
import sys, struct
from base import *
import st1, st3
from st1 import *
NAME = 'gated_mix__sliding_block__swiglu_ffn__prompt_kernel'
SC = 'sc1'
WS_F1, WS_F2, WS_F3 = 0x1510000, 0x1511000, 0x1514000
S_P = 27
V_L16, V_FLG, V_ONE, V_PL, V_L4, V_RA, V_RA2, V_RA3, V_G1 = 244, 245, 246, 247, 248, 249, 250, 251, 242
V_H = 210
Q_MT, Q_N, Q0, Q1, Q2, Q3, Q_A0, Q_A1, Q_WO, Q_WL, Q_RH, Q_RO, Q_R, Q_PR, Q_HO, Q_J, Q_G = range(32, 49)
SRD_O = 28
SLOT = 20480; NS = 7
WSR = sr(SRD_WS, 4)
uid = [0]

def spin(a, vaddr, srd_, soff, expect, first_issued=False):
    uid[0] += 1; L = f'spin{uid[0]}'
    a('s_mov_b32 s98, 0')
    if first_issued: a(f's_branch {L}c')
    a(f'''{L}:
    buffer_load_dword v{V_PL}, v{vaddr}, {srd_}, {soff} offen {SC}
    s_waitcnt vmcnt(0)
    {L}c:
    v_cmp_ne_u32 vcc, {expect}, v{V_PL}
    s_add_u32 s98, s98, 1
    s_cbranch_vccz {L}d
    s_cmp_lt_u32 s98, 0x40000
    s_cbranch_scc1 {L}
    {L}d:''')
def flag(a, lane):
    a(f's_mov_b64 exec, {1 << lane}\nbuffer_store_dword v{V_ONE}, v{V_FLG}, {WSR}, 0 offen {SC}\ns_mov_b64 exec, -1')

def s4_setup(a):
    a(f'''
    s_and_b32 s{Q0}, s2, 7
    s_lshr_b32 s{Q1}, s2, 3
    s_lshr_b32 s{Q_MT}, s{Q0}, 1
    s_lshl_b32 s{Q_MT}, s{Q_MT}, 3
    s_and_b32 s{Q2}, s{Q1}, 7
    s_add_u32 s{Q_MT}, s{Q_MT}, s{Q2}
    s_and_b32 s{Q_N}, s{Q0}, 1
    s_lshl_b32 s{Q_N}, s{Q_N}, 2
    s_lshr_b32 s{Q1}, s{Q1}, 3
    s_add_u32 s{Q_N}, s{Q_N}, s{Q1}
    s_lshl_b32 s{Q_RH}, s{Q1}, 1
    s_add_u32 s{Q_RH}, s{Q_RH}, s{Q2}
    s_and_b32 s{Q_RH}, s{Q_RH}, {0 if 'norot4' in OPT else 7}
    s_mul_i32 s{Q_RO}, s{Q_RH}, 5
    s_lshr_b32 s{Q_RO}, s{Q_RO}, 3
    s_mul_i32 s{Q_RH}, s{Q_RH}, 3
    s_lshr_b32 s{Q_RH}, s{Q_RH}, 1
    s_and_b32 s{Q0}, s{S_W}, 3
    s_lshl_b32 s{Q2}, s{Q_MT}, 1
    s_add_u32 s{Q2}, s{Q2}, s{S_P}
    s_lshl_b32 s{Q_G}, s{Q2}, 7
    s_mul_i32 s{Q_A0}, s{Q2}, {2*68}
    s_add_u32 s{Q_A0}, s{Q_A0}, s{Q0}
    s_lshl_b32 s{Q_A0}, s{Q_A0}, 10
    s_add_u32 s{Q_A0}, s{Q_A0}, {WS_A2}
    s_add_u32 s{Q_A1}, s{Q_A0}, {68*1024}
    s_lshl_b32 s{Q2}, s{Q0}, 3
    s_add_u32 s{Q2}, s{Q2}, s{Q_N}
    s_mul_i32 s{Q_WO}, s{Q2}, 5120
    s_add_u32 s{Q_WO}, s{Q_WO}, {WS_W2}
    s_mul_i32 s{Q_WL}, s{Q0}, 5120
    s_xor_b32 s{Q_PR}, s{S_P}, 1
    s_mov_b32 s{Q_J}, s{S_J}
    v_add_u32 v{V_RA}, s{Q_WL}, v{V_L16}
    v_add_u32 v{V_RA2}, {3*SLOT}, v{V_RA}
    v_add_u32 v{V_RA3}, {6*SLOT}, v{V_RA}
    ''')
def rot(r):
    if isinstance(r, str) or r < 12: return f's_add_u32 s{Q_R}, s{Q_RH}, {r}\ns_cmp_ge_u32 s{Q_R}, 12\ns_cselect_b32 s{Q2}, 12, 0\ns_sub_u32 s{Q_R}, s{Q_R}, s{Q2}\n'
    return f's_add_u32 s{Q_R}, s{Q_RO}, {r}\ns_cmp_ge_u32 s{Q_R}, 17\ns_cselect_b32 s{Q2}, 5, 0\ns_sub_u32 s{Q_R}, s{Q_R}, s{Q2}\n'
def issue_w(r):
    g = []
    for f in range(5):
        pre = ''
        if f == 0:
            pre = rot(r)
            if isinstance(r, str): pre += f's_mul_i32 s{Q2}, {r}, {SLOT}\ns_add_u32 m0, s{Q_WL}, s{Q2}\n'
            else: pre += f's_add_u32 m0, s{Q_WL}, {(r%NS)*SLOT}\n'
            pre += f's_mul_i32 s{Q2}, s{Q_R}, {160*1024}\ns_add_u32 s{Q2}, s{Q2}, s{Q_WO}\n'
        if f == 4: pre = f's_add_u32 m0, m0, 4096\ns_add_u32 s{Q2}, s{Q2}, 4096\n'
        g.append((pre + f'buffer_load_dwordx4 v{V_L16}, {WSR}, s{Q2} offen offset:{(f&3)*1024} {SC} lds', f'w{r}'))
    return g
AREG = [210 + 8 * r for r in range(4)] + [26 + 8 * r for r in range(13)]
V4_ACC = 130; V4_F = 170
def issue_a(r):
    g = []
    for t in range(2):
        pre = rot(r) + f's_lshl_b32 s{Q_R}, s{Q_R}, 12\n' if t == 0 else ''
        g.append((pre + f's_add_u32 s{Q2}, s{Q_R}, s{Q_A0+t}\nbuffer_load_dwordx4 {vr(AREG[r]+4*t,4)}, v{V_L16}, {WSR}, s{Q2} offen {SC}', f'a{r}'))
    return g

def build(prof=False):
    uid[0] = 0
    config(5)
    XB, RB = st1.XBASE, st1.RBASE
    a = Asm(); name = 'k'
    common_entry(a, name)
    stamp(a, 0, prof)
    t = V_T
    a(f'''
    s_and_b32 s{S_T0}, s2, 7
    s_lshr_b32 s{S_T1}, s2, 3
    s_and_b32 s{S_MB}, s{S_T0}, 1
    s_lshl_b32 s{S_MB}, s{S_MB}, 3
    s_and_b32 s{S_T2}, s{S_T1}, 7
    s_add_u32 s{S_MB}, s{S_MB}, s{S_T2}
    s_lshr_b32 s{S_J}, s{S_T0}, 1
    s_lshr_b32 s{S_T1}, s{S_T1}, 3
    s_add_u32 s{S_XM}, s{S_T1}, s{S_T2}
    s_and_b32 s{S_XM}, s{S_XM}, {0 if 'x0' in OPT else 3 if 'x3' in OPT else 1}
    s_mov_b32 s{S_CW}, 0
    s_mov_b32 s{S_CX}, 0
    s_lshl_b32 s{S_T1}, s{S_T1}, 2
    s_add_u32 s{S_J}, s{S_J}, s{S_T1}
    s_mul_i32 s{S_T0}, s{S_J}, 5
    s_sub_u32 s{S_T0}, s{S_T0}, 48
    s_cmp_lt_u32 s{S_J}, 12
    s_cselect_b32 s{S_LC0}, s{S_J}, s{S_T0}
    s_mov_b32 s{S_STW0}, 3840
    s_cselect_b32 s{S_STW1}, 3072, s{S_STW0}
    s_and_b32 s{S_T0}, s{S_W}, 3
    s_lshr_b32 s{S_P}, s{S_W}, 2
    v_lshrrev_b32 v{t}, 3, v0
    v_and_b32 v{t+1}, 7, v0
    v_bfe_u32 v{t+2}, v0, 4, 1
    s_and_b32 s{S_T3}, s{S_W}, 1
    s_lshl_b32 s{S_T2}, s{S_T3}, 1
    v_or_b32 v{t+2}, s{S_T2}, v{t+2}
    v_lshlrev_b32 v{t+2}, 1, v{t+2}
    v_xor_b32 v{t+2}, v{t+2}, v{t+1}
    v_lshlrev_b32 v{t+2}, 4, v{t+2}
    s_lshl_b32 s{S_T2}, s{S_T0}, 3
    v_add_u32 v{t+3}, s{S_T2}, v{t}
    v_mad_u32_u24 v{V_OW0}, v{t+3}, s{S_STW0}, v{t+2}
    v_mad_u32_u24 v{V_OW1}, v{t+3}, s{S_STW1}, v{t+2}
    s_lshr_b32 s{S_T2}, s{S_W}, 1
    s_lshl_b32 s{S_T2}, s{S_T2}, 5
    s_add_u32 s{S_T2}, s{S_T2}, s{S_T3}
    v_lshl_add_u32 v{t+3}, v{t}, 1, s{S_T2}
    v_mul_u32_u24 v{t+3}, 1280, v{t+3}
    v_lshrrev_b32 v{t+4}, 4, v0
    v_xor_b32 v{t+4}, v{t+4}, v{t+1}
    v_lshl_add_u32 v{V_OX0}, v{t+4}, 4, v{t+3}
    v_xor_b32 v{V_OX1}, 64, v{V_OX0}
    v_add_u32 v{V_OX1}, {16*1280}, v{V_OX1}
    s_xor_b32 s{S_T2}, s{S_P}, 1
    s_mul_i32 s{S_WDS}, s{S_T2}, {WSLOT}
    s_lshl_b32 s{S_T3}, s{S_T0}, 10
    s_add_u32 s{S_WDS}, s{S_WDS}, s{S_T3}
    s_lshl_b32 s{S_T2}, s{S_T2}, 5
    s_mul_i32 s{S_WEND0}, s{S_T2}, s{S_STW0}
    s_mul_i32 s{S_WEND1}, s{S_T2}, s{S_STW1}
    s_lshl_b32 s{S_STW0}, s{S_STW0}, 6
    s_lshl_b32 s{S_STW1}, s{S_STW1}, 6
    s_mul_i32 s{S_SW0}, s{S_XM}, s{S_STW0}
    s_mul_i32 s{S_SW1}, s{S_XM}, s{S_STW1}
    s_add_u32 s{S_SW0}, s{S_SW0}, s{S_WEND0}
    s_add_u32 s{S_SW1}, s{S_SW1}, s{S_WEND1}
    s_lshl_b32 s{S_SX}, s{S_XM}, 7
    s_lshl_b32 s{S_XDS}, s{S_W}, 11
    s_add_u32 s{S_XDS}, s{S_XDS}, {XB}
    s_mul_i32 s{S_T2}, s{S_MB}, {128*1280}
    s_lshl_b32 s{S_T3}, s{S_LC0}, 7
    s_waitcnt lgkmcnt(0)
    ''')
    srd(a, SRD_X, S_X, 128 * 1280, f's{S_T2}')
    nq = 639 * 3840 + 128; ng = 639 * 3072 + 128
    srd(a, SRD_W, S_WQKV, nq, f's{S_T3}')
    a(f's_cmp_lt_u32 s{S_J}, 12\ns_cbranch_scc1 k_s1g')
    for c in range(1, 5):
        srd(a, SRD_W + 4 * c, SRD_W, nq, 128 * c)
    a(f's_cmp_eq_u32 s{S_J}, 15\ns_cselect_b32 s{SRD_W+14}, 0, s{SRD_W+14}\ns_cselect_b32 s{SRD_W+18}, 0, s{SRD_W+18}')
    a(f's_branch k_s1h\nk_s1g:\ns_lshl_b32 s{S_T3}, s{S_J}, 8')
    srd(a, SRD_W + 4, S_WG, ng, f's{S_T3}')
    srd(a, SRD_W + 8, SRD_W + 4, ng, 128)
    srd(a, SRD_W + 12, S_WU, ng, f's{S_T3}')
    srd(a, SRD_W + 16, SRD_W + 12, ng, 128)
    a('k_s1h:')
    stamp(a, 1, prof)
    def groups(lbl, g1, g0):
        a(f's_cmp_eq_u32 s{S_P}, 0\ns_cbranch_scc1 {lbl}0')
        for grp in g1:
            for g in grp(a): a(g)
        a(f's_branch {lbl}e\n{lbl}0:')
        for grp in g0:
            for g in grp(a): a(g)
        a(f'{lbl}e:')
    groups('k_pa', (dma_w, dma_x), (dma_x, dma_w))
    srd(a, SRD_WS, S_WS, WS_SIZE)
    srd(a, SRD_M, S_GW, 1280)
    a(f'''
    v_lshlrev_b32 v{V_L16}, 4, v0
    v_lshlrev_b32 v{V_L4}, 2, v0
    s_mul_i32 s{S_RU}, s2, 3
    s_add_u32 s{S_RU}, s{S_RU}, s{S_W}
    s_cmp_lt_u32 s{S_W}, 3
    s_cselect_b32 s{S_RU}, s{S_RU}, 1000
    s_cmp_ge_u32 s{S_RU}, 680
    s_cbranch_scc1 k_s1r
    s_mul_i32 s78, s{S_RU}, 6554
    s_lshr_b32 s78, s78, 16
    s_mul_i32 s79, s78, 10
    s_sub_u32 s79, s{S_RU}, s79
    s_lshl_b32 s79, s79, 7
    s_lshr_b32 s80, s78, 2
    s_lshl_b32 s80, s80, 7
    s_and_b32 s81, s78, 3
    s_lshl_b32 s81, s81, 4
    s_add_u32 s80, s80, s81
    s_sub_u32 s81, s78, 48
    s_lshl_b32 s81, s81, 5
    s_cmp_lt_u32 s78, 48
    s_cselect_b32 s80, s80, s81
    s_mov_b32 s81, {16*1280}
    s_mov_b32 s86, {640*1280}
    s_cselect_b32 s81, {64*1280}, s81
    s_cselect_b32 s84, s{S_WD}, s{S_WO}
    s_cselect_b32 s85, s{S_WD+1}, s{S_WO+1}
    s_cselect_b32 s86, {1536*1280}, s86
    s_mov_b32 s87, 0x20000
    s_mul_i32 s80, s80, 1280
    s_add_u32 s80, s80, s79
    v_mul_u32_u24 v{t+12}, 1280, v{t}
    v_lshl_add_u32 v{t+12}, v{t+1}, 4, v{t+12}
    s_lshl_b32 s79, s{S_W}, 12
    s_add_u32 s79, s79, {RB}
    ''')
    for i in range(4):
        a(f's_add_u32 m0, s79, {i*1024}')
        a([f's_nop 0', f's_add_u32 s82, s80, {8*1280}', 's_add_u32 s80, s80, s81', f's_add_u32 s82, s80, {8*1280}'][i])
        a(f'buffer_load_dwordx4 v{t+12}, s[84:87], s{82 if i & 1 else 80} offen lds')
    gx, gw = t + 16, t + 22
    a(f'''k_s1r:
    s_lshl_b32 s{S_T2}, s{S_J}, 3
    s_add_u32 s{S_T2}, s{S_T2}, s{S_W}
    s_mul_i32 s{S_T3}, s{S_T2}, 1280
    buffer_load_dwordx4 {vr(gx,4)}, v{V_L16}, {sr(SRD_X,4)}, s{S_T3} offen
    buffer_load_dword v{gx+4}, v{V_L4}, {sr(SRD_X,4)}, s{S_T3} offen offset:1024
    buffer_load_dwordx4 {vr(gw,4)}, v{V_L16}, {sr(SRD_M,4)}, 0 offen
    buffer_load_dword v{gw+4}, v{V_L4}, {sr(SRD_M,4)}, 0 offen offset:1024
    s_lshl_b32 s78, s{S_MB}, 1
    s_add_u32 s78, s78, s{S_P}
    s_lshl_b32 s78, s78, 4
    s_add_u32 s78, s78, s{S_J}
    s_lshl_b32 s78, s78, 2
    s_and_b32 s79, s{S_W}, 3
    s_add_u32 s78, s78, s79
    s_lshl_b32 s78, s78, 2
    s_add_u32 s78, s78, {WS_F2}
    v_mov_b32 v{V_FLG}, s78
    s_lshr_b32 s78, s2, 5
    s_lshl_b32 s78, s78, 3
    s_add_u32 s78, s78, s{S_W}
    s_lshl_b32 s78, s78, 5
    s_and_b32 s79, s2, 31
    s_add_u32 s78, s78, s79
    s_lshl_b32 s78, s78, 2
    s_add_u32 s78, s78, {WS_F3}
    v_writelane_b32 v{V_FLG}, s78, 1
    s_lshl_b32 s78, s{S_MB}, 5
    s_add_u32 s78, s78, s{S_J}
    s_lshl_b32 s78, s78, 2
    s_add_u32 s78, s78, {WS_F1}
    v_writelane_b32 v{V_FLG}, s78, 2
    v_mov_b32 v{V_PL}, 0
    v_mov_b32 v{V_ONE}, 1
    s_mov_b64 exec, 7
    buffer_store_dword v{V_PL}, v{V_FLG}, {WSR}, 0 offen {SC}
    s_mov_b64 exec, -1
    ''')
    groups('k_pb', (dma_w, dma_x, dma_w), (dma_x, dma_w, dma_x))
    srd(a, SRD_M, S_DBG, 256)
    a(f'''
    v_lshrrev_b32 v{t+12}, 4, v0
    v_bfe_u32 v{t+13}, v0, 2, 2
    v_and_b32 v{t+14}, 3, v0
    v_lshlrev_b32 v{V_WB}, 10, v{t+12}
    v_lshl_add_u32 v{V_WB}, v{t+13}, 7, v{V_WB}
    v_lshl_add_u32 v{V_WB}, v{t+14}, 3, v{V_WB}
    v_bfe_u32 v{t+14}, v0, 3, 2
    s_and_b32 s{S_T0}, s{S_W}, 3
    v_xor_b32 v{t+14}, s{S_T0}, v{t+14}
    v_lshl_add_u32 v{V_WB}, v{t+14}, 5, v{V_WB}
    v_and_b32 v{t+13}, 15, v0
    v_bfe_u32 v{t+14}, v0, 1, 3
    v_xor_b32 v{t+14}, v{t+14}, v{t+12}
    v_lshlrev_b32 v{t+14}, 4, v{t+14}
    v_lshl_add_u32 v{t+14}, v{t+13}, 7, v{t+14}
    s_lshl_b32 s{S_T0}, s{S_P}, 13
    v_add_u32 v{V_XB0}, s{S_T0}, v{t+14}
    v_xor_b32 v{V_XB1}, 64, v{V_XB0}
    s_mov_b32 s{S_WRS}, 0
    s_mov_b32 s{S_XRS}, {XB}
    v_mov_b32 v{V_WA}, v{V_WB}
    v_add_u32 v{V_XA}, s{S_XRS}, v{V_XB0}
    s_mov_b32 s{S_CNT}, 0
    ''')
    for i in range(80): a(f'v_mov_b32 v{V_ACC+i}, 0')
    def step(par, n, dma):
        a(f's_waitcnt lgkmcnt(0)' + (f' vmcnt({n})' if n is not None else '') + '\ns_barrier')
        mf = [f'v_mfma_f32_16x16x32_bf16 {vr(acc(c,tt),4)}, {vr(wfr(par,c),4)}, {vr(xfr(par,tt),4)}, {vr(acc(c,tt),4)}' for c in range(5) for tt in range(4)]
        rd = reads(1 - par)
        slots = [[] for _ in range(20)]
        for i in range(14): slots[i].append(rd[i])
        slots[14].append(next_addr(par))
        pos = {6: [1, 5, 9, 13, 16, 17], 3: [3, 11, 12], 0: []}[len(dma)]
        for p_, d_ in zip(pos, dma): slots[p_].append(d_)
        for m_, sl in zip(mf, slots):
            a(m_)
            for l in sl: a(l)
    w2dyn = [s for s, _ in issue_w(f's{Q_PR}')] + [f's_add_u32 s{Q_PR}, s{Q_PR}, 2']
    for P in (1, 0):
        if P == 1: a(f's_cmp_eq_u32 s{S_P}, 0\ns_cbranch_scc1 k_l0pre')
        else: a('k_l0pre:')
        a(f's_waitcnt vmcnt({(14 if P == 0 else 12) + 5})\ns_barrier')
        stamp(a, 2, prof)
        for g in reads(0): a(g)
        a(next_addr(1))
        a(f'k_l{P}:')
        for par in range(2):
            n = {(0, 0): 9, (0, 1): 12, (1, 1): 7, (1, 0): None}[(P, par)]
            step(par, n, dma_w(a) if par == P else dma_x(a))
            if par == 0: a(f's_cmp_eq_u32 s{S_CNT}, 7\ns_cbranch_scc1 k_tail')
        a(f's_add_u32 s{S_CNT}, s{S_CNT}, 1\ns_bitcmp1_b32 {0b1001010}, s{S_CNT}\ns_cbranch_scc0 k_l{P}')
        if P == 1: a('s_branch k_side')
    a(f'k_side:\ns_cmp_eq_u32 s{S_CNT}, 1\ns_cbranch_scc0 k_side2')
    g = t + 11
    a(f'v_mov_b32 v{g}, 0')
    for i in range(5):
        a(f'''v_lshlrev_b32 v{t+12}, 16, v{gx+i}
        v_lshlrev_b32 v{t+13}, 16, v{gw+i}
        v_and_b32 v{t+14}, 0xffff0000, v{gx+i}
        v_and_b32 v{t+15}, 0xffff0000, v{gw+i}
        v_fmac_f32 v{g}, v{t+12}, v{t+13}
        v_fmac_f32 v{g}, v{t+14}, v{t+15}''')
    for dpp in ('row_shr:1', 'row_shr:2', 'row_shr:4', 'row_shr:8', 'row_bcast:15 row_mask:0xa', 'row_bcast:31 row_mask:0xc'):
        a(f's_nop 1\nv_add_f32_dpp v{g}, v{g}, v{g} {dpp}' + (' bound_ctrl:0' if 'shr' in dpp else ''))
    e = t + 16
    a(f'''
    v_mul_f32 v{g}, {hex(f2u(-LOG2E))}, v{g}
    v_exp_f32 v{g}, v{g}
    s_lshl_b32 s78, s{S_MB}, 4
    s_add_u32 s78, s78, s{S_J}
    v_add_f32 v{g}, 1.0, v{g}
    v_rcp_f32 v{g}, v{g}
    s_lshl_b32 s78, s78, 3
    s_add_u32 s78, s78, s{S_W}
    s_lshl_b32 s78, s78, 2
    s_add_u32 s78, s78, {WS_G - 252}
    s_mov_b32 exec_lo, 0
    s_brev_b32 exec_hi, 1
    buffer_store_dword v{g}, v{V_L4}, {WSR}, s78 offen {SC}
    s_mov_b64 exec, -1
    s_cmp_ge_u32 s{S_RU}, 680
    s_cbranch_scc1 k_back
    v_lshrrev_b32 v{e}, 2, v0
    v_lshlrev_b32 v{e}, 7, v{e}
    v_and_b32 v{e+1}, 3, v0
    v_lshl_add_u32 v{e}, v{e+1}, 3, v{e}
    s_lshl_b32 s79, s{S_W}, 12
    s_add_u32 s79, s79, {RB}
    v_add_u32 v{e}, s79, v{e}
    s_lshl_b32 s79, s{S_RU}, 12
    s_add_u32 s79, s79, {WS_W2}
    ''')
    for uu in range(4):
        for h in range(2):
            a(f'ds_read_b64_tr_b16 {vr(e+4+4*uu+2*h,2)}, v{e} offset:{h*2048+uu*32}')
    a('s_waitcnt lgkmcnt(0)')
    for uu in range(4):
        a(f'buffer_store_dwordx4 {vr(e+4+4*uu,4)}, v{V_L16}, {WSR}, s79 offen offset:{1024*uu} {SC}')
    a(f'''s_branch k_back
    k_side2:
    s_cmp_eq_u32 s{S_CNT}, 3
    s_cbranch_scc0 k_side3
    s_cmp_eq_u32 s{S_W}, 0
    s_cbranch_scc0 k_back
    s_mov_b64 exec, 1
    buffer_store_byte v{V_ONE}, v{V_L4}, {sr(SRD_M,4)}, s2 offen {SC}
    s_mov_b64 exec, -1
    s_branch k_back
    k_side3:
    buffer_load_dword v{V_PL}, v{V_L4}, {sr(SRD_M,4)}, 0 offen {SC}
    k_back:
    s_cmp_eq_u32 s{S_P}, 0
    s_cbranch_scc1 k_l0
    s_branch k_l1
    k_tail:''')
    s4_setup(a)
    a('s_waitcnt vmcnt(9)')
    spin(a, V_L4, sr(SRD_M, 4), 0, '0x01010101', True)
    a(f's_cmp_eq_u32 s{S_P}, 0\ns_cbranch_scc1 k_todd0\ns_branch k_todd1')
    for P in (1, 0):
        a(f'k_teven{P}:')
        step(0, 5 if P == 0 else None, w2dyn if P == 0 else [])
        a(f'k_todd{P}:')
        step(1, 10 if P == 0 else 5, w2dyn if P == 1 else [])
        a(f's_add_u32 s{S_CNT}, s{S_CNT}, 1\ns_cmp_lt_u32 s{S_CNT}, 10\ns_cbranch_scc1 k_teven{P}')
        if P == 1: a('s_branch k_s1e')
    a('k_s1e:')
    stamp(a, 3, prof)
    u = V_T + 16
    a(f'''
    s_and_b32 s{S_T0}, s{S_W}, 3
    s_lshl_b32 s{S_T2}, s{S_LC0}, 2
    s_add_u32 s{S_T2}, s{S_T2}, s{S_T0}
    s_lshl_b32 s{S_T2}, s{S_T2}, 16
    s_lshl_b32 s{S_T3}, s{S_MB}, 10
    s_add_u32 s{S_T2}, s{S_T2}, s{S_T3}
    s_lshl_b32 s{S_T3}, s{S_P}, 9
    s_add_u32 s{S_T2}, s{S_T2}, s{S_T3}
    v_lshrrev_b32 v{u}, 4, v0
    v_lshlrev_b32 v{u}, 14, v{u}
    v_and_b32 v{u+1}, 15, v0
    v_lshl_add_u32 v{u}, v{u+1}, 4, v{u}
    s_cmp_lt_u32 s{S_LC0}, 10
    s_cselect_b32 s{S_T3}, {hex(f2u(20 ** -0.5 * LOG2E))}, 1.0
    ''')
    def qkv_tile(c, scale):
        for tp in range(2):
            d = u + 4 + 4 * tp + 8 * (c & 1)
            for tt in range(2):
                b = acc(c, 2 * tp + tt)
                if scale:
                    for r in range(4): a(f'v_mul_f32 v{b+r}, s{S_T3}, v{b+r}')
                a(f'v_cvt_pk_bf16_f32 v{d+2*tt}, v{b}, v{b+1}\nv_cvt_pk_bf16_f32 v{d+2*tt+1}, v{b+2}, v{b+3}')
            a(f'buffer_store_dwordx4 {vr(d,4)}, v{u}, {WSR}, s{S_T2} offen offset:{256*tp} {SC}')
    qkv_tile(0, True)
    a(f's_waitcnt lgkmcnt(0)\ns_cmp_lt_u32 s{S_J}, 12\ns_cbranch_scc1 k_eg')
    for c in range(1, 5):
        if c == 3: a(f's_cmp_eq_u32 s{S_J}, 15\ns_cbranch_scc1 k_ef')
        a(f's_add_u32 s{S_T2}, s{S_T2}, {16*16384}')
        qkv_tile(c, False)
    a(f'''s_branch k_ef
    k_eg:
    s_mov_b32 s{S_T3}, {hex(f2u(-LOG2E))}
    ''')
    e = V_FR
    for tt in range(4):
        idx = [(c, r) for c in range(2) for r in range(4)]
        for k, (c, r) in enumerate(idx): a(f'v_mul_f32 v{e+k}, s{S_T3}, v{acc(1+c,tt)+r}')
        for k in range(8): a(f'v_exp_f32 v{e+k}, v{e+k}')
        for k, (c, r) in enumerate(idx):
            a(f'v_mul_f32 v{acc(1+c,tt)+r}, v{acc(1+c,tt)+r}, v{acc(3+c,tt)+r}\nv_add_f32 v{e+k}, 1.0, v{e+k}')
        for k in range(8): a(f'v_rcp_f32 v{e+k}, v{e+k}')
        a('s_nop 0')
        for k, (c, r) in enumerate(idx): a(f'v_mul_f32 v{e+k}, v{e+k}, v{acc(1+c,tt)+r}')
        for k in range(4): a(f'v_cvt_pk_bf16_f32 v{V_H+4*tt+k}, v{e+2*k}, v{e+2*k+1}')
    a(f'''k_ef:
    s_waitcnt vmcnt(0)
    s_barrier
    s_cmp_eq_u32 s{S_W}, 0
    s_cbranch_scc0 k_f1''')
    flag(a, 2)
    a(f'''k_f1:
    s_lshl_b32 s{Q_HO}, s{S_MB}, 1
    s_add_u32 s{Q_HO}, s{Q_HO}, s{S_P}
    s_mul_i32 s{Q_HO}, s{Q_HO}, {4*68}
    s_lshl_b32 s{S_T3}, s{S_J}, 2
    s_add_u32 s{Q_HO}, s{Q_HO}, s{S_T3}
    s_add_u32 s{Q_HO}, s{Q_HO}, s{S_T0}
    s_lshl_b32 s{Q_HO}, s{Q_HO}, 10
    s_add_u32 s{Q_HO}, s{Q_HO}, {WS_A2}
    ''')
    stamp(a, 4, prof)
    st3.LB = 5 * SLOT
    st3.ids(a)
    st3.setup(a)
    st3.loads_pre(a)
    p = 130
    a(f'''
    s_cmp_eq_u32 s{S_W}, 1
    s_cbranch_scc0 k_p1
    s_lshl_b32 s98, s{st3.S_QB}, 1
    s_sub_u32 s98, s98, 2
    v_lshrrev_b32 v{p}, 4, v0
    v_add_u32 v{p}, s98, v{p}
    v_max_i32 v{p}, 0, v{p}
    v_and_b32 v{p+1}, 15, v0
    v_lshlrev_b32 v{p+1}, 2, v{p+1}
    v_lshl_add_u32 v{p}, v{p}, 7, v{p+1}
    s_mov_b32 s99, {WS_F1}
    ''')
    spin(a, p, WSR, 's99', 1)
    a('k_p1:\ns_barrier')
    stamp(a, 5, prof)
    st3.loads(a, SC)
    a(f's_cmp_lt_u32 s{Q_J}, 12\ns_cbranch_scc0 k_nh')
    for tt in range(4):
        a(f'buffer_store_dwordx4 {vr(V_H+4*tt,4)}, v{V_L16}, {WSR}, s{Q_HO} offen {SC}')
        if tt < 3: a(f's_add_u32 s{Q_HO}, s{Q_HO}, {68*1024}')
    a('s_waitcnt vmcnt(4)\ns_branch k_nh2\nk_nh:\ns_waitcnt vmcnt(0)\nk_nh2:')
    a.vm = []
    def hook(x):
        if x == 'p1end':
            a('s_waitcnt vmcnt(0)'); flag(a, 0)
    st3.compute(a, prof, SC, hook)
    a(f's_lshl_b32 s99, s{Q_MT}, 8\ns_add_u32 s99, s99, {WS_F2}')
    a(f'buffer_load_dword v{V_PL}, v{V_L4}, {WSR}, s99 offen {SC}\ns_waitcnt vmcnt(0)')
    flag(a, 1)
    spin(a, V_L4, WSR, 's99', 1, True)
    stamp(a, 8, prof)
    srd(a, SRD_O, S_OUT, 2048 * 1280)
    a4 = lambda f, t_: V4_ACC + (f * 2 + t_) * 4
    a(f'''v_and_b32 v2, 15, v0
    v_lshlrev_b32 v2, 3, v2
    v_and_b32 v3, 31, v0
    v_lshlrev_b32 v3, 2, v3
    s_add_u32 s99, s{Q_G}, {WS_F3}
    s_add_u32 s{Q_G}, s{Q_G}, {WS_G}''')
    a.vm = []
    for r in range(NS):
        for s, tag in issue_a(r): a.vmem(s, tag)
    a.vmem(f'buffer_load_dwordx2 {vr(V_G1,2)}, v2, {WSR}, s{Q_G} offen {SC}', 'g')
    a(f's_barrier\ns_cmp_eq_u32 s{S_P}, 0\ns_cbranch_scc1 k_4p0')
    vm0 = list(a.vm)
    for P in (1, 0):
        if P == 0: a('k_4p0:')
        a.vm = list(vm0)
        def rds(r):
            sl = r % NS
            return [f'ds_read_b128 {vr(V4_F+20*(r&1)+4*f,4)}, v{[V_RA,V_RA2,V_RA3][sl//3]} offset:{(sl%3)*SLOT+f*1024}' for f in range(5)]
        for l in rds(0): a(l)
        for s, tag in issue_w(5 + P): a.vmem(s, tag)
        asched = {0: [7], 1: [8], 2: [9], 3: [10], 4: [11], 9: [12, 13], 10: [14, 15], 11: [16]}
        for r in range(17):
            a.vmwait([f'w{r+1}', f'a{r}'] + (['f3'] if r == 9 else []), 'lgkmcnt(0)')
            if r < 16: a('s_barrier')
            if r == 9: spin(a, 3, WSR, 's99', 1, True)
            if r == 12:
                a(f'v_sub_f32 v{V_G1}, 1.0, v{V_G1}\nv_sub_f32 v{V_G1+1}, 1.0, v{V_G1+1}\ns_nop 4')
                for f in range(5):
                    for t_ in range(2):
                        for i in range(4): a(f'v_mul_f32 v{a4(f,t_)+i}, v{V_G1+t_}, v{a4(f,t_)+i}')
                a('s_nop 0')
            mf = [f'v_mfma_f32_16x16x32_bf16 {vr(a4(f,t_),4)}, {vr(V4_F+20*(r&1)+4*f,4)}, {vr(AREG[r]+4*t_,4)}, ' + ('0' if r == 0 else vr(a4(f, t_), 4)) for f in range(5) for t_ in range(2)]
            iss = []
            if r == 7: iss.append((f'buffer_load_dword v{V_PL}, v3, {WSR}, s99 offen {SC}', 'f3'))
            for rr in asched.get(r, []): iss += issue_a(rr)
            if r + NS <= 16 and (r + NS + 1) % 2 == P: iss += issue_w(r + NS)
            for s, tag in iss: a.vm.append(tag)
            fill = (rds(r + 1) if r < 16 else []) + [s for s, tag in iss]
            for l in interleave(mf, fill): a(l)
        if P == 1: a('s_branch k_4e')
    a('k_4e:')
    stamp(a, 9, prof)
    t = 2
    a(f'''
    v_and_b32 v{t}, 15, v0
    v_mul_u32_u24 v{t}, 336, v{t}
    v_lshrrev_b32 v{t+1}, 4, v0
    v_lshl_add_u32 v{t}, v{t+1}, 4, v{t}
    s_mul_i32 s{Q2}, s{S_W}, 10752
    v_add_u32 v{t}, s{Q2}, v{t}
    v_mul_u32_u24 v{t+1}, 26, v0
    v_lshrrev_b32 v{t+1}, 8, v{t+1}
    v_mul_u32_u24 v{t+2}, 10, v{t+1}
    v_sub_u32 v{t+2}, v0, v{t+2}
    v_and_b32 v{t+3}, 1, v{t+1}
    v_lshlrev_b32 v{t+3}, 4, v{t+3}
    v_bfe_u32 v{t+4}, v{t+1}, 1, 1
    s_lshl_b32 s{Q2}, s{Q0}, 2
    v_add3_u32 v{t+3}, v{t+3}, v{t+4}, s{Q2}
    v_mul_u32_u24 v{t+3}, 336, v{t+3}
    v_lshl_add_u32 v{t+3}, v{t+2}, 5, v{t+3}
    s_mul_i32 s{Q2}, s{S_P}, {4*10752}
    v_add_u32 v{t+3}, s{Q2}, v{t+3}
    v_mul_u32_u24 v{t+1}, 1280, v{t+1}
    v_lshl_add_u32 v{t+1}, v{t+2}, 4, v{t+1}
    s_lshl_b32 s{Q2}, s{Q_MT}, 3
    s_add_u32 s{Q2}, s{Q2}, s{S_W}
    s_mul_i32 s{Q2}, s{Q2}, {8*1280}
    s_mul_i32 s{Q3}, s{Q_N}, 160
    s_add_u32 s{Q2}, s{Q2}, s{Q3}
    s_add_u32 s{Q3}, s{Q2}, {4*1280}
    s_barrier
    ''')
    for f in range(5):
        for tt in range(2):
            a(f'ds_write_b128 v{t}, {vr(a4(f,tt),4)} offset:{tt*16*336+f*64}')
    a('s_waitcnt lgkmcnt(0)\ns_barrier\ns_mov_b32 exec_hi, 0xff')
    R = 26
    for ps in range(2):
        for kq in range(4):
            for h in range(2):
                if ps == 1 and kq == 3 and h == 1: a('s_waitcnt lgkmcnt(14)')
                a(f'ds_read_b128 {vr(R+32*ps+8*kq+4*h,4)}, v{t+3} offset:{kq*10752+ps*2*336+h*16}')
    for ps in range(2):
        b = R + 32 * ps
        a(f's_waitcnt lgkmcnt({8 if ps == 0 else 0})')
        for i in range(8): a(f'v_add_f32 v{b+i}, v{b+i}, v{b+8+i}\nv_add_f32 v{b+16+i}, v{b+16+i}, v{b+24+i}')
        for i in range(8): a(f'v_add_f32 v{b+i}, v{b+i}, v{b+16+i}')
        for k in range(4): a(f'v_cvt_pk_bf16_f32 v{b+8+k}, v{b+2*k}, v{b+2*k+1}')
        a(f'buffer_store_dwordx4 {vr(b+8,4)}, v{t+1}, {sr(SRD_O,4)}, s{Q2 if ps == 0 else Q3} offen')
    a('s_mov_b64 exec, -1')
    stamp(a, 10, prof)
    stamp_flush(a, prof, 0)
    a('k_end:\ns_endpgm')
    ref = open('gated_mix__sliding_block__swiglu_ffn__prompt.s.ref').read()
    hdr = ref.split('; Override')[0]
    s = hdr + '; @launch grid=(256,1,1) block=(512,1,1) lds=163840\n.amdgcn_target "amdgcn-amd-amdhsa--gfx950"\n.text\n'
    s += f'.globl {NAME}\n.p2align 8\n.type {NAME},@function\n{NAME}:\n' + a.text()
    s += ref[ref.index('.section .rodata'):]
    return s
if __name__ == '__main__':
    open('gated_mix__sliding_block__swiglu_ffn__prompt.s', 'w').write(build())
    open('prof.s', 'w').write(build(True))
    for o in sys.argv[1:]:
        OPT.clear(); OPT.update(o.split('+'))
        open(f'prof_{o}.s', 'w').write(build(True))
        open(f'v_{o}.s', 'w').write(build(False))
```

```python
from base import *
SRD_O = 28
S_MT, S_N, T0, T1, T2, T3, S_A0, S_A1, S_WO_, S_WL, S_RH, S_RO, S_R = range(32, 45)
V_L16, V_RA, V_G1 = 1, 2, 4
V_RA2, V_RA3 = 3, 6
V_ACC = 8
V_F = 48
V_A = 88
V_T = 224
SLOT = 20480; NS = 7
def acc(f, t): return V_ACC + (f * 2 + t) * 4

def stage4(a, name, prof, sc=''):
    a(f'''
    s_and_b32 s{T0}, s2, 7
    s_lshr_b32 s{T1}, s2, 3
    s_lshr_b32 s{S_MT}, s{T0}, 1
    s_lshl_b32 s{S_MT}, s{S_MT}, 3
    s_and_b32 s{T2}, s{T1}, 7
    s_add_u32 s{S_MT}, s{S_MT}, s{T2}
    s_and_b32 s{S_N}, s{T0}, 1
    s_lshl_b32 s{S_N}, s{S_N}, 2
    s_lshr_b32 s{T1}, s{T1}, 3
    s_add_u32 s{S_N}, s{S_N}, s{T1}
    s_lshl_b32 s{S_RH}, s{T1}, 1
    s_add_u32 s{S_RH}, s{S_RH}, s{T2}
    s_and_b32 s{S_RH}, s{S_RH}, {0 if 'norot' in OPT else 7}
    s_mul_i32 s{S_RO}, s{S_RH}, 5
    s_lshr_b32 s{S_RO}, s{S_RO}, 3
    s_mul_i32 s{S_RH}, s{S_RH}, 3
    s_lshr_b32 s{S_RH}, s{S_RH}, 1
    s_and_b32 s{T0}, s{S_W}, 3
    s_lshr_b32 s{T1}, s{S_W}, 2
    s_lshl_b32 s{T2}, s{S_MT}, 1
    s_add_u32 s{T2}, s{T2}, s{T1}
    s_lshl_b32 s{T3}, s{T2}, 7
    s_add_u32 s{T3}, s{T3}, {WS_G}
    s_mul_i32 s{S_A0}, s{T2}, {2*68}
    s_add_u32 s{S_A0}, s{S_A0}, s{T0}
    s_lshl_b32 s{S_A0}, s{S_A0}, 10
    s_add_u32 s{S_A0}, s{S_A0}, {WS_A2}
    s_add_u32 s{S_A1}, s{S_A0}, {68*1024}
    s_lshl_b32 s{T2}, s{T0}, 3
    s_add_u32 s{T2}, s{T2}, s{S_N}
    s_mul_i32 s{S_WO_}, s{T2}, 5120
    s_add_u32 s{S_WO_}, s{S_WO_}, {WS_W2}
    s_mul_i32 s{S_WL}, s{T0}, 5120
    v_lshlrev_b32 v{V_L16}, 4, v0
    v_add_u32 v{V_RA}, s{S_WL}, v{V_L16}
    v_add_u32 v{V_RA2}, {3*SLOT}, v{V_RA}
    v_add_u32 v{V_RA3}, {6*SLOT}, v{V_RA}
    v_and_b32 v{V_T}, 15, v0
    v_lshlrev_b32 v{V_T}, 3, v{V_T}
    s_waitcnt lgkmcnt(0)
    ''')
    srd(a, SRD_WS, S_WS, WS_SIZE)
    srd(a, SRD_O, S_OUT, 2048 * 1280)
    stamp(a, 8, prof)
    a(f's_cmp_eq_u32 s{T1}, 0\ns_cbranch_scc1 {name}_s4p0')
    for P in (1, 0):
        if P == 0: a(f'{name}_s4p0:')
        a.vm = []
        def rot(r):
            if r < 12: return f's_add_u32 s{S_R}, s{S_RH}, {r}\ns_cmp_ge_u32 s{S_R}, 12\ns_cselect_b32 s{T2}, 12, 0\ns_sub_u32 s{S_R}, s{S_R}, s{T2}\n'
            return f's_add_u32 s{S_R}, s{S_RO}, {r}\ns_cmp_ge_u32 s{S_R}, 17\ns_cselect_b32 s{T2}, 5, 0\ns_sub_u32 s{S_R}, s{S_R}, s{T2}\n'
        def issue_w(r):
            g = []
            if r > 16 or r % 2 != P: return g
            for f in range(5):
                pre = rot(r) + f's_mul_i32 s{T2}, s{S_R}, {160*1024}\ns_add_u32 m0, s{S_WL}, {(r%NS)*SLOT}\ns_add_u32 s{T2}, s{T2}, s{S_WO_}\n' if f == 0 else ''
                if f == 4: pre = f's_add_u32 m0, m0, 4096\ns_add_u32 s{T2}, s{T2}, 4096\n'
                g.append((pre + f'buffer_load_dwordx4 v{V_L16}, {sr(SRD_WS,4)}, s{T2} offen offset:{(f&3)*1024} lds {sc}', f'w{r}'))
            return g
        def issue_a(r):
            g = []
            if r > 16: return g
            for t in range(2):
                pre = rot(r) + f's_lshl_b32 s{S_R}, s{S_R}, 12\n' if t == 0 else ''
                g.append((pre + f's_add_u32 s{T2}, s{S_R}, s{S_A0+t}\nbuffer_load_dwordx4 {vr(V_A+8*r+4*t,4)}, v{V_L16}, {sr(SRD_WS,4)}, s{T2} offen {sc}', f'a{r}'))
            return g
        def issue(r): return issue_w(r) + issue_a(r)
        def reads(r):
            sl = r % NS
            return [f'ds_read_b128 {vr(V_F+20*(r&1)+4*f,4)}, v{[V_RA,V_RA2,V_RA3][sl//3]} offset:{(sl%3)*SLOT+f*1024}' for f in range(5)]
        for r in range(NS):
            for s, tag in issue(r): a.vmem(s, tag)
            if r == 1: a.vmem(f'buffer_load_dwordx2 {vr(V_G1,2)}, v{V_T}, {sr(SRD_WS,4)}, s{T3} offen {sc}', 'g')
        a.vmwait(['w0'])
        a('s_barrier')
        for l in reads(0): a(l)
        for r in range(17):
            a.vmwait([f'w{r+1}', f'a{r}'], 'lgkmcnt(0)')
            if r < 16: a('s_barrier')
            if r == 12:
                a(f'v_sub_f32 v{V_G1}, 1.0, v{V_G1}\nv_sub_f32 v{V_G1+1}, 1.0, v{V_G1+1}\ns_nop 4')
                for f in range(5):
                    for t in range(2):
                        for i in range(4): a(f'v_mul_f32 v{acc(f,t)+i}, v{V_G1+t}, v{acc(f,t)+i}')
                a('s_nop 0')
            mf = [f'v_mfma_f32_16x16x32_bf16 {vr(acc(f,t),4)}, {vr(V_F+20*(r&1)+4*f,4)}, {vr(V_A+8*r+4*t,4)}, ' + ('0' if r == 0 else vr(acc(f, t), 4)) for f in range(5) for t in range(2)]
            iss = issue(r + NS)
            for s, tag in iss: a.vm.append(tag)
            fill = (reads(r + 1) if r < 16 else []) + [s for s, tag in iss]
            if 'nodma' in OPT: fill = (reads(r + 1) if r < 16 else [])
            if 'noread' in OPT: fill = [s for s, tag in iss]
            if 'nomfma' in OPT and r > 0: mf = []
            for l in interleave(mf, fill): a(l)
        if P == 1: a(f's_branch {name}_s4e')
    a(f'{name}_s4e:')
    stamp(a, 9, prof)
    t = V_T
    a(f'''
    v_and_b32 v{t}, 15, v0
    v_mul_u32_u24 v{t}, 336, v{t}
    v_lshrrev_b32 v{t+1}, 4, v0
    v_lshl_add_u32 v{t}, v{t+1}, 4, v{t}
    s_mul_i32 s{T2}, s{S_W}, 10752
    v_add_u32 v{t}, s{T2}, v{t}
    v_mul_u32_u24 v{t+1}, 26, v0
    v_lshrrev_b32 v{t+1}, 8, v{t+1}
    v_mul_u32_u24 v{t+2}, 10, v{t+1}
    v_sub_u32 v{t+2}, v0, v{t+2}
    v_and_b32 v{t+3}, 1, v{t+1}
    v_lshlrev_b32 v{t+3}, 4, v{t+3}
    v_bfe_u32 v{t+4}, v{t+1}, 1, 1
    s_lshl_b32 s{T2}, s{T0}, 2
    v_add3_u32 v{t+3}, v{t+3}, v{t+4}, s{T2}
    v_mul_u32_u24 v{t+3}, 336, v{t+3}
    v_lshl_add_u32 v{t+3}, v{t+2}, 5, v{t+3}
    s_mul_i32 s{T2}, s{T1}, {4*10752}
    v_add_u32 v{t+3}, s{T2}, v{t+3}
    v_mul_u32_u24 v{t+1}, 1280, v{t+1}
    v_lshl_add_u32 v{t+1}, v{t+2}, 4, v{t+1}
    s_lshl_b32 s{T2}, s{S_MT}, 3
    s_add_u32 s{T2}, s{T2}, s{S_W}
    s_mul_i32 s{T2}, s{T2}, {8*1280}
    s_mul_i32 s{T3}, s{S_N}, 160
    s_add_u32 s{T2}, s{T2}, s{T3}
    s_add_u32 s{T3}, s{T2}, {4*1280}
    s_barrier
    ''')
    for f in range(5):
        for tt in range(2):
            a(f'ds_write_b128 v{t}, {vr(acc(f,tt),4)} offset:{tt*16*336+f*64}')
    a(f'''
    s_waitcnt lgkmcnt(0)
    s_barrier
    s_mov_b32 exec_hi, 0xff
    ''')
    R = V_A
    for ps in range(2):
        for kq in range(4):
            for h in range(2):
                if ps == 1 and kq == 3 and h == 1: a('s_waitcnt lgkmcnt(14)')
                a(f'ds_read_b128 {vr(R+32*ps+8*kq+4*h,4)}, v{t+3} offset:{kq*10752+ps*2*336+h*16}')
        if ps == 0: continue
    for ps in range(2):
        b = R + 32 * ps
        a(f's_waitcnt lgkmcnt({8 if ps == 0 else 0})')
        for i in range(8): a(f'v_add_f32 v{b+i}, v{b+i}, v{b+8+i}\nv_add_f32 v{b+16+i}, v{b+16+i}, v{b+24+i}')
        for i in range(8): a(f'v_add_f32 v{b+i}, v{b+i}, v{b+16+i}')
        for k in range(4): a(f'v_cvt_pk_bf16_f32 v{b+8+k}, v{b+2*k}, v{b+2*k+1}')
        a(f'buffer_store_dwordx4 {vr(b+8,4)}, v{t+1}, {sr(SRD_O,4)}, s{T2 if ps == 0 else T3} offen')
    a('s_mov_b64 exec, -1')
    stamp(a, 10, prof)
```

```python
from base import *
PL = 4128; KB = 0; VB = 6 * PL; LB = 0
S_H, S_QB, T0, T1, T2, T3 = 60, 61, 62, 63, 64, 65
S_MSK = 66
V_Q0, V_Q1 = 4, 8
V_G, V_KA0, V_KA1, V_VA, V_M = 1, 2, 3, 12, 13
V_PM = 14
V_OA = 22
V_K = 26
V_S = 82
V_MG = 130
V_NM = 146
V_O = 162
V_V = 178
V_P = 194
MF = 'v_mfma_f32_32x32x16_bf16'

def ids(a):
    a(f's_and_b32 s{S_H}, s2, 31\ns_lshr_b32 s{S_QB}, s2, 5')

def setup(a):
    t = V_S
    a(f'''
    s_lshl_b32 s{T0}, s{S_W}, 9
    s_add_u32 s{T0}, s{T0}, {LB}
    v_lshl_add_u32 v{t}, v0, 3, s{T0}
    s_lshr_b32 s{T1}, s{S_W}, 2
    s_or_b32 s{T1}, s{T1}, s{S_QB}
    s_cmp_eq_u32 s{T1}, 0
    s_cselect_b32 s{T1}, 0xf149, 0
    v_mov_b32 v{t+2}, s{T1}
    v_mov_b32 v{t+3}, 0
    v_mov_b32 v{t+4}, 0x3f803f80
    v_mov_b32 v{t+5}, 0x3f803f80
    ds_write_b64 v{t}, v[{t+2}:{t+3}] offset:{KB+5*PL}
    ds_write_b64 v{t}, v[{t+4}:{t+5}] offset:{VB+5*PL}
    ''')
    a(f'''
    v_and_b32 v{t}, 31, v0
    v_lshrrev_b32 v{t+1}, 5, v0
    s_lshl_b32 s{T0}, s{S_W}, 8
    s_add_u32 s{T0}, s{T0}, {LB}
    v_lshl_add_u32 v{t+2}, v{t}, 3, s{T0}
    v_mul_u32_u24 v{t+3}, {PL}, v{t+1}
    v_add_u32 v{V_KA1}, v{t+2}, v{t+3}
    v_add_u32 v{V_KA0}, v{V_KA1}, v{t+3}
    v_and_b32 v{t+3}, 3, v0
    v_min_u32 v{t+4}, 1, v{t+3}
    v_add_u32 v{t+4}, 4, v{t+4}
    v_and_b32 v{t+5}, 16, v0
    v_cmp_eq_u32 vcc, 0, v{t+5}
    v_bfe_u32 v{t+5}, v0, 2, 2
    v_lshl_add_u32 v{t+5}, v{t+1}, 2, v{t+5}
    v_cndmask_b32 v{t+3}, v{t+4}, v{t+3}, vcc
    v_mul_u32_u24 v{t+3}, {PL}, v{t+3}
    v_lshl_add_u32 v{t+3}, v{t+5}, 3, v{t+3}
    v_add_u32 v{V_VA}, s{T0}, v{t+3}
    ''')
    for e in range(16):
        g, r = e >> 2, e & 3
        for hf in range(2):
            i = 8 * g + 4 * hf + r
            a(f's_mov_b32 s{S_MSK+2*e+hf}, {hex((0xffffffff << i) & 0xffffffff)}')
    a(f'v_mov_b32 v{t+4}, 0xffff')
    for k in range(8):
        a(f'v_cndmask_b32 v{V_PM+k}, 0, v{t+4}, {sr(S_MSK+4*k,2)}\nv_cndmask_b32 v{V_PM+k}, v{V_PM+k}, -1, {sr(S_MSK+4*k+2,2)}')
    a(f'''
    s_lshl_b32 s{T0}, s{S_QB}, 3
    s_add_u32 s{T0}, s{T0}, s{S_W}
    s_lshl_b32 s{T0}, s{T0}, 8
    s_mul_i32 s{T1}, s{S_H}, {5*16384}
    s_add_u32 s{T0}, s{T0}, s{T1}
    s_add_u32 s{T0}, s{T0}, {WS_O}
    v_lshl_add_u32 v{t+2}, v{t}, 3, s{T0}
    v_lshl_add_u32 v{V_OA}, v{t+1}, 14, v{t+2}
    v_add_u32 v{V_OA+1}, {2*16384}, v{V_OA}
    v_lshl_add_u32 v{V_OA+2}, v{t+1}, 30, v{t+2}
    v_add_u32 v{V_OA+2}, {4*16384}, v{V_OA+2}
    v_mov_b32 v{V_K+54}, 0
    v_mov_b32 v{V_K+55}, 0
    v_mov_b32 v{V_Q1+2}, 0
    v_mov_b32 v{V_Q1+3}, 0
    ''')

U0, U1, U2, U3, U4, U5 = 4, 5, 6, 7, 8, 9
def loads_pre(a):
    t = V_S + 16
    a(f'''
    s_and_b32 s{T0}, s{S_W}, 3
    s_lshr_b32 s{T1}, s{S_W}, 2
    s_lshl_b32 s{U1}, s{S_QB}, 1
    s_add_u32 s{U1}, s{U1}, s{T0}
    s_sub_u32 s{U1}, s{U1}, 2
    s_cselect_b32 s{U1}, s{T0}, s{U1}
    s_lshl_b32 s{U1}, s{U1}, 10
    s_add_u32 s{T3}, s{T1}, 1
    s_lshl_b32 s{T3}, s{T3}, 5
    s_add_u32 s{T3}, s{T3}, s{S_H}
    s_mul_i32 s{T3}, s{T3}, {5*16384}
    s_add_u32 s{U1}, s{U1}, s{T3}
    s_mul_i32 s{T1}, s{T1}, {VB}
    s_lshl_b32 s{T0}, s{T0}, 10
    s_add_u32 s{U0}, s{T0}, s{T1}
    v_lshlrev_b32 v{t}, 4, v0
    v_and_b32 v{t+1}, 31, v0
    v_lshrrev_b32 v{t+2}, 5, v0
    v_lshlrev_b32 v{t+3}, 3, v{t+1}
    v_lshl_add_u32 v{t+2}, v{t+2}, 15, v{t+3}
    v_lshrrev_b32 v{t+1}, 3, v{t+1}
    v_lshlrev_b32 v{t+1}, 5, v{t+1}
    v_and_or_b32 v{t+1}, v0, 7, v{t+1}
    v_lshlrev_b32 v{t+1}, 2, v{t+1}
    s_lshl_b32 s{T0}, s{S_QB}, 3
    s_add_u32 s{T0}, s{T0}, s{S_W}
    s_lshl_b32 s{T1}, s{T0}, 8
    s_mul_i32 s{T2}, s{S_H}, {5*16384}
    s_add_u32 s{U2}, s{T1}, s{T2}
    s_add_u32 s{U3}, s{U2}, 16384
    s_add_u32 s{U4}, s{U2}, {4*16384}
    s_lshl_b32 s{T0}, s{T0}, 9
    s_add_u32 s{U5}, s{T0}, {WS_G}
    ''')
def loads(a, sc=''):
    t = V_S + 16
    for p in range(5):
        a(f's_add_u32 m0, s{U0}, {LB+KB+p*PL}')
        a(f's_add_u32 s{U1}, s{U1}, 16384' if p else 's_nop 0')
        a.vmem(f'buffer_load_dwordx4 v{t}, {sr(SRD_WS,4)}, s{U1} offen {sc} lds', 'kv')
    a.vmem(f'buffer_load_dwordx2 {vr(V_Q0,2)}, v{t+2}, {sr(SRD_WS,4)}, s{U2} offen {sc}', 'kv')
    a.vmem(f'buffer_load_dwordx2 {vr(V_Q0+2,2)}, v{t+2}, {sr(SRD_WS,4)}, s{U3} offen {sc}', 'kv')
    a.vmem(f'buffer_load_dwordx2 {vr(V_Q1,2)}, v{t+3}, {sr(SRD_WS,4)}, s{U4} offen {sc}', 'kv')
    a.vmem(f'buffer_load_dword v{V_G}, v{t+1}, {sr(SRD_WS,4)}, s{U5} offen {sc}', 'kv')

def qk(T, d, c):
    k = V_K + 6 * T
    return [f'{MF} {vr(d,16)}, {vr(k,4)}, {vr(V_Q0,4)}, {c}', f'{MF} {vr(d,16)}, {vr(k+4,4)}, {vr(V_Q1,4)}, {vr(d,16)}']
def vread(T, st):
    return [f'ds_read_b64_tr_b16 {vr(V_V+8*st+4*m+2*h,2)}, v{V_VA} offset:{VB+(32*T+16*m+8*h)*8}' for m in range(2) for h in range(2)]
def pv(st, pst, first=False):
    return [f'{MF} {vr(V_O,16)}, {vr(V_V+8*st+4*m,4)}, {vr(V_P+8*pst+4*m,4)}, ' + ('0' if first and m == 0 else vr(V_O, 16)) for m in range(2)]
def spread(valu, mf):
    out = []; n = len(valu); k = len(mf)
    pos = [(i * n) // k for i in range(k)]
    j = 0
    for i, v in enumerate(valu):
        while j < k and pos[j] == i:
            out.append(mf[j]); j += 1
        out.append(v)
    return out + mf[j:]

def compute(a, prof, sc='', hook=lambda x: None):
    a.vmwait(['kv'], 'lgkmcnt(0)')
    a('s_barrier')
    stamp(a, 6, prof)
    order = [0, 8, 1, 2, 3, 4, 5, 6, 7]
    def kread(T):
        k = V_K + 6 * T
        return [f'ds_read_b64 {vr(k,2)}, v{V_KA0} offset:{KB+256*T}', f'ds_read_b64 {vr(k+2,2)}, v{V_KA0} offset:{KB+PL+256*T}',
                f'ds_read_b64 {vr(k+4,2)}, v{V_KA1} offset:{KB+4*PL+256*T}']
    for T in (0, 1, 8, 2, 3):
        for l in kread(T): a(l)
    a(f'''
    s_mov_b32 exec_lo, 0
    v_mov_b32 v{V_Q1}, 0x3f80
    v_mov_b32 v{V_Q1+1}, 0
    s_mov_b32 exec_lo, -1
    s_waitcnt lgkmcnt(6)
    ''')
    S = lambda i: V_S + 16 * i
    for l in qk(0, S(0), '0') + qk(8, S(1), '0'): a(l)
    a('s_waitcnt lgkmcnt(0)')
    for T in (4, 5, 6, 7):
        for l in kread(T): a(l)
    for l in qk(1, S(2), '0'): a(l)
    cn = [f'v_cndmask_b32 v{V_MG+e}, v{S(0)+e}, v{S(1)+e}, {sr(S_MSK+2*e,2)}' for e in range(16)]
    def mx(b, first=False):
        o = []
        for e in range(0, 16, 2):
            o.append(f'v_max_f32 v{V_M}, v{b}, v{b+1}' if first and e == 0 else f'v_max3_f32 v{V_M}, v{b+e}, v{b+e+1}, v{V_M}')
        return o
    for l in cn: a(l)
    a('s_waitcnt lgkmcnt(0)')
    for l in vread(0, 0) + vread(8, 1): a(l)
    for l in spread(mx(V_MG, True), qk(2, S(0), '0')): a(l)
    buf = {1: 2, 2: 0, 3: 1, 4: 2, 5: 0, 6: 1, 7: 2}
    for l in spread(mx(S(2)), qk(3, S(1), '0')): a(l)
    for T in range(2, 8):
        if T + 2 <= 7:
            for l in spread(mx(S(buf[T])), qk(T + 2, S(buf[T+2]), '0')): a(l)
        else:
            if T == 7: a('s_nop 1')
            for l in mx(S(buf[T])): a(l)
    hook('p1end')
    a(f'''
    v_mov_b32 v{V_NM}, v{V_M}
    s_nop 1
    v_permlane32_swap_b32 v{V_NM}, v{V_M}
    s_nop 1
    v_max_f32 v{V_M}, v{V_M}, v{V_NM}
    ''')
    for e in range(16): a(f'v_sub_f32 v{V_NM+e}, 0, v{V_M}')
    NM = vr(V_NM, 16)
    val = [f'v_sub_f32 v{V_MG+e}, v{V_MG+e}, v{V_M}' for e in range(16)] + [f'v_exp_f32 v{V_MG+e}, v{V_MG+e}' for e in range(16)]
    val += [f'v_cvt_pk_bf16_f32 v{V_P+k}, v{V_MG+2*k}, v{V_MG+2*k+1}' for k in range(8)]
    val += [f'v_and_b32 v{V_P+8+k}, v{V_P+k}, v{V_PM+k}' for k in range(8)] + [f'v_xor_b32 v{V_P+k}, v{V_P+k}, v{V_P+8+k}' for k in range(8)]
    for l in val[:2]: a(l)
    for l in spread(val[2:], qk(1, S(1 % 3), NM) + qk(2, S(2 % 3), NM)): a(l)
    pend = pv(0, 0, True) + pv(1, 1)
    extra = []
    for T in range(1, 8):
        b = S(T % 3); ps = (T + 1) & 1
        ex = [f'v_exp_f32 v{b+e}, v{b+e}' for e in range(16)]
        cv = [f'v_cvt_pk_bf16_f32 v{V_P+8*ps+k}, v{b+2*k}, v{b+2*k+1}' for k in range(8)]
        pend[0] = 's_waitcnt lgkmcnt(0)\n' + pend[0]
        pend[-1] += '\n' + '\n'.join(vread(T, ps))
        mf = pend + (qk(T + 2, S((T + 2) % 3), NM) if T + 2 <= 7 else [])
        for l in ex[:2]: a(l)
        if T == 1:
            for l in spread(ex[2:], pend): a(l)
            for l in spread(cv, mf[4:]): a(l)
        else:
            seq = spread(ex[2:] + cv, mf)
            if extra: seq = seq[:2] + spread(seq[2:], extra)
            for l in seq: a(l)
        pend = pv(ps, ps)
        extra = hook(f'T{T}') or []
    a('s_waitcnt lgkmcnt(0)\ns_nop 0')
    for l in pend: a(l)
    a(f's_nop 11\nv_rcp_f32 v{V_M}, v{V_O+12}\ns_nop 0\nv_mul_f32 v{V_M}, v{V_M}, v{V_G}')
    for e in range(12): a(f'v_mul_f32 v{V_O+e}, v{V_O+e}, v{V_M}')
    for k in range(6): a(f'v_cvt_pk_bf16_f32 v{V_P+k}, v{V_O+2*k}, v{V_O+2*k+1}')
    for g in range(3):
        a.vmem(f'buffer_store_dwordx2 {vr(V_P+2*g,2)}, v{V_OA+g}, {sr(SRD_WS,4)}, 0 offen {sc}', 'ost')
    stamp(a, 7, prof)
```

```python
import sys, struct
from base import *
import st1, st3
from st1 import *
NAME = 'gated_mix__sliding_block__swiglu_ffn__prompt_kernel'
SC = 'sc1'
WS_F1, WS_F2, WS_F3 = 0x1510000, 0x1510800, 0x1512800
S_P = 27
V_L16, V_FLG, V_ONE, V_PL, V_L4, V_RA, V_RA2, V_RA3, V_G1 = 244, 245, 246, 247, 248, 249, 250, 251, 242
V_H = 210
Q_MT, Q_N, Q0, Q1, Q2, Q3, Q_A0, Q_A1, Q_WO, Q_WL, Q_RH, Q_RO, Q_R, Q_PR, Q_HO, Q_J, Q_G, Q_O = range(32, 50)
SRD_O = 28
SLOT = 20480; NS = 7
WSR = sr(SRD_WS, 4)
uid = [0]

def spin(a, vaddr, srd_, soff, expect, first_issued=False):
    uid[0] += 1; L = f'spin{uid[0]}'
    a('s_mov_b32 s98, 0')
    if first_issued: a(f's_branch {L}c')
    a(f'''{L}:
    buffer_load_dword v{V_PL}, v{vaddr}, {srd_}, {soff} offen {SC}
    s_waitcnt vmcnt(0)
    {L}c:
    v_cmp_ne_u32 vcc, {expect}, v{V_PL}
    s_add_u32 s98, s98, 1
    s_cbranch_vccz {L}d
    s_cmp_lt_u32 s98, 0x40000
    s_cbranch_scc1 {L}
    {L}d:''')
def flag(a, lane):
    a(f's_mov_b64 exec, {1 << lane}\nbuffer_store_dword v{V_ONE}, v{V_FLG}, {WSR}, 0 offen {SC}\ns_mov_b64 exec, -1')

def s4_setup(a):
    a(f'''
    s_and_b32 s{Q0}, s2, 7
    s_lshr_b32 s{Q1}, s2, 3
    s_lshr_b32 s{Q_MT}, s{Q0}, 1
    s_lshl_b32 s{Q_MT}, s{Q_MT}, 3
    s_and_b32 s{Q2}, s{Q1}, 7
    s_add_u32 s{Q_MT}, s{Q_MT}, s{Q2}
    s_and_b32 s{Q_N}, s{Q0}, 1
    s_lshl_b32 s{Q_N}, s{Q_N}, 2
    s_lshr_b32 s{Q1}, s{Q1}, 3
    s_add_u32 s{Q_N}, s{Q_N}, s{Q1}
    s_lshl_b32 s{Q_RH}, s{Q1}, 1
    s_add_u32 s{Q_RH}, s{Q_RH}, s{Q2}
    s_and_b32 s{Q_RH}, s{Q_RH}, {0 if 'norot4' in OPT else 7}
    s_mul_i32 s{Q_RO}, s{Q_RH}, 5
    s_lshr_b32 s{Q_RO}, s{Q_RO}, 3
    s_mul_i32 s{Q_RH}, s{Q_RH}, 3
    s_lshr_b32 s{Q_RH}, s{Q_RH}, 1
    s_and_b32 s{Q0}, s{S_W}, 3
    s_lshl_b32 s{Q2}, s{Q_MT}, 1
    s_add_u32 s{Q2}, s{Q2}, s{S_P}
    s_lshl_b32 s{Q_G}, s{Q2}, 7
    s_mul_i32 s{Q_A0}, s{Q2}, {2*68}
    s_add_u32 s{Q_A0}, s{Q_A0}, s{Q0}
    s_lshl_b32 s{Q_A0}, s{Q_A0}, 10
    s_add_u32 s{Q_A0}, s{Q_A0}, {WS_A2}
    s_add_u32 s{Q_A1}, s{Q_A0}, {68*1024}
    s_lshl_b32 s{Q2}, s{Q0}, 3
    s_add_u32 s{Q2}, s{Q2}, s{Q_N}
    s_mul_i32 s{Q_WO}, s{Q2}, 5120
    s_add_u32 s{Q_WO}, s{Q_WO}, {WS_W2}
    s_mul_i32 s{Q_WL}, s{Q0}, 5120
    s_xor_b32 s{Q_PR}, s{S_P}, 1
    s_mov_b32 s{Q_J}, s{S_J}
    v_add_u32 v{V_RA}, s{Q_WL}, v{V_L16}
    v_add_u32 v{V_RA2}, {3*SLOT}, v{V_RA}
    v_add_u32 v{V_RA3}, {6*SLOT}, v{V_RA}
    ''')
def rot(r):
    if isinstance(r, str) or r < 12: return f's_add_u32 s{Q_R}, s{Q_RH}, {r}\ns_cmp_ge_u32 s{Q_R}, 12\ns_cselect_b32 s{Q2}, 12, 0\ns_sub_u32 s{Q_R}, s{Q_R}, s{Q2}\n'
    return f's_add_u32 s{Q_R}, s{Q_RO}, {r}\ns_cmp_ge_u32 s{Q_R}, 17\ns_cselect_b32 s{Q2}, 5, 0\ns_sub_u32 s{Q_R}, s{Q_R}, s{Q2}\n'
def issue_w(r):
    g = []
    for f in range(5):
        pre = ''
        if f == 0:
            pre = rot(r)
            if isinstance(r, str): pre += f's_mul_i32 s{Q2}, {r}, {SLOT}\ns_add_u32 m0, s{Q_WL}, s{Q2}\n'
            else: pre += f's_add_u32 m0, s{Q_WL}, {(r%NS)*SLOT}\n'
            pre += f's_mul_i32 s{Q2}, s{Q_R}, {160*1024}\ns_add_u32 s{Q2}, s{Q2}, s{Q_WO}\n'
        if f == 4: pre = f's_add_u32 m0, m0, 4096\ns_add_u32 s{Q2}, s{Q2}, 4096\n'
        g.append((pre + f'buffer_load_dwordx4 v{V_L16}, {WSR}, s{Q2} offen offset:{(f&3)*1024} {SC} lds', f'w{r}'))
    return g
AREG = [210 + 8 * r for r in range(4)] + [26 + 8 * r for r in range(13)]
V4_ACC = 130; V4_F = 170
def issue_a(r):
    g = []
    if r >= 12:
        for t in range(2):
            pre = rot(r) + f's_lshl_b32 s{Q_R}, s{Q_R}, 19\ns_add_u32 s{Q2}, s{Q_R}, s{Q_O}\n' if t == 0 else f's_add_u32 s{Q2}, s{Q2}, {4*16384}\n'
            g.append((pre + f'buffer_load_dwordx4 {vr(AREG[r]+4*t,4)}, v4, {WSR}, s{Q2} offen {SC}', f'a{r}'))
        return g
    for t in range(2):
        pre = rot(r) + f's_lshl_b32 s{Q_R}, s{Q_R}, 12\n' if t == 0 else ''
        g.append((pre + f's_add_u32 s{Q2}, s{Q_R}, s{Q_A0+t}\nbuffer_load_dwordx4 {vr(AREG[r]+4*t,4)}, v{V_L16}, {WSR}, s{Q2} offen {SC}', f'a{r}'))
    return g

def build(prof=False):
    uid[0] = 0
    config(5)
    XB, RB = st1.XBASE, st1.RBASE
    a = Asm(); name = 'k'
    common_entry(a, name)
    stamp(a, 0, prof)
    if 'fix' in OPT: a('s_memrealtime s[100:101]')
    t = V_T
    a(f'''
    s_and_b32 s{S_T0}, s2, 7
    s_lshr_b32 s{S_T1}, s2, 3
    s_and_b32 s{S_MB}, s{S_T0}, 1
    s_lshl_b32 s{S_MB}, s{S_MB}, 3
    s_and_b32 s{S_T2}, s{S_T1}, 7
    s_add_u32 s{S_MB}, s{S_MB}, s{S_T2}
    s_lshr_b32 s{S_J}, s{S_T0}, 1
    s_lshr_b32 s{S_T1}, s{S_T1}, 3
    s_add_u32 s{S_XM}, s{S_T1}, s{S_T2}
    ''')
    if 'rot' in OPT:
        a(f'''s_add_u32 s{S_XM}, s{S_XM}, s{S_T1}
        s_and_b32 s{S_XM}, s{S_XM}, 7
        s_mul_i32 s{S_XM}, s{S_XM}, 5
        s_lshr_b32 s{S_XM}, s{S_XM}, 2
        s_mov_b32 s{S_CW}, s{S_XM}
        s_mov_b32 s{S_CX}, s{S_XM}''')
    else:
        a(f'''s_and_b32 s{S_XM}, s{S_XM}, {0 if 'x0' in OPT else 3 if 'x3' in OPT else 1}
        s_mov_b32 s{S_CW}, 0
        s_mov_b32 s{S_CX}, 0''')
    a(f'''
    s_lshl_b32 s{S_J if 'map2' in OPT else S_T1}, s{S_J if 'map2' in OPT else S_T1}, 2
    s_add_u32 s{S_J}, s{S_J}, s{S_T1}
    s_mul_i32 s{S_T0}, s{S_J}, 5
    s_sub_u32 s{S_T0}, s{S_T0}, 48
    s_cmp_lt_u32 s{S_J}, 12
    s_cselect_b32 s{S_LC0}, s{S_J}, s{S_T0}
    s_mov_b32 s{S_STW0}, 3840
    s_cselect_b32 s{S_STW1}, 3072, s{S_STW0}
    s_and_b32 s{S_T0}, s{S_W}, 3
    s_lshr_b32 s{S_P}, s{S_W}, 2
    v_lshrrev_b32 v{t}, 3, v0
    v_and_b32 v{t+1}, 7, v0
    v_bfe_u32 v{t+2}, v0, 4, 1
    s_and_b32 s{S_T3}, s{S_W}, 1
    s_lshl_b32 s{S_T2}, s{S_T3}, 1
    v_or_b32 v{t+2}, s{S_T2}, v{t+2}
    v_lshlrev_b32 v{t+2}, 1, v{t+2}
    v_xor_b32 v{t+2}, v{t+2}, v{t+1}
    v_lshlrev_b32 v{t+2}, 4, v{t+2}
    s_lshl_b32 s{S_T2}, s{S_T0}, 3
    v_add_u32 v{t+3}, s{S_T2}, v{t}
    v_mad_u32_u24 v{V_OW0}, v{t+3}, s{S_STW0}, v{t+2}
    v_mad_u32_u24 v{V_OW1}, v{t+3}, s{S_STW1}, v{t+2}
    s_lshr_b32 s{S_T2}, s{S_W}, 1
    s_lshl_b32 s{S_T2}, s{S_T2}, 5
    s_add_u32 s{S_T2}, s{S_T2}, s{S_T3}
    v_lshl_add_u32 v{t+3}, v{t}, 1, s{S_T2}
    v_mul_u32_u24 v{t+3}, 1280, v{t+3}
    v_lshrrev_b32 v{t+4}, 4, v0
    v_xor_b32 v{t+4}, v{t+4}, v{t+1}
    v_lshl_add_u32 v{V_OX0}, v{t+4}, 4, v{t+3}
    v_xor_b32 v{V_OX1}, 64, v{V_OX0}
    v_add_u32 v{V_OX1}, {16*1280}, v{V_OX1}
    s_xor_b32 s{S_T2}, s{S_P}, 1
    s_mul_i32 s{S_WDS}, s{S_T2}, {WSLOT}
    s_lshl_b32 s{S_T3}, s{S_T0}, 10
    s_add_u32 s{S_WDS}, s{S_WDS}, s{S_T3}
    s_lshl_b32 s{S_T2}, s{S_T2}, 5
    s_mul_i32 s{S_WEND0}, s{S_T2}, s{S_STW0}
    s_mul_i32 s{S_WEND1}, s{S_T2}, s{S_STW1}
    s_lshl_b32 s{S_STW0}, s{S_STW0}, 6
    s_lshl_b32 s{S_STW1}, s{S_STW1}, 6
    s_mul_i32 s{S_SW0}, s{S_XM}, s{S_STW0}
    s_mul_i32 s{S_SW1}, s{S_XM}, s{S_STW1}
    s_add_u32 s{S_SW0}, s{S_SW0}, s{S_WEND0}
    s_add_u32 s{S_SW1}, s{S_SW1}, s{S_WEND1}
    s_lshl_b32 s{S_SX}, s{S_XM}, 7
    s_lshl_b32 s{S_XDS}, s{S_W}, 11
    s_add_u32 s{S_XDS}, s{S_XDS}, {XB}
    s_mul_i32 s{S_T2}, s{S_MB}, {128*1280}
    s_lshl_b32 s{S_T3}, s{S_LC0}, 7
    s_waitcnt lgkmcnt(0)
    ''')
    srd(a, SRD_X, S_X, 128 * 1280, f's{S_T2}')
    nq = 639 * 3840 + 128; ng = 639 * 3072 + 128
    srd(a, SRD_W, S_WQKV, nq, f's{S_T3}')
    a(f's_cmp_lt_u32 s{S_J}, 12\ns_cbranch_scc1 k_s1g')
    for c in range(1, 5):
        srd(a, SRD_W + 4 * c, SRD_W, nq, 128 * c)
    a(f's_cmp_eq_u32 s{S_J}, 15\ns_cselect_b32 s{SRD_W+14}, 0, s{SRD_W+14}\ns_cselect_b32 s{SRD_W+18}, 0, s{SRD_W+18}')
    sp = 'split' in OPT
    a(f's_branch k_s1h\nk_s1g:\ns_lshl_b32 s{S_T3}, s{S_J}, {7 if sp else 8}')
    srd(a, SRD_W + 4, S_WG, ng, f's{S_T3}')
    srd(a, SRD_W + 8, SRD_W + 4, ng, 1536 if sp else 128)
    srd(a, SRD_W + 12, S_WU, ng, f's{S_T3}')
    srd(a, SRD_W + 16, SRD_W + 12, ng, 1536 if sp else 128)
    a('k_s1h:')
    stamp(a, 1, prof)
    def groups(lbl, g1, g0):
        a(f's_cmp_eq_u32 s{S_P}, 0\ns_cbranch_scc1 {lbl}0')
        for grp in g1:
            for g in grp(a): a(g)
        a(f's_branch {lbl}e\n{lbl}0:')
        for grp in g0:
            for g in grp(a): a(g)
        a(f'{lbl}e:')
    PF = 'pf' in OPT
    PFN = int(PF and 'pf0' not in OPT)
    V_PF, V_PD, S_PO, S_PS = 252, 253, 93, 94
    def pf_setup():
        a(f'''
        s_mov_b64 s[96:97], s[{SRD_X}:{SRD_X+1}]
        s_mov_b32 s98, s{SRD_X+2}
        s_mov_b32 s99, 0x20000''')
        for c in range(5):
            b = SRD_W + 4 * c
            a(f's_cmp_eq_u32 s{S_W}, {c}\ns_cselect_b64 s[96:97], s[{b}:{b+1}], s[96:97]\ns_cselect_b32 s98, s{b+2}, s98')
        a(f'''
        s_cmp_eq_u32 s{S_W}, 0
        s_cselect_b32 s{S_PO}, s{S_STW0}, s{S_STW1}
        s_lshr_b32 s78, s{S_PO}, 6
        s_and_b32 s79, s{S_MB}, 7
        s_lshl_b32 s79, s79, 3
        v_lshl_add_u32 v{t+5}, v{t}, 6, v{t+1}
        v_add_u32 v{t+5}, s79, v{t+5}
        v_mul_u32_u24 v{V_PF}, s78, v{t+5}
        v_cmp_le_u32 vcc, 24, v0
        v_mov_b32 v{t+5}, 0x40000000
        s_cmp_lt_u32 s{S_W}, 5
        v_cndmask_b32 v{V_PF}, v{V_PF}, v{t+5}, vcc
        s_cbranch_scc1 k_pfw
        s_lshr_b32 s79, s2, 6
        s_lshl_b32 s79, s79, 5
        v_add_u32 v{t+5}, s79, v0
        s_sub_u32 s79, s{S_W}, 5
        s_lshl_b32 s79, s79, 7
        v_mov_b32 v{V_PF}, s79
        v_mov_b32 v{t+6}, 1280
        v_mad_u32_u24 v{V_PF}, v{t+5}, v{t+6}, v{V_PF}
        s_mov_b32 s{S_PO}, 128
        k_pfw:
        s_mul_i32 s{S_PS}, s{S_PO}, 3''')
    def pf():
        if PF: a(f's_mov_b32 exec_hi, 0\nbuffer_load_dword v{V_PD}, v{V_PF}, s[96:99], s{S_PO} offen\ns_mov_b32 exec_hi, -1\ns_add_u32 s{S_PO}, s{S_PO}, s{S_PS}')
    if 'pf0' in OPT: pf_setup(); pf()
    groups('k_pa', (dma_w, dma_x), (dma_x, dma_w))
    if PFN: pf_setup(); pf()
    srd(a, SRD_WS, S_WS, WS_SIZE)
    srd(a, SRD_M, S_GW, 1280)
    a(f'''
    v_lshlrev_b32 v{V_L16}, 4, v0
    v_lshlrev_b32 v{V_L4}, 2, v0
    s_mul_i32 s{S_RU}, s2, 3
    s_add_u32 s{S_RU}, s{S_RU}, s{S_W}
    s_cmp_lt_u32 s{S_W}, 3
    s_cselect_b32 s{S_RU}, s{S_RU}, 1000
    s_cmp_ge_u32 s{S_RU}, 680
    s_cbranch_scc1 k_s1r
    s_mul_i32 s78, s{S_RU}, 6554
    s_lshr_b32 s78, s78, 16
    s_mul_i32 s79, s78, 10
    s_sub_u32 s79, s{S_RU}, s79
    s_lshl_b32 s79, s79, 7
    s_lshr_b32 s80, s78, 2
    s_lshl_b32 s80, s80, {6 if sp else 7}
    s_and_b32 s81, s78, 3
    s_lshl_b32 s81, s81, 4
    s_add_u32 s80, s80, s81
    s_sub_u32 s81, s78, 48
    s_lshl_b32 s81, s81, 5
    s_cmp_lt_u32 s78, 48
    s_cselect_b32 s80, s80, s81
    s_mov_b32 s81, {16*1280}
    s_mov_b32 s86, {640*1280}
    s_cselect_b32 s81, {(768 if sp else 64)*1280}, s81
    s_cselect_b32 s84, s{S_WD}, s{S_WO}
    s_cselect_b32 s85, s{S_WD+1}, s{S_WO+1}
    s_cselect_b32 s86, {1536*1280}, s86
    s_mov_b32 s87, 0x20000
    s_mul_i32 s80, s80, 1280
    s_add_u32 s80, s80, s79
    v_mul_u32_u24 v{t+12}, 1280, v{t}
    v_lshl_add_u32 v{t+12}, v{t+1}, 4, v{t+12}
    s_lshl_b32 s79, s{S_W}, 12
    s_add_u32 s79, s79, {RB}
    ''')
    for i in range(4):
        a(f's_add_u32 m0, s79, {i*1024}')
        a([f's_nop 0', f's_add_u32 s82, s80, {8*1280}', 's_add_u32 s80, s80, s81', f's_add_u32 s82, s80, {8*1280}'][i])
        a(f'buffer_load_dwordx4 v{t+12}, s[84:87], s{82 if i & 1 else 80} offen lds')
    gx, gw = t + 16, t + 22
    a(f'''k_s1r:
    s_lshl_b32 s{S_T2}, s{S_J}, 3
    s_add_u32 s{S_T2}, s{S_T2}, s{S_W}
    s_mul_i32 s{S_T3}, s{S_T2}, 1280
    buffer_load_dwordx4 {vr(gx,4)}, v{V_L16}, {sr(SRD_X,4)}, s{S_T3} offen
    buffer_load_dword v{gx+4}, v{V_L4}, {sr(SRD_X,4)}, s{S_T3} offen offset:1024
    buffer_load_dwordx4 {vr(gw,4)}, v{V_L16}, {sr(SRD_M,4)}, 0 offen
    buffer_load_dword v{gw+4}, v{V_L4}, {sr(SRD_M,4)}, 0 offen offset:1024
    s_lshl_b32 s78, s{S_MB}, 1
    s_add_u32 s78, s78, s{S_P}
    s_lshl_b32 s78, s78, 4
    s_add_u32 s78, s78, s{S_J}
    s_lshl_b32 s78, s78, 2
    s_and_b32 s79, s{S_W}, 3
    s_add_u32 s78, s78, s79
    s_lshl_b32 s78, s78, 2
    s_add_u32 s78, s78, {WS_F2}
    v_mov_b32 v{V_FLG}, s78
    s_lshr_b32 s78, s2, 5
    s_lshl_b32 s78, s78, 3
    s_add_u32 s78, s78, s{S_W}
    s_lshl_b32 s78, s78, 5
    s_and_b32 s79, s2, 31
    s_add_u32 s78, s78, s79
    s_lshl_b32 s78, s78, 2
    s_add_u32 s78, s78, {WS_F3}
    v_writelane_b32 v{V_FLG}, s78, 1
    s_lshl_b32 s78, s{S_MB}, 5
    s_add_u32 s78, s78, s{S_J}
    s_lshl_b32 s78, s78, 2
    s_add_u32 s78, s78, {WS_F1}
    v_writelane_b32 v{V_FLG}, s78, 2
    v_mov_b32 v{V_ONE}, 1
    ''')
    groups('k_pb', (dma_w, dma_x, dma_w), (dma_x, dma_w, dma_x))
    srd(a, SRD_M, S_DBG, 256)
    a(f'''
    v_lshrrev_b32 v{t+12}, 4, v0
    v_bfe_u32 v{t+13}, v0, 2, 2
    v_and_b32 v{t+14}, 3, v0
    v_lshlrev_b32 v{V_WB}, 10, v{t+12}
    v_lshl_add_u32 v{V_WB}, v{t+13}, 7, v{V_WB}
    v_lshl_add_u32 v{V_WB}, v{t+14}, 3, v{V_WB}
    v_bfe_u32 v{t+14}, v0, 3, 2
    s_and_b32 s{S_T0}, s{S_W}, 3
    v_xor_b32 v{t+14}, s{S_T0}, v{t+14}
    v_lshl_add_u32 v{V_WB}, v{t+14}, 5, v{V_WB}
    v_and_b32 v{t+13}, 15, v0
    v_bfe_u32 v{t+14}, v0, 1, 3
    v_xor_b32 v{t+14}, v{t+14}, v{t+12}
    v_lshlrev_b32 v{t+14}, 4, v{t+14}
    v_lshl_add_u32 v{t+14}, v{t+13}, 7, v{t+14}
    s_lshl_b32 s{S_T0}, s{S_P}, 13
    v_add_u32 v{V_XB0}, s{S_T0}, v{t+14}
    v_xor_b32 v{V_XB1}, 64, v{V_XB0}
    s_mov_b32 s{S_WRS}, 0
    s_mov_b32 s{S_XRS}, {XB}
    v_mov_b32 v{V_WA}, v{V_WB}
    v_add_u32 v{V_XA}, s{S_XRS}, v{V_XB0}
    s_mov_b32 s{S_CNT}, 0
    ''')
    for i in range(80): a(f'v_mov_b32 v{V_ACC+i}, 0')
    def step(par, n, dma):
        a(f's_waitcnt lgkmcnt(0)' + (f' vmcnt({n})' if n is not None else '') + '\ns_barrier')
        mf = [f'v_mfma_f32_16x16x32_bf16 {vr(acc(c,tt),4)}, {vr(wfr(par,c),4)}, {vr(xfr(par,tt),4)}, {vr(acc(c,tt),4)}' for c in range(5) for tt in range(4)]
        rd = reads(1 - par)
        slots = [[] for _ in range(20)]
        for i in range(14): slots[i].append(rd[i])
        slots[14].append(next_addr(par))
        pos = {6: [1, 5, 9, 13, 16, 17], 3: [3, 11, 12], 0: []}[len(dma)]
        for p_, d_ in zip(pos, dma): slots[p_].append(d_)
        for m_, sl in zip(mf, slots):
            a(m_)
            for l in sl: a(l)
    w2dyn = [s for s, _ in issue_w(f's{Q_PR}')] + [f's_add_u32 s{Q_PR}, s{Q_PR}, 2']
    for P in (1, 0):
        if P == 1: a(f's_cmp_eq_u32 s{S_P}, 0\ns_cbranch_scc1 k_l0pre')
        else: a('k_l0pre:')
        a(f's_waitcnt vmcnt({(14 if P == 0 else 12) + 4 + PFN})\ns_barrier')
        stamp(a, 2, prof)
        for g in reads(0): a(g)
        a(next_addr(1))
        pf()
        a(f'k_l{P}:')
        for par in range(2):
            n = {(0, 0): 9, (0, 1): 12, (1, 1): 7, (1, 0): None}[(P, par)]
            step(par, n, dma_w(a) if par == P else dma_x(a))
            if par == 0: a(f's_cmp_eq_u32 s{S_CNT}, 7\ns_cbranch_scc1 k_tail')
        a(f's_add_u32 s{S_CNT}, s{S_CNT}, 1\ns_bitcmp1_b32 {0b1001010}, s{S_CNT}\ns_cbranch_scc0 k_l{P}')
        if P == 1: a('s_branch k_side')
    a(f'k_side:\ns_cmp_eq_u32 s{S_CNT}, 1\ns_cbranch_scc0 k_side2')
    g = t + 11
    pf()
    a(f'v_mov_b32 v{g}, 0')
    for i in range(5):
        a(f'''v_lshlrev_b32 v{t+12}, 16, v{gx+i}
        v_lshlrev_b32 v{t+13}, 16, v{gw+i}
        v_and_b32 v{t+14}, 0xffff0000, v{gx+i}
        v_and_b32 v{t+15}, 0xffff0000, v{gw+i}
        v_fmac_f32 v{g}, v{t+12}, v{t+13}
        v_fmac_f32 v{g}, v{t+14}, v{t+15}''')
    for dpp in ('row_shr:1', 'row_shr:2', 'row_shr:4', 'row_shr:8', 'row_bcast:15 row_mask:0xa', 'row_bcast:31 row_mask:0xc'):
        a(f's_nop 1\nv_add_f32_dpp v{g}, v{g}, v{g} {dpp}' + (' bound_ctrl:0' if 'shr' in dpp else ''))
    e = t + 16
    a(f'''
    v_mul_f32 v{g}, {hex(f2u(-LOG2E))}, v{g}
    v_exp_f32 v{g}, v{g}
    s_lshl_b32 s78, s{S_MB}, 4
    s_add_u32 s78, s78, s{S_J}
    v_add_f32 v{g}, 1.0, v{g}
    v_rcp_f32 v{g}, v{g}
    s_lshl_b32 s78, s78, 5
    s_add_u32 s78, s78, s{S_W}
    s_lshl_b32 s78, s78, 2
    s_add_u32 s78, s78, {WS_G - 252}
    s_mov_b32 exec_lo, 0
    s_brev_b32 exec_hi, 1
    buffer_store_dword v{g}, v{V_L4}, {WSR}, s78 offen {SC}
    s_mov_b64 exec, -1
    s_cmp_eq_u32 s{S_W}, 3
    s_cselect_b32 s78, s2, 100
    s_cmp_lt_u32 s78, 18
    s_cbranch_scc0 k_noclr
    s_lshl_b32 s78, s78, 10
    s_add_u32 s78, s78, {WS_F1}
    v_mov_b32 v{e}, 0
    v_mov_b32 v{e+1}, 0
    v_mov_b32 v{e+2}, 0
    v_mov_b32 v{e+3}, 0
    buffer_store_dwordx4 {vr(e,4)}, v{V_L16}, {WSR}, s78 offen {SC}
    k_noclr:
    s_cmp_ge_u32 s{S_RU}, 680
    s_cbranch_scc1 k_back
    v_lshrrev_b32 v{e}, 2, v0
    v_lshlrev_b32 v{e}, 7, v{e}
    v_and_b32 v{e+1}, 3, v0
    v_lshl_add_u32 v{e}, v{e+1}, 3, v{e}
    s_lshl_b32 s79, s{S_W}, 12
    s_add_u32 s79, s79, {RB}
    v_add_u32 v{e}, s79, v{e}
    s_lshl_b32 s79, s{S_RU}, 12
    s_add_u32 s79, s79, {WS_W2}
    ''')
    for uu in range(4):
        for h in range(2):
            a(f'ds_read_b64_tr_b16 {vr(e+4+4*uu+2*h,2)}, v{e} offset:{h*2048+uu*32}')
    a('s_waitcnt lgkmcnt(0)')
    for uu in range(4):
        a(f'buffer_store_dwordx4 {vr(e+4+4*uu,4)}, v{V_L16}, {WSR}, s79 offen offset:{1024*uu} {SC}')
    a(f'''s_branch k_back
    k_side2:
    s_cmp_eq_u32 s{S_CNT}, 3
    s_cbranch_scc0 k_side3''')
    if 'touch' in OPT:
        srd(a, 84, S_OUT, 2048 * 1280)
        a(f'''s_cmp_eq_u32 s{S_W}, 3
        s_cbranch_scc0 k_notouch
        v_lshlrev_b32 v{e}, 19, v0
        buffer_load_dword v{e+1}, v{e}, {WSR}, 0 offen {SC}
        buffer_load_dword v{e+2}, v{e}, s[84:87], 0 offen {SC}
        k_notouch:''')
    a(f'''
    s_cmp_eq_u32 s{S_W}, 0
    s_cbranch_scc0 k_back
    s_mov_b64 exec, 1
    buffer_store_byte v{V_ONE}, v{V_L4}, {sr(SRD_M,4)}, s2 offen {SC}
    s_mov_b64 exec, -1
    s_branch k_back
    k_side3:
    buffer_load_dword v{V_PL}, v{V_L4}, {sr(SRD_M,4)}, 0 offen {SC}
    k_back:
    s_cmp_eq_u32 s{S_P}, 0
    s_cbranch_scc1 k_l0
    s_branch k_l1
    k_tail:''')
    s4_setup(a)
    a('s_waitcnt vmcnt(9)')
    spin(a, V_L4, sr(SRD_M, 4), 0, '0x01010101', True)
    a(f's_cmp_eq_u32 s{S_P}, 0\ns_cbranch_scc1 k_todd0\ns_branch k_todd1')
    for P in (1, 0):
        a(f'k_teven{P}:')
        step(0, 5 if P == 0 else None, w2dyn if P == 0 else [])
        a(f'k_todd{P}:')
        step(1, 10 if P == 0 else 5, w2dyn if P == 1 else [])
        a(f's_add_u32 s{S_CNT}, s{S_CNT}, 1\ns_cmp_lt_u32 s{S_CNT}, 10\ns_cbranch_scc1 k_teven{P}')
        if P == 1: a('s_branch k_s1e')
    a('k_s1e:')
    stamp(a, 3, prof)
    u = V_T + 16
    a(f'''
    s_and_b32 s{S_T0}, s{S_W}, 3
    s_lshl_b32 s{S_T2}, s{S_LC0}, 2
    s_add_u32 s{S_T2}, s{S_T2}, s{S_T0}
    s_lshl_b32 s{S_T2}, s{S_T2}, 16
    s_lshl_b32 s{S_T3}, s{S_MB}, 10
    s_add_u32 s{S_T2}, s{S_T2}, s{S_T3}
    s_lshl_b32 s{S_T3}, s{S_P}, 9
    s_add_u32 s{S_T2}, s{S_T2}, s{S_T3}
    v_lshrrev_b32 v{u}, 4, v0
    v_lshlrev_b32 v{u}, 14, v{u}
    v_and_b32 v{u+1}, 15, v0
    v_lshl_add_u32 v{u}, v{u+1}, 4, v{u}
    s_cmp_lt_u32 s{S_LC0}, 10
    s_cselect_b32 s{S_T3}, {hex(f2u(20 ** -0.5 * LOG2E))}, 1.0
    ''')
    def qkv_tile(c, scale):
        for tp in range(2):
            d = u + 4 + 4 * tp + 8 * (c & 1)
            for tt in range(2):
                b = acc(c, 2 * tp + tt)
                if scale:
                    for r in range(4): a(f'v_mul_f32 v{b+r}, s{S_T3}, v{b+r}')
                a(f'v_cvt_pk_bf16_f32 v{d+2*tt}, v{b}, v{b+1}\nv_cvt_pk_bf16_f32 v{d+2*tt+1}, v{b+2}, v{b+3}')
            a(f'buffer_store_dwordx4 {vr(d,4)}, v{u}, {WSR}, s{S_T2} offen offset:{256*tp} {SC}')
    qkv_tile(0, True)
    a(f's_waitcnt lgkmcnt(0)\ns_cmp_lt_u32 s{S_J}, 12\ns_cbranch_scc1 k_eg')
    for c in range(1, 5):
        if c == 3: a(f's_cmp_eq_u32 s{S_J}, 15\ns_cbranch_scc1 k_ef')
        a(f's_add_u32 s{S_T2}, s{S_T2}, {16*16384}')
        qkv_tile(c, False)
    a(f'''s_branch k_ef
    k_eg:
    s_mov_b32 s{S_T3}, {hex(f2u(-LOG2E))}
    ''')
    e = V_FR
    for tt in range(4):
        idx = [(c, r) for c in range(2) for r in range(4)]
        for k, (c, r) in enumerate(idx): a(f'v_mul_f32 v{e+k}, s{S_T3}, v{acc(1+c,tt)+r}')
        for k in range(8): a(f'v_exp_f32 v{e+k}, v{e+k}')
        for k, (c, r) in enumerate(idx):
            a(f'v_mul_f32 v{acc(1+c,tt)+r}, v{acc(1+c,tt)+r}, v{acc(3+c,tt)+r}\nv_add_f32 v{e+k}, 1.0, v{e+k}')
        for k in range(8): a(f'v_rcp_f32 v{e+k}, v{e+k}')
        a('s_nop 0')
        for k, (c, r) in enumerate(idx): a(f'v_mul_f32 v{e+k}, v{e+k}, v{acc(1+c,tt)+r}')
        for k in range(4): a(f'v_cvt_pk_bf16_f32 v{V_H+4*tt+k}, v{e+2*k}, v{e+2*k+1}')
    a(f'''k_ef:
    s_waitcnt vmcnt(0)
    s_barrier
    s_cmp_eq_u32 s{S_W}, 0
    s_cbranch_scc0 k_f1''')
    flag(a, 2)
    a(f'''k_f1:
    s_lshl_b32 s{Q_HO}, s{S_MB}, 1
    s_add_u32 s{Q_HO}, s{Q_HO}, s{S_P}
    s_mul_i32 s{Q_HO}, s{Q_HO}, {4*68}
    s_lshl_b32 s{S_T3}, s{S_J}, 2
    s_add_u32 s{Q_HO}, s{Q_HO}, s{S_T3}
    s_add_u32 s{Q_HO}, s{Q_HO}, s{S_T0}
    s_lshl_b32 s{Q_HO}, s{Q_HO}, 10
    s_add_u32 s{Q_HO}, s{Q_HO}, {WS_A2}
    ''')
    def hstores():
        for tt in range(4):
            a(f'buffer_store_dwordx4 {vr(V_H+4*tt,4)}, v{V_L16}, {WSR}, s{Q_HO} offen {SC}')
            if tt < 3: a(f's_add_u32 s{Q_HO}, s{Q_HO}, {68*1024}')
    a(f's_cmp_eq_u32 s{S_W}, 1\ns_cselect_b32 s98, 12, s{Q_J}\ns_cselect_b32 s{Q_J}, s{Q_J}, 12\ns_cmp_lt_u32 s98, 12\ns_cbranch_scc0 k_nh0')
    hstores()
    a('k_nh0:')
    stamp(a, 4, prof)
    st3.LB = 5 * SLOT
    st3.ids(a)
    st3.setup(a)
    st3.loads_pre(a)
    p = 130
    a(f'''
    s_cmp_eq_u32 s{S_W}, 1
    s_cbranch_scc0 k_p1
    s_lshl_b32 s98, s{st3.S_QB}, 1
    s_sub_u32 s98, s98, 2
    v_lshrrev_b32 v{p}, 4, v0
    v_add_u32 v{p}, s98, v{p}
    v_max_i32 v{p}, 0, v{p}
    v_and_b32 v{p+1}, 15, v0
    v_lshlrev_b32 v{p+1}, 2, v{p+1}
    v_lshl_add_u32 v{p}, v{p}, 7, v{p+1}
    s_mov_b32 s99, {WS_F1}
    ''')
    spin(a, p, WSR, 's99', 1)
    a('k_p1:\ns_barrier')
    stamp(a, 5, prof)
    st3.loads(a, SC)
    a(f's_cmp_lt_u32 s{Q_J}, 12\ns_cbranch_scc0 k_nh')
    hstores()
    a('k_nh:\ns_waitcnt vmcnt(0)')
    flag(a, 0)
    a.vm = []
    TC = 2 if 'tc2' in OPT else 1 if 'tc1' in OPT else 3
    pre = {1: {1: [0, 1], 2: [2, 3], 3: [4, 5], 4: [6, 7], 5: [8, 9], 6: [10]},
           2: {2: [0, 1, 2], 3: [3, 4], 4: [5, 6], 5: [7, 8], 6: [9, 10]},
           3: {3: [0, 1, 2], 4: [3, 4, 5], 5: [6, 7, 8], 6: [9, 10]}}[TC]
    def hook(x):
        if x == (f'T{TC-1}' if TC > 1 else 'p1end'):
            a(f's_lshl_b32 s99, s{Q_MT}, 8\ns_add_u32 s99, s99, {WS_F2}')
            a(f'buffer_load_dword v{V_PL}, v{V_L4}, {WSR}, s99 offen {SC}')
        if x == f'T{TC}':
            a('s_waitcnt vmcnt(0)')
            spin(a, V_L4, WSR, 's99', 1, True)
        if x[0] == 'T':
            g_ = []
            for r in pre.get(int(x[1:]), []): g_ += issue_a(r)
            for s_, tag in g_: a.vm.append(tag)
            return [s_ for s_, tag in g_]
    st3.compute(a, prof, SC, hook)
    srd(a, SRD_O, S_OUT, 2048 * 1280)
    a4 = lambda f, t_: V4_ACC + (f * 2 + t_) * 4
    a(f'''v_and_b32 v2, 15, v0
    v_lshrrev_b32 v3, 4, v0
    v_lshlrev_b32 v3, 14, v3
    v_lshl_add_u32 v4, v2, 4, v3
    v_and_b32 v3, 3, v0
    v_lshlrev_b32 v3, 3, v3
    v_lshrrev_b32 v2, 2, v2
    v_lshl_add_u32 v2, v2, 7, v3
    v_and_b32 v3, 31, v0
    v_lshlrev_b32 v3, 2, v3
    s_add_u32 s99, s{Q_G}, {WS_F3}
    s_lshl_b32 s{Q_O}, s{Q0}, 16
    s_add_u32 s{Q_O}, s{Q_O}, s{Q_G}
    s_lshl_b32 s{Q_O}, s{Q_O}, 1
    s_add_u32 s{Q_O}, s{Q_O}, {WS_O - (12 << 19)}
    s_lshl_b32 s{Q_G}, s{Q_G}, 2
    s_add_u32 s{Q_G}, s{Q_G}, {WS_G}''')
    a.vmem(f'buffer_load_dwordx2 {vr(V_G1,2)}, v2, {WSR}, s{Q_G} offen {SC}', 'g')
    a(f's_barrier\ns_cmp_eq_u32 s{S_P}, 0\ns_cbranch_scc1 k_4p0')
    vm0 = list(a.vm)
    RF = 3 if 'rf3' in OPT else 1 if 'rf1' in OPT else 2
    for P in (1, 0):
        if P == 0: a('k_4p0:')
        a.vm = list(vm0)
        def rds(r):
            sl = r % NS
            return [f'ds_read_b128 {vr(V4_F+20*(r&1)+4*f,4)}, v{[V_RA,V_RA2,V_RA3][sl//3]} offset:{(sl%3)*SLOT+f*1024}' for f in range(5)]
        for l in rds(0): a(l)
        for s, tag in issue_w(5 + P): a.vmem(s, tag)
        asched = {0: [11], 9: [12, 13], 10: [14, 15], 11: [16]}
        stamp(a, 8, prof)
        for r in range(17):
            a.vmwait([f'w{r+1}', f'a{r}'] + (['f3'] if r == 9 else []) + (['ost'] if r == RF else []), 'lgkmcnt(0)')
            if r == RF: flag(a, 1); a.vm.append('fl')
            if r < 16: a('s_barrier')
            if r in (4, 9, 12): stamp(a, {4: 11, 9: 12, 12: 13}[r], prof)
            if r == 9: spin(a, 3, WSR, 's99', 1, True)
            if r == 12:
                a(f'v_sub_f32 v{V_G1}, 1.0, v{V_G1}\nv_sub_f32 v{V_G1+1}, 1.0, v{V_G1+1}\ns_nop 4')
                for f in range(5):
                    for t_ in range(2):
                        for i in range(4): a(f'v_mul_f32 v{a4(f,t_)+i}, v{V_G1+t_}, v{a4(f,t_)+i}')
                a('s_nop 0')
            if r >= 12: a(f'v_swap_b32 v{AREG[r]+2}, v{AREG[r]+4}\nv_swap_b32 v{AREG[r]+3}, v{AREG[r]+5}\ns_nop 1')
            mf = [f'v_mfma_f32_16x16x32_bf16 {vr(a4(f,t_),4)}, {vr(V4_F+20*(r&1)+4*f,4)}, {vr(AREG[r]+4*t_,4)}, ' + ('0' if r == 0 else vr(a4(f, t_), 4)) for f in range(5) for t_ in range(2)]
            iss = []
            if r == 7: iss.append((f'buffer_load_dword v{V_PL}, v3, {WSR}, s99 offen {SC}', 'f3'))
            for rr in asched.get(r, []): iss += issue_a(rr)
            if r + NS <= 16 and (r + NS + 1) % 2 == P: iss += issue_w(r + NS)
            for s, tag in iss: a.vm.append(tag)
            fill = (rds(r + 1) if r < 16 else []) + [s for s, tag in iss]
            for l in interleave(mf, fill): a(l)
        if P == 1: a('s_branch k_4e')
    a('k_4e:')
    stamp(a, 9, prof)
    t = 2
    a(f'''
    v_and_b32 v{t}, 15, v0
    v_mul_u32_u24 v{t}, 336, v{t}
    v_lshrrev_b32 v{t+1}, 4, v0
    v_lshl_add_u32 v{t}, v{t+1}, 4, v{t}
    s_mul_i32 s{Q2}, s{S_W}, 10752
    v_add_u32 v{t}, s{Q2}, v{t}
    v_mul_u32_u24 v{t+1}, 26, v0
    v_lshrrev_b32 v{t+1}, 8, v{t+1}
    v_mul_u32_u24 v{t+2}, 10, v{t+1}
    v_sub_u32 v{t+2}, v0, v{t+2}
    v_and_b32 v{t+3}, 1, v{t+1}
    v_lshlrev_b32 v{t+3}, 4, v{t+3}
    v_bfe_u32 v{t+4}, v{t+1}, 1, 1
    s_lshl_b32 s{Q2}, s{Q0}, 2
    v_add3_u32 v{t+3}, v{t+3}, v{t+4}, s{Q2}
    v_mul_u32_u24 v{t+3}, 336, v{t+3}
    v_lshl_add_u32 v{t+3}, v{t+2}, 5, v{t+3}
    s_mul_i32 s{Q2}, s{S_P}, {4*10752}
    v_add_u32 v{t+3}, s{Q2}, v{t+3}
    v_mul_u32_u24 v{t+1}, 1280, v{t+1}
    v_lshl_add_u32 v{t+1}, v{t+2}, 4, v{t+1}
    s_lshl_b32 s{Q2}, s{Q_MT}, 3
    s_add_u32 s{Q2}, s{Q2}, s{S_W}
    s_mul_i32 s{Q2}, s{Q2}, {8*1280}
    s_mul_i32 s{Q3}, s{Q_N}, 160
    s_add_u32 s{Q2}, s{Q2}, s{Q3}
    s_add_u32 s{Q3}, s{Q2}, {4*1280}
    s_barrier
    ''')
    for f in range(5):
        for tt in range(2):
            a(f'ds_write_b128 v{t}, {vr(a4(f,tt),4)} offset:{tt*16*336+f*64}')
    a('s_waitcnt lgkmcnt(0)\ns_barrier\ns_mov_b32 exec_hi, 0xff')
    R = 26
    for ps in range(2):
        for kq in range(4):
            for h in range(2):
                if ps == 1 and kq == 3 and h == 1: a('s_waitcnt lgkmcnt(14)')
                a(f'ds_read_b128 {vr(R+32*ps+8*kq+4*h,4)}, v{t+3} offset:{kq*10752+ps*2*336+h*16}')
    for ps in range(2):
        b = R + 32 * ps
        a(f's_waitcnt lgkmcnt({8 if ps == 0 else 0})')
        for i in range(8): a(f'v_add_f32 v{b+i}, v{b+i}, v{b+8+i}\nv_add_f32 v{b+16+i}, v{b+16+i}, v{b+24+i}')
        for i in range(8): a(f'v_add_f32 v{b+i}, v{b+i}, v{b+16+i}')
        for k in range(4): a(f'v_cvt_pk_bf16_f32 v{b+8+k}, v{b+2*k}, v{b+2*k+1}')
        a(f'buffer_store_dwordx4 {vr(b+8,4)}, v{t+1}, {sr(SRD_O,4)}, s{Q2 if ps == 0 else Q3} offen' + (' sc1' if 'osc' in OPT else ' nt' if 'ont' in OPT else ''))
    a('s_mov_b64 exec, -1')
    stamp(a, 10, prof)
    stamp_flush(a, prof, 0)
    if 'fix' in OPT: a('k_fix:\ns_memrealtime s[98:99]\ns_waitcnt lgkmcnt(0)\ns_sub_u32 s98, s98, s100\ns_cmp_lt_u32 s98, 6000\ns_cbranch_scc1 k_fix')
    a('k_end:\ns_endpgm')
    ref = open('gated_mix__sliding_block__swiglu_ffn__prompt.s.ref').read()
    hdr = ref.split('; Override')[0]
    s = hdr + '; @launch grid=(256,1,1) block=(512,1,1) lds=163840\n.amdgcn_target "amdgcn-amd-amdhsa--gfx950"\n.text\n'
    s += f'.globl {NAME}\n.p2align 8\n.type {NAME},@function\n{NAME}:\n' + a.text()
    s += ref[ref.index('.section .rodata'):]
    return s
if __name__ == '__main__':
    open('gated_mix__sliding_block__swiglu_ffn__prompt.s', 'w').write(build())
    open('prof.s', 'w').write(build(True))
    for o in sys.argv[1:]:
        OPT.clear(); OPT.update(o.split('+'))
        open(f'prof_{o}.s', 'w').write(build(True))
        open(f'v_{o}.s', 'w').write(build(False))
```

```python
from base import *
PL = 4128; KB = 0; VB = 6 * PL; LB = 0
S_H, S_QB, T0, T1, T2, T3 = 60, 61, 62, 63, 64, 65
S_MSK = 66
V_Q0, V_Q1 = 4, 8
V_G, V_KA0, V_KA1, V_VA, V_M = 1, 2, 3, 12, 13
V_PM = 14
V_OA = 22
V_K = 26
V_S = 82
V_MG = 130
V_NM = 146
V_O = 162
V_V = 178
V_P = 194
MF = 'v_mfma_f32_32x32x16_bf16'

def ids(a):
    a(f's_and_b32 s{S_H}, s2, 31\ns_lshr_b32 s{S_QB}, s2, 5')

def setup(a):
    t = V_S
    a(f'''
    s_lshl_b32 s{T0}, s{S_W}, 9
    s_add_u32 s{T0}, s{T0}, {LB}
    v_lshl_add_u32 v{t}, v0, 3, s{T0}
    s_lshr_b32 s{T1}, s{S_W}, 2
    s_or_b32 s{T1}, s{T1}, s{S_QB}
    s_cmp_eq_u32 s{T1}, 0
    s_cselect_b32 s{T1}, 0xf149, 0
    v_mov_b32 v{t+2}, s{T1}
    v_mov_b32 v{t+3}, 0
    v_mov_b32 v{t+4}, 0x3f803f80
    v_mov_b32 v{t+5}, 0x3f803f80
    ds_write_b64 v{t}, v[{t+2}:{t+3}] offset:{KB+5*PL}
    ds_write_b64 v{t}, v[{t+4}:{t+5}] offset:{VB+5*PL}
    ''')
    a(f'''
    v_and_b32 v{t}, 31, v0
    v_lshrrev_b32 v{t+1}, 5, v0
    s_lshl_b32 s{T0}, s{S_W}, 8
    s_add_u32 s{T0}, s{T0}, {LB}
    v_lshl_add_u32 v{t+2}, v{t}, 3, s{T0}
    v_mul_u32_u24 v{t+3}, {PL}, v{t+1}
    v_add_u32 v{V_KA1}, v{t+2}, v{t+3}
    v_add_u32 v{V_KA0}, v{V_KA1}, v{t+3}
    v_and_b32 v{t+3}, 3, v0
    v_min_u32 v{t+4}, 1, v{t+3}
    v_add_u32 v{t+4}, 4, v{t+4}
    v_and_b32 v{t+5}, 16, v0
    v_cmp_eq_u32 vcc, 0, v{t+5}
    v_bfe_u32 v{t+5}, v0, 2, 2
    v_lshl_add_u32 v{t+5}, v{t+1}, 2, v{t+5}
    v_cndmask_b32 v{t+3}, v{t+4}, v{t+3}, vcc
    v_mul_u32_u24 v{t+3}, {PL}, v{t+3}
    v_lshl_add_u32 v{t+3}, v{t+5}, 3, v{t+3}
    v_add_u32 v{V_VA}, s{T0}, v{t+3}
    ''')
    for e in range(16):
        g, r = e >> 2, e & 3
        for hf in range(2):
            i = 8 * g + 4 * hf + r
            a(f's_mov_b32 s{S_MSK+2*e+hf}, {hex((0xffffffff << i) & 0xffffffff)}')
    a(f'v_mov_b32 v{t+4}, 0xffff')
    for k in range(8):
        a(f'v_cndmask_b32 v{V_PM+k}, 0, v{t+4}, {sr(S_MSK+4*k,2)}\nv_cndmask_b32 v{V_PM+k}, v{V_PM+k}, -1, {sr(S_MSK+4*k+2,2)}')
    a(f'''
    s_lshl_b32 s{T0}, s{S_QB}, 3
    s_add_u32 s{T0}, s{T0}, s{S_W}
    s_lshl_b32 s{T0}, s{T0}, 8
    s_mul_i32 s{T1}, s{S_H}, {5*PS}
    s_add_u32 s{T0}, s{T0}, s{T1}
    s_add_u32 s{T0}, s{T0}, {WS_O}
    v_lshl_add_u32 v{t+2}, v{t}, 3, s{T0}
    v_mul_u32_u24 v{V_OA}, {PS}, v{t+1}
    v_add_u32 v{V_OA}, v{V_OA}, v{t+2}
    v_add_u32 v{V_OA+1}, {2*PS}, v{V_OA}
    v_lshl_add_u32 v{V_OA+2}, v{t+1}, 30, v{t+2}
    v_add_u32 v{V_OA+2}, {4*PS}, v{V_OA+2}
    v_mov_b32 v{V_K+54}, 0
    v_mov_b32 v{V_K+55}, 0
    v_mov_b32 v{V_Q1+2}, 0
    v_mov_b32 v{V_Q1+3}, 0
    ''')

U0, U1, U2, U3, U4, U5, U6, U7 = 4, 5, 6, 7, 8, 9, 10, 11
def loads_pre(a):
    t = V_S + 16
    a(f'''
    s_and_b32 s{T0}, s{S_W}, 3
    s_lshr_b32 s{T1}, s{S_W}, 2
    s_lshl_b32 s{U1}, s{S_QB}, 1
    s_add_u32 s{U1}, s{U1}, s{T0}
    s_sub_u32 s{U1}, s{U1}, 2
    s_cselect_b32 s{U1}, s{T0}, s{U1}
    s_lshl_b32 s{U1}, s{U1}, 10
    s_add_u32 s{T3}, s{S_H}, 32
    s_mul_i32 s{T3}, s{T3}, 5
    s_mul_i32 s{T2}, s{T1}, 3
    s_add_u32 s{T3}, s{T3}, s{T2}
    s_mul_i32 s{T3}, s{T3}, {PS}
    s_add_u32 s{U1}, s{U1}, s{T3}
    s_mul_i32 s{T2}, s{T2}, {PL}
    s_lshl_b32 s{T0}, s{T0}, 10
    s_add_u32 s{U0}, s{T0}, s{T2}
    s_mul_i32 s{U6}, s{T1}, {157*PS}
    s_mul_i32 s{U7}, s{T1}, {VB - 3*PL}
    v_lshlrev_b32 v{t}, 4, v0
    v_and_b32 v{t+1}, 31, v0
    v_lshrrev_b32 v{t+2}, 5, v0
    v_lshlrev_b32 v{t+3}, 3, v{t+1}
    v_mul_u32_u24 v{t+2}, {2*PS}, v{t+2}
    v_add_u32 v{t+2}, v{t+2}, v{t+3}
    v_lshrrev_b32 v{t+1}, 3, v{t+1}
    v_lshlrev_b32 v{t+1}, 5, v{t+1}
    v_and_or_b32 v{t+1}, v0, 7, v{t+1}
    v_lshlrev_b32 v{t+1}, 2, v{t+1}
    s_lshl_b32 s{T0}, s{S_QB}, 3
    s_add_u32 s{T0}, s{T0}, s{S_W}
    s_lshl_b32 s{T1}, s{T0}, 8
    s_mul_i32 s{T2}, s{S_H}, {5*PS}
    s_add_u32 s{U2}, s{T1}, s{T2}
    s_add_u32 s{U3}, s{U2}, {PS}
    s_add_u32 s{U4}, s{U2}, {4*PS}
    s_lshl_b32 s{T0}, s{T0}, 9
    s_add_u32 s{U5}, s{T0}, {WS_G}
    ''')
def loads(a, sc=''):
    t = V_S + 16
    def dma(lds, glob, third, tag):
        a(f's_add_u32 m0, s{U0}, {LB+lds}\ns_add_u32 s{T0}, s{U1}, {glob}')
        if third: a(f's_add_u32 m0, m0, s{U7}\ns_add_u32 s{T0}, s{T0}, s{U6}')
        a.vmem(f'buffer_load_dwordx4 v{t}, {sr(SRD_WS,4)}, s{T0} offen {sc} lds', tag)
    for p in range(3): dma(KB + p * PL, p * PS, p == 2, 'kv')
    a.vmem(f'buffer_load_dwordx2 {vr(V_Q0,2)}, v{t+2}, {sr(SRD_WS,4)}, s{U2} offen {sc}', 'kv')
    a.vmem(f'buffer_load_dwordx2 {vr(V_Q0+2,2)}, v{t+2}, {sr(SRD_WS,4)}, s{U3} offen {sc}', 'kv')
    a.vmem(f'buffer_load_dwordx2 {vr(V_Q1,2)}, v{t+3}, {sr(SRD_WS,4)}, s{U4} offen {sc}', 'kv')
    a.vmem(f'buffer_load_dword v{V_G}, v{t+1}, {sr(SRD_WS,4)}, s{U5} offen {sc}', 'kv')
    for p in range(2): dma(VB + p * PL, (160 + p) * PS, False, 'v')

def qk(T, d, c):
    k = V_K + 6 * T
    return [f'{MF} {vr(d,16)}, {vr(k,4)}, {vr(V_Q0,4)}, {c}', f'{MF} {vr(d,16)}, {vr(k+4,4)}, {vr(V_Q1,4)}, {vr(d,16)}']
def vread(T, st):
    return [f'ds_read_b64_tr_b16 {vr(V_V+8*st+4*m+2*h,2)}, v{V_VA} offset:{VB+(32*T+16*m+8*h)*8}' for m in range(2) for h in range(2)]
def pv(st, pst, first=False):
    return [f'{MF} {vr(V_O,16)}, {vr(V_V+8*st+4*m,4)}, {vr(V_P+8*pst+4*m,4)}, ' + ('0' if first and m == 0 else vr(V_O, 16)) for m in range(2)]
def spread(valu, mf):
    out = []; n = len(valu); k = len(mf)
    pos = [(i * n) // k for i in range(k)]
    j = 0
    for i, v in enumerate(valu):
        while j < k and pos[j] == i:
            out.append(mf[j]); j += 1
        out.append(v)
    return out + mf[j:]

def compute(a, prof, sc='', hook=lambda x: None):
    a.vmwait(['kv'], 'lgkmcnt(0)')
    a('s_barrier')
    stamp(a, 6, prof)
    hook(-2)
    order = [0, 8, 1, 2, 3, 4, 5, 6, 7]
    def kread(T):
        k = V_K + 6 * T
        return [f'ds_read_b64 {vr(k,2)}, v{V_KA0} offset:{KB+256*T}', f'ds_read_b64 {vr(k+2,2)}, v{V_KA0} offset:{KB+PL+256*T}',
                f'ds_read_b64 {vr(k+4,2)}, v{V_KA1} offset:{KB+4*PL+256*T}']
    for T in (0, 1, 8, 2, 3):
        for l in kread(T): a(l)
    a(f'''
    s_mov_b32 exec_lo, 0
    v_mov_b32 v{V_Q1}, 0x3f80
    v_mov_b32 v{V_Q1+1}, 0
    s_mov_b32 exec_lo, -1
    s_waitcnt lgkmcnt(6)
    ''')
    S = lambda i: V_S + 16 * i
    for l in qk(0, S(0), '0') + qk(8, S(1), '0'): a(l)
    a('s_waitcnt lgkmcnt(0)')
    for T in (4, 5, 6, 7):
        for l in kread(T): a(l)
    for l in qk(1, S(2), '0'): a(l)
    cn = [f'v_cndmask_b32 v{V_MG+e}, v{S(0)+e}, v{S(1)+e}, {sr(S_MSK+2*e,2)}' for e in range(16)]
    def mx(b, first=False):
        o = []
        for e in range(0, 16, 2):
            o.append(f'v_max_f32 v{V_M}, v{b}, v{b+1}' if first and e == 0 else f'v_max3_f32 v{V_M}, v{b+e}, v{b+e+1}, v{V_M}')
        return o
    for l in cn: a(l)
    a('s_waitcnt lgkmcnt(0)')
    for l in spread(mx(V_MG, True), qk(2, S(0), '0')): a(l)
    buf = {1: 2, 2: 0, 3: 1, 4: 2, 5: 0, 6: 1, 7: 2}
    for l in spread(mx(S(2)), qk(3, S(1), '0')): a(l)
    for T in range(2, 8):
        if T + 2 <= 7:
            for l in spread(mx(S(buf[T])), qk(T + 2, S(buf[T+2]), '0')): a(l)
        else:
            if T == 7: a('s_nop 1')
            for l in mx(S(buf[T])): a(l)
    if not hook(-3): a('s_waitcnt vmcnt(0)')
    a('s_barrier'); a.vm = []
    for l in vread(0, 0) + vread(8, 1): a(l)
    extra = hook(-1) or []
    a(f'''
    v_mov_b32 v{V_NM}, v{V_M}
    s_nop 1
    v_permlane32_swap_b32 v{V_NM}, v{V_M}
    s_nop 1
    v_max_f32 v{V_M}, v{V_M}, v{V_NM}
    ''')
    for e in range(16): a(f'v_sub_f32 v{V_NM+e}, 0, v{V_M}')
    NM = vr(V_NM, 16)
    val = [f'v_sub_f32 v{V_MG+e}, v{V_MG+e}, v{V_M}' for e in range(16)] + [f'v_exp_f32 v{V_MG+e}, v{V_MG+e}' for e in range(16)]
    val += [f'v_cvt_pk_bf16_f32 v{V_P+k}, v{V_MG+2*k}, v{V_MG+2*k+1}' for k in range(8)]
    val += [f'v_and_b32 v{V_P+8+k}, v{V_P+k}, v{V_PM+k}' for k in range(8)] + [f'v_xor_b32 v{V_P+k}, v{V_P+k}, v{V_P+8+k}' for k in range(8)]
    for l in val[:2]: a(l)
    seq = spread(val[2:], qk(1, S(1 % 3), NM) + qk(2, S(2 % 3), NM))
    if extra: seq = seq[:2] + spread(seq[2:], extra)
    for l in seq: a(l)
    pend = pv(0, 0, True) + pv(1, 1)
    extra = hook(0) or []
    for T in range(1, 8):
        b = S(T % 3); ps = (T + 1) & 1
        ex = [f'v_exp_f32 v{b+e}, v{b+e}' for e in range(16)]
        cv = [f'v_cvt_pk_bf16_f32 v{V_P+8*ps+k}, v{b+2*k}, v{b+2*k+1}' for k in range(8)]
        pend[0] = 's_waitcnt lgkmcnt(0)\n' + pend[0]
        pend[-1] += '\n' + '\n'.join(vread(T, ps))
        mf = pend + (qk(T + 2, S((T + 2) % 3), NM) if T + 2 <= 7 else [])
        for l in ex[:2]: a(l)
        seq = spread(ex[2:], pend) + spread(cv, mf[4:]) if T == 1 else spread(ex[2:] + cv, mf)
        if extra: seq = seq[:2] + spread(seq[2:], extra)
        for l in seq: a(l)
        pend = pv(ps, ps)
        extra = hook(T) or []
    a('s_waitcnt lgkmcnt(0)\ns_nop 0')
    for l in pend: a(l)
    a(f's_nop 11\nv_rcp_f32 v{V_M}, v{V_O+12}\ns_nop 0\nv_mul_f32 v{V_M}, v{V_M}, v{V_G}')
    for e in range(12): a(f'v_mul_f32 v{V_O+e}, v{V_O+e}, v{V_M}')
    for k in range(6): a(f'v_cvt_pk_bf16_f32 v{V_P+k}, v{V_O+2*k}, v{V_O+2*k+1}')
    for g in range(3):
        a.vmem(f'buffer_store_dwordx2 {vr(V_P+2*g,2)}, v{V_OA+g}, {sr(SRD_WS,4)}, 0 offen {sc}', 'ost')
    stamp(a, 7, prof)
```

```python
import sys, struct
from base import *
import st1, st3
from st1 import *
NAME = 'gated_mix__sliding_block__swiglu_ffn__prompt_kernel'
SC = 'sc1'
WS_F1, WS_F2, WS_F3, WS_F0 = 0x1510000, 0x1512000, 0x1514000, 0x1515000
S_P = 27
V_L16, V_FLG, V_ONE, V_PL, V_L4, V_RA, V_RA2, V_RA3, V_G1 = 244, 245, 246, 247, 248, 249, 250, 251, 242
V_H = 210
Q_MT, Q_N, Q0, Q1, Q2, Q3, Q_A0, Q_A1, Q_WO, Q_WL, Q_RH, Q_RO, Q_R, Q_PR, Q_HO, Q_J, Q_G, Q_O, Q_WA, Q_WM = range(32, 52)
SRD_O = 28
SLOT = 20480; NS = 8
WSR = sr(SRD_WS, 4)
uid = [0]

def spin(a, vaddr, srd_, soff, expect, first_issued=False):
    uid[0] += 1; L = f'spin{uid[0]}'
    a('s_mov_b32 s98, 0')
    if first_issued: a(f's_branch {L}c')
    a(f'''{L}:
    buffer_load_dword v{V_PL}, v{vaddr}, {srd_}, {soff} offen {SC}
    s_waitcnt vmcnt(0)
    {L}c:
    v_cmp_ne_u32 vcc, {expect}, v{V_PL}
    s_add_u32 s98, s98, 1
    s_cbranch_vccz {L}d
    s_cmp_lt_u32 s98, 0x40000
    s_cbranch_scc1 {L}
    {L}d:''')
def flag(a, lane):
    a(f's_mov_b64 exec, {1 << lane}\nbuffer_store_dword v{V_ONE}, v{V_FLG}, {WSR}, 0 offen {SC}\ns_mov_b64 exec, -1')

def s4_setup(a):
    a(f'''
    s_and_b32 s{Q0}, s2, 7
    s_lshr_b32 s{Q1}, s2, 3
    s_lshr_b32 s{Q_MT}, s{Q0}, 1
    s_lshl_b32 s{Q_MT}, s{Q_MT}, 3
    s_and_b32 s{Q2}, s{Q1}, 7
    s_add_u32 s{Q_MT}, s{Q_MT}, s{Q2}
    s_and_b32 s{Q_N}, s{Q0}, 1
    s_lshl_b32 s{Q_N}, s{Q_N}, 2
    s_lshr_b32 s{Q1}, s{Q1}, 3
    s_add_u32 s{Q_N}, s{Q_N}, s{Q1}
    s_lshl_b32 s{Q_RH}, s{Q1}, 1
    s_add_u32 s{Q_RH}, s{Q_RH}, s{Q2}
    s_and_b32 s{Q_RH}, s{Q_RH}, {0 if 'norot4' in OPT else 7}
    s_mul_i32 s{Q_RO}, s{Q_RH}, 5
    s_lshr_b32 s{Q_RO}, s{Q_RO}, 3
    s_mul_i32 s{Q_RH}, s{Q_RH}, 3
    s_lshr_b32 s{Q_RH}, s{Q_RH}, 1
    s_and_b32 s{Q0}, s{S_W}, 3
    s_lshl_b32 s{Q2}, s{Q_MT}, 1
    s_add_u32 s{Q2}, s{Q2}, s{S_P}
    s_lshl_b32 s{Q_G}, s{Q2}, 7
    s_mul_i32 s{Q_A0}, s{Q2}, {2*68}
    s_add_u32 s{Q_A0}, s{Q_A0}, s{Q0}
    s_lshl_b32 s{Q_A0}, s{Q_A0}, 10
    s_add_u32 s{Q_A0}, s{Q_A0}, {WS_A2}
    s_add_u32 s{Q_A1}, s{Q_A0}, {68*1024}
    s_lshl_b32 s{Q2}, s{Q0}, 3
    s_add_u32 s{Q2}, s{Q2}, s{Q_N}
    s_mul_i32 s{Q_WO}, s{Q2}, 5120
    s_add_u32 s{Q_WO}, s{Q_WO}, {WS_W2}
    s_mul_i32 s{Q_WL}, s{Q0}, 5120
    s_xor_b32 s{Q_PR}, s{S_P}, 1
    s_mov_b32 s{Q_J}, s{S_J}
    v_add_u32 v{V_RA}, s{Q_WL}, v{V_L16}
    v_add_u32 v{V_RA2}, {3*SLOT}, v{V_RA}
    v_add_u32 v{V_RA3}, {6*SLOT}, v{V_RA}
    ''')
def rot(r):
    if r < 12: return f's_add_u32 s{Q_R}, s{Q_RH}, {r}\ns_cmp_ge_u32 s{Q_R}, 12\ns_cselect_b32 s{Q2}, 12, 0\ns_sub_u32 s{Q_R}, s{Q_R}, s{Q2}\n'
    return f's_add_u32 s{Q_R}, s{Q_RO}, {r}\ns_cmp_ge_u32 s{Q_R}, 17\ns_cselect_b32 s{Q2}, 5, 0\ns_sub_u32 s{Q_R}, s{Q_R}, s{Q2}\n'
def issue_w(tag):
    g = []
    for f in range(5):
        pre = ''
        if f == 0: pre = f's_mov_b32 m0, s{Q_WM}\ns_add_u32 s{Q_PR}, s{Q_PR}, 2\n'
        if f == 4: pre = f's_add_u32 m0, m0, 4096\ns_add_u32 s{Q_WA}, s{Q_WA}, 4096\n'
        g.append((pre + f'buffer_load_dwordx4 v{V_L16}, {WSR}, s{Q_WA} offen offset:{(f&3)*1024} {SC} lds', tag))
    return g
def w_next():
    return f'''s_cmp_lt_u32 s{Q_PR}, 12
    s_cselect_b32 s{Q_WA}, s{Q_RH}, s{Q_RO}
    s_cselect_b32 s{Q_WM}, 12, 17
    s_cselect_b32 s{Q1}, 12, 5
    s_add_u32 s{Q_WA}, s{Q_WA}, s{Q_PR}
    s_cmp_ge_u32 s{Q_WA}, s{Q_WM}
    s_cselect_b32 s{Q1}, s{Q1}, 0
    s_sub_u32 s{Q_WA}, s{Q_WA}, s{Q1}
    s_mul_i32 s{Q_WA}, s{Q_WA}, {160*1024}
    s_add_u32 s{Q_WA}, s{Q_WA}, s{Q_WO}
    s_and_b32 s{Q_WM}, s{Q_PR}, 7
    s_mul_i32 s{Q_WM}, s{Q_WM}, {SLOT}
    s_add_u32 s{Q_WM}, s{Q_WM}, s{Q_WL}'''
AREG = [210 + 8 * r for r in range(4)] + [26 + 8 * r for r in range(7)] + [14] + [82 + 8 * r for r in range(5)]
V4_ACC = 130; V4_F = 170
def issue_a(r):
    g = []
    if r >= 12:
        for t in range(2):
            pre = rot(r) + f's_mul_i32 s{Q_R}, s{Q_R}, {32*PS}\ns_add_u32 s{Q2}, s{Q_R}, s{Q_O}\n' if t == 0 else f's_add_u32 s{Q2}, s{Q2}, {4*PS}\n'
            g.append((pre + f'buffer_load_dwordx4 {vr(AREG[r]+4*t,4)}, v4, {WSR}, s{Q2} offen {SC}', f'a{r}'))
        return g
    for t in range(2):
        pre = rot(r) + f's_lshl_b32 s{Q_R}, s{Q_R}, 12\n' if t == 0 else ''
        g.append((pre + f's_add_u32 s{Q2}, s{Q_R}, s{Q_A0+t}\nbuffer_load_dwordx4 {vr(AREG[r]+4*t,4)}, v{V_L16}, {WSR}, s{Q2} offen {SC}', f'a{r}'))
    return g

def build(prof=False):
    uid[0] = 0
    config(5)
    XB, RB = st1.XBASE, st1.RBASE
    a = Asm(); name = 'k'
    common_entry(a, name)
    stamp(a, 0, prof)
    if 'fix' in OPT: a('s_memrealtime s[100:101]')
    t = V_T
    a(f'''
    s_and_b32 s{S_T0}, s2, 7
    s_lshr_b32 s{S_T1}, s2, 3
    s_and_b32 s{S_MB}, s{S_T0}, 1
    s_lshl_b32 s{S_MB}, s{S_MB}, 3
    s_and_b32 s{S_T2}, s{S_T1}, 7
    s_add_u32 s{S_MB}, s{S_MB}, s{S_T2}
    s_lshr_b32 s{S_J}, s{S_T0}, 1
    s_lshr_b32 s{S_T1}, s{S_T1}, 3
    s_add_u32 s{S_XM}, s{S_T1}, s{S_T2}
    ''')
    if 'rot' in OPT:
        a(f'''s_add_u32 s{S_XM}, s{S_XM}, s{S_T1}
        s_and_b32 s{S_XM}, s{S_XM}, 7
        s_mul_i32 s{S_XM}, s{S_XM}, 5
        s_lshr_b32 s{S_XM}, s{S_XM}, 2
        s_mov_b32 s{S_CW}, s{S_XM}
        s_mov_b32 s{S_CX}, s{S_XM}''')
    else:
        a(f'''s_and_b32 s{S_XM}, s{S_XM}, {0 if 'x0' in OPT else 3 if 'x3' in OPT else 1}
        s_mov_b32 s{S_CW}, 0
        s_mov_b32 s{S_CX}, 0''')
    a(f'''
    s_lshl_b32 s{S_J if 'map2' in OPT else S_T1}, s{S_J if 'map2' in OPT else S_T1}, 2
    s_add_u32 s{S_J}, s{S_J}, s{S_T1}
    s_mul_i32 s{S_T0}, s{S_J}, 5
    s_sub_u32 s{S_T0}, s{S_T0}, 50
    s_add_u32 s{S_LC0}, s{S_J}, 6
    s_lshr_b32 s{S_LC0}, s{S_LC0}, 3
    s_sub_u32 s{S_LC0}, s{S_J}, s{S_LC0}
    s_cmp_lt_u32 s{S_J}, 12
    s_cselect_b32 s{S_LC0}, s{S_LC0}, s{S_T0}
    s_mov_b32 s{S_STW0}, 3840
    s_cselect_b32 s{S_STW1}, 3072, s{S_STW0}
    s_and_b32 s{S_T0}, s{S_W}, 3
    s_lshr_b32 s{S_P}, s{S_W}, 2
    v_lshrrev_b32 v{t}, 3, v0
    v_and_b32 v{t+1}, 7, v0
    v_bfe_u32 v{t+2}, v0, 4, 1
    s_and_b32 s{S_T3}, s{S_W}, 1
    s_lshl_b32 s{S_T2}, s{S_T3}, 1
    v_or_b32 v{t+2}, s{S_T2}, v{t+2}
    v_lshlrev_b32 v{t+2}, 1, v{t+2}
    v_xor_b32 v{t+2}, v{t+2}, v{t+1}
    v_lshlrev_b32 v{t+2}, 4, v{t+2}
    s_lshl_b32 s{S_T2}, s{S_T0}, 3
    v_add_u32 v{t+3}, s{S_T2}, v{t}
    v_mad_u32_u24 v{V_OW0}, v{t+3}, s{S_STW0}, v{t+2}
    v_mad_u32_u24 v{V_OW1}, v{t+3}, s{S_STW1}, v{t+2}
    s_lshr_b32 s{S_T2}, s{S_W}, 1
    s_lshl_b32 s{S_T2}, s{S_T2}, 5
    s_add_u32 s{S_T2}, s{S_T2}, s{S_T3}
    v_lshl_add_u32 v{t+3}, v{t}, 1, s{S_T2}
    v_mul_u32_u24 v{t+3}, 1280, v{t+3}
    v_lshrrev_b32 v{t+4}, 4, v0
    v_xor_b32 v{t+4}, v{t+4}, v{t+1}
    v_lshl_add_u32 v{V_OX0}, v{t+4}, 4, v{t+3}
    v_xor_b32 v{V_OX1}, 64, v{V_OX0}
    v_add_u32 v{V_OX1}, {16*1280}, v{V_OX1}
    s_xor_b32 s{S_T2}, s{S_P}, 1
    s_mul_i32 s{S_WDS}, s{S_T2}, {WSLOT}
    s_lshl_b32 s{S_T3}, s{S_T0}, 10
    s_add_u32 s{S_WDS}, s{S_WDS}, s{S_T3}
    s_lshl_b32 s{S_T2}, s{S_T2}, 5
    s_mul_i32 s{S_WEND0}, s{S_T2}, s{S_STW0}
    s_mul_i32 s{S_WEND1}, s{S_T2}, s{S_STW1}
    s_lshl_b32 s{S_STW0}, s{S_STW0}, 6
    s_lshl_b32 s{S_STW1}, s{S_STW1}, 6
    s_mul_i32 s{S_SW0}, s{S_XM}, s{S_STW0}
    s_mul_i32 s{S_SW1}, s{S_XM}, s{S_STW1}
    s_add_u32 s{S_SW0}, s{S_SW0}, s{S_WEND0}
    s_add_u32 s{S_SW1}, s{S_SW1}, s{S_WEND1}
    s_lshl_b32 s{S_SX}, s{S_XM}, 7
    s_lshl_b32 s{S_XDS}, s{S_W}, 11
    s_add_u32 s{S_XDS}, s{S_XDS}, {XB}
    s_mul_i32 s{S_T2}, s{S_MB}, {128*1280}
    s_lshl_b32 s{S_T3}, s{S_LC0}, 7
    s_waitcnt lgkmcnt(0)
    ''')
    srd(a, SRD_X, S_X, 128 * 1280, f's{S_T2}')
    nq = 639 * 3840 + 128; ng = 639 * 3072 + 128
    srd(a, SRD_W, S_WQKV, nq, f's{S_T3}')
    a(f's_cmp_lt_u32 s{S_J}, 12\ns_cbranch_scc1 k_s1g')
    for c in range(1, 5):
        srd(a, SRD_W + 4 * c, SRD_W, nq, 128 * c)
    sp = 'split' in OPT
    a(f's_branch k_s1h\nk_s1g:\ns_lshl_b32 s{S_T3}, s{S_J}, {7 if sp else 8}')
    srd(a, SRD_W + 4, S_WG, ng, f's{S_T3}')
    srd(a, SRD_W + 8, SRD_W + 4, ng, 1536 if sp else 128)
    srd(a, SRD_W + 12, S_WU, ng, f's{S_T3}')
    srd(a, SRD_W + 16, SRD_W + 12, ng, 1536 if sp else 128)
    a(f's_and_b32 s{S_T3}, s{S_J}, 7\ns_cmp_eq_u32 s{S_T3}, 1\ns_cselect_b32 s{SRD_W+2}, 0, s{SRD_W+2}')
    a('k_s1h:')
    stamp(a, 1, prof)
    def groups(lbl, g1, g0):
        a(f's_cmp_eq_u32 s{S_P}, 0\ns_cbranch_scc1 {lbl}0')
        for grp in g1:
            for g in grp(a): a(g)
        a(f's_branch {lbl}e\n{lbl}0:')
        for grp in g0:
            for g in grp(a): a(g)
        a(f'{lbl}e:')
    PF = 'pf' in OPT
    PFN = int(PF and 'pf0' not in OPT)
    V_PF, V_PD, S_PO, S_PS = 252, 253, 93, 94
    def pf_setup():
        a(f'''
        s_mov_b64 s[96:97], s[{SRD_X}:{SRD_X+1}]
        s_mov_b32 s98, s{SRD_X+2}
        s_mov_b32 s99, 0x20000''')
        for c in range(5):
            b = SRD_W + 4 * c
            a(f's_cmp_eq_u32 s{S_W}, {c}\ns_cselect_b64 s[96:97], s[{b}:{b+1}], s[96:97]\ns_cselect_b32 s98, s{b+2}, s98')
        a(f'''
        s_cmp_eq_u32 s{S_W}, 0
        s_cselect_b32 s{S_PO}, s{S_STW0}, s{S_STW1}
        s_lshr_b32 s78, s{S_PO}, 6
        s_and_b32 s79, s{S_MB}, 7
        s_lshl_b32 s79, s79, 3
        v_lshl_add_u32 v{t+5}, v{t}, 6, v{t+1}
        v_add_u32 v{t+5}, s79, v{t+5}
        v_mul_u32_u24 v{V_PF}, s78, v{t+5}
        v_cmp_le_u32 vcc, 24, v0
        v_mov_b32 v{t+5}, 0x40000000
        s_cmp_lt_u32 s{S_W}, 5
        v_cndmask_b32 v{V_PF}, v{V_PF}, v{t+5}, vcc
        s_cbranch_scc1 k_pfw
        s_lshr_b32 s79, s2, 6
        s_lshl_b32 s79, s79, 5
        v_add_u32 v{t+5}, s79, v0
        s_sub_u32 s79, s{S_W}, 5
        s_lshl_b32 s79, s79, 7
        v_mov_b32 v{V_PF}, s79
        v_mov_b32 v{t+6}, 1280
        v_mad_u32_u24 v{V_PF}, v{t+5}, v{t+6}, v{V_PF}
        s_mov_b32 s{S_PO}, 128
        k_pfw:
        s_mul_i32 s{S_PS}, s{S_PO}, 3''')
    def pf():
        if PF: a(f's_mov_b32 exec_hi, 0\nbuffer_load_dword v{V_PD}, v{V_PF}, s[96:99], s{S_PO} offen\ns_mov_b32 exec_hi, -1\ns_add_u32 s{S_PO}, s{S_PO}, s{S_PS}')
    def slowpf():
        a(f'''
        s_mov_b64 s[96:97], s[{S_X}:{S_X+1}]
        s_mov_b32 s98, {2048*1280}
        s_mov_b32 s99, 0x20000
        s_and_b32 s78, s{S_W}, 3
        s_cmp_eq_u32 s78, 1
        s_cselect_b64 s[96:97], s[{S_WQKV}:{S_WQKV+1}], s[96:97]
        s_cselect_b32 s98, {640*3840}, s98
        s_cmp_eq_u32 s78, 2
        s_cselect_b64 s[96:97], s[{S_WG}:{S_WG+1}], s[96:97]
        s_cselect_b32 s98, {640*3072}, s98
        s_cmp_eq_u32 s78, 3
        s_cselect_b64 s[96:97], s[{S_WU}:{S_WU+1}], s[96:97]
        s_cselect_b32 s98, {640*3072}, s98
        s_lshl_b32 s78, s{S_P}, 8
        s_add_u32 s78, s78, s2
        s_lshl_b32 s78, s78, 10
        v_lshlrev_b32 v{V_PF}, 19, v0
        s_mov_b64 exec, 31
        buffer_load_dword v{V_PD}, v{V_PF}, s[96:99], s78 offen offset:384
        s_mov_b64 exec, -1''')
    def gupf():
        R0 = 0 if 'gr0' in OPT else 128
        nl = (640 - R0) * 24 // 1024
        a(f'''
        s_cmp_eq_u32 s{S_P}, 0
        s_cselect_b64 s[96:97], s[{S_WG}:{S_WG+1}], s[{S_WU}:{S_WU+1}]
        s_mov_b32 s98, {640*3072}
        s_mov_b32 s99, 0x20000
        s_and_b32 s78, s{S_W}, 3
        s_lshl_b32 s78, s78, 8
        s_add_u32 s78, s78, s2
        s_mul_i32 s78, s78, {nl*128}
        s_add_u32 s78, s78, {R0*3072}
        v_lshlrev_b32 v{V_PF}, 7, v0
        s_mov_b64 exec, {hex((1 << nl) - 1)}
        buffer_load_dword v{V_PD}, v{V_PF}, s[96:99], s78 offen
        s_mov_b64 exec, -1''')
    if 'gp0' in OPT: gupf()
    if 'sp0' in OPT: slowpf()
    if 'pf0' in OPT: pf_setup(); pf()
    groups('k_pa', (dma_w, dma_x), (dma_x, dma_w))
    if PFN: pf_setup(); pf()
    if 'sp1' in OPT: slowpf(); PFN += 1
    if 'gp1' in OPT: gupf(); PFN += 1
    srd(a, SRD_WS, S_WS, WS_SIZE)
    srd(a, SRD_M, S_GW, 1280)
    a(f'''
    v_lshlrev_b32 v{V_L16}, 4, v0
    v_lshlrev_b32 v{V_L4}, 2, v0
    s_mul_i32 s{S_RU}, s2, 3
    s_add_u32 s{S_RU}, s{S_RU}, s{S_W}
    s_cmp_lt_u32 s{S_W}, 3
    s_cselect_b32 s{S_RU}, s{S_RU}, 1000
    s_cmp_ge_u32 s{S_RU}, 680
    s_cbranch_scc1 k_s1r
    s_mul_i32 s78, s{S_RU}, 6554
    s_lshr_b32 s78, s78, 16
    s_mul_i32 s79, s78, 10
    s_sub_u32 s79, s{S_RU}, s79
    s_lshl_b32 s79, s79, 7
    s_lshr_b32 s80, s78, 2
    s_lshl_b32 s80, s80, {6 if sp else 7}
    s_and_b32 s81, s78, 3
    s_lshl_b32 s81, s81, 4
    s_add_u32 s80, s80, s81
    s_sub_u32 s81, s78, 48
    s_lshl_b32 s81, s81, 5
    s_cmp_lt_u32 s78, 48
    s_cselect_b32 s80, s80, s81
    s_mov_b32 s81, {16*1280}
    s_mov_b32 s86, {640*1280}
    s_cselect_b32 s81, {(768 if sp else 64)*1280}, s81
    s_cselect_b32 s84, s{S_WD}, s{S_WO}
    s_cselect_b32 s85, s{S_WD+1}, s{S_WO+1}
    s_cselect_b32 s86, {1536*1280}, s86
    s_mov_b32 s87, 0x20000
    s_mul_i32 s80, s80, 1280
    s_add_u32 s80, s80, s79
    v_mul_u32_u24 v{t+12}, 1280, v{t}
    v_lshl_add_u32 v{t+12}, v{t+1}, 4, v{t+12}
    s_lshl_b32 s79, s{S_W}, 12
    s_add_u32 s79, s79, {RB}
    ''')
    for i in range(4):
        a(f's_add_u32 m0, s79, {i*1024}')
        a([f's_nop 0', f's_add_u32 s82, s80, {8*1280}', 's_add_u32 s80, s80, s81', f's_add_u32 s82, s80, {8*1280}'][i])
        a(f'buffer_load_dwordx4 v{t+12}, s[84:87], s{82 if i & 1 else 80} offen' + (' nt' if 'nont' not in OPT else '') + ' lds')
    gx, gw = t + 16, t + 22
    a(f'''k_s1r:
    s_lshl_b32 s{S_T2}, s{S_J}, 3
    s_add_u32 s{S_T2}, s{S_T2}, s{S_W}
    s_mul_i32 s{S_T3}, s{S_T2}, 1280
    buffer_load_dwordx4 {vr(gx,4)}, v{V_L16}, {sr(SRD_X,4)}, s{S_T3} offen
    buffer_load_dword v{gx+4}, v{V_L4}, {sr(SRD_X,4)}, s{S_T3} offen offset:1024
    buffer_load_dwordx4 {vr(gw,4)}, v{V_L16}, {sr(SRD_M,4)}, 0 offen
    buffer_load_dword v{gw+4}, v{V_L4}, {sr(SRD_M,4)}, 0 offen offset:1024
    ''')
    WF = False
    FS = 2 if 'fs2' in OPT else 5
    FM = 5 if 'fs2' in OPT else 4
    if True: a(f'''
    s_lshl_b32 s78, s{S_MB}, {FM}
    s_add_u32 s78, s78, s{S_J}
    s_lshl_b32 s78, s78, {FS}
    s_add_u32 s79, s78, {WS_F2}
    v_mov_b32 v{V_FLG}, s79
    s_add_u32 s78, s78, {WS_F1}
    v_writelane_b32 v{V_FLG}, s78, 2
    s_lshr_b32 s78, s2, 3
    s_lshl_b32 s78, s78, 5
    s_and_b32 s79, s2, 7
    s_add_u32 s78, s78, s79
    s_lshl_b32 s78, s78, 2
    s_add_u32 s78, s78, {WS_F3}
    v_writelane_b32 v{V_FLG}, s78, 1
    s_add_u32 s78, s78, {WS_F0 - WS_F3}
    v_writelane_b32 v{V_FLG}, s78, 3
    s_cmp_eq_u32 s2, 0
    s_cbranch_scc0 k_noclr
    s_mul_i32 s78, s{S_W}, 3072
    s_add_u32 s78, s78, {WS_F1}
    v_mov_b32 v{V_ACC}, 0
    v_mov_b32 v{V_ACC+1}, 0
    v_mov_b32 v{V_ACC+2}, 0
    v_mov_b32 v{V_ACC+3}, 0
    buffer_store_dwordx4 {vr(V_ACC,4)}, v{V_L16}, {WSR}, s78 offen {SC}
    buffer_store_dwordx4 {vr(V_ACC,4)}, v{V_L16}, {WSR}, s78 offen offset:1024 {SC}
    buffer_store_dwordx4 {vr(V_ACC,4)}, v{V_L16}, {WSR}, s78 offen offset:2048 {SC}
    k_noclr:''')
    a(f'''
    v_mov_b32 v{V_ONE}, 1
    v_mov_b32 v{t+40}, 0
    v_mov_b32 v{t+41}, 0
    ''')
    groups('k_pb', (dma_w, dma_x, dma_w), (dma_x, dma_w, dma_x))
    srd(a, SRD_M, S_DBG, 256)
    a(f'''
    v_lshrrev_b32 v{t+12}, 4, v0
    v_bfe_u32 v{t+13}, v0, 2, 2
    v_and_b32 v{t+14}, 3, v0
    v_lshlrev_b32 v{V_WB}, 10, v{t+12}
    v_lshl_add_u32 v{V_WB}, v{t+13}, 7, v{V_WB}
    v_lshl_add_u32 v{V_WB}, v{t+14}, 3, v{V_WB}
    v_bfe_u32 v{t+14}, v0, 3, 2
    s_and_b32 s{S_T0}, s{S_W}, 3
    v_xor_b32 v{t+14}, s{S_T0}, v{t+14}
    v_lshl_add_u32 v{V_WB}, v{t+14}, 5, v{V_WB}
    v_and_b32 v{t+13}, 15, v0
    v_bfe_u32 v{t+14}, v0, 1, 3
    v_xor_b32 v{t+14}, v{t+14}, v{t+12}
    v_lshlrev_b32 v{t+14}, 4, v{t+14}
    v_lshl_add_u32 v{t+14}, v{t+13}, 7, v{t+14}
    s_lshl_b32 s{S_T0}, s{S_P}, 13
    v_add_u32 v{V_XB0}, s{S_T0}, v{t+14}
    v_xor_b32 v{V_XB1}, 64, v{V_XB0}
    s_mov_b32 s{S_WRS}, 0
    s_mov_b32 s{S_XRS}, {XB}
    v_mov_b32 v{V_WA}, v{V_WB}
    v_add_u32 v{V_XA}, s{S_XRS}, v{V_XB0}
    s_mov_b32 s{S_CNT}, 0
    ''')
    for i in range(80): a(f'v_mov_b32 v{V_ACC+i}, 0')
    def step(par, n, dma):
        a(f's_waitcnt lgkmcnt(0)' + (f' vmcnt({n})' if n is not None else '') + '\ns_barrier')
        mf = [f'v_mfma_f32_16x16x32_bf16 {vr(acc(c,tt),4)}, {vr(wfr(par,c),4)}, {vr(xfr(par,tt),4)}, {vr(acc(c,tt),4)}' for c in range(5) for tt in range(4)]
        rd = reads(1 - par)
        slots = [[] for _ in range(20)]
        for i in range(14): slots[i].append(rd[i])
        slots[14].append(next_addr(par))
        pos = {6: [1, 5, 9, 13, 16, 17], 3: [3, 11, 12], 0: []}[len(dma)]
        for p_, d_ in zip(pos, dma): slots[p_].append(d_)
        for m_, sl in zip(mf, slots):
            a(m_)
            for l in sl: a(l)
    w2dyn = [s for s, _ in issue_w('')] + [w_next()]
    for P in (1, 0):
        if P == 1: a(f's_cmp_eq_u32 s{S_P}, 0\ns_cbranch_scc1 k_l0pre')
        else: a('k_l0pre:')
        a(f's_waitcnt vmcnt({(14 if P == 0 else 12) + 4 + PFN})\ns_barrier')
        stamp(a, 2, prof)
        for g in reads(0): a(g)
        a(next_addr(1))
        pf()
        a(f'k_l{P}:')
        for par in range(2):
            n = {(0, 0): 9, (0, 1): 12, (1, 1): 7, (1, 0): None}[(P, par)]
            step(par, n, dma_w(a) if par == P else dma_x(a))
            if par == 0: a(f's_cmp_eq_u32 s{S_CNT}, 7\ns_cbranch_scc1 k_tail')
        a(f's_add_u32 s{S_CNT}, s{S_CNT}, 1\ns_bitcmp1_b32 {0b1011010}, s{S_CNT}\ns_cbranch_scc0 k_l{P}')
        if P == 1: a('s_branch k_side')
    a(f'k_side:\ns_cmp_eq_u32 s{S_CNT}, 1\ns_cbranch_scc0 k_side2')
    g = t + 11
    pf()
    a(f'v_mov_b32 v{g}, 0')
    for i in range(5):
        a(f'''v_lshlrev_b32 v{t+12}, 16, v{gx+i}
        v_lshlrev_b32 v{t+13}, 16, v{gw+i}
        v_and_b32 v{t+14}, 0xffff0000, v{gx+i}
        v_and_b32 v{t+15}, 0xffff0000, v{gw+i}
        v_fmac_f32 v{g}, v{t+12}, v{t+13}
        v_fmac_f32 v{g}, v{t+14}, v{t+15}''')
    for dpp in ('row_shr:1', 'row_shr:2', 'row_shr:4', 'row_shr:8', 'row_bcast:15 row_mask:0xa', 'row_bcast:31 row_mask:0xc'):
        a(f's_nop 1\nv_add_f32_dpp v{g}, v{g}, v{g} {dpp}' + (' bound_ctrl:0' if 'shr' in dpp else ''))
    e = t + 16
    a(f'''
    v_mul_f32 v{g}, {hex(f2u(-LOG2E))}, v{g}
    v_exp_f32 v{g}, v{g}
    s_lshl_b32 s78, s{S_MB}, 4
    s_add_u32 s78, s78, s{S_J}
    v_add_f32 v{g}, 1.0, v{g}
    v_rcp_f32 v{g}, v{g}
    s_lshl_b32 s78, s78, 5
    s_add_u32 s78, s78, s{S_W}
    s_lshl_b32 s78, s78, 2
    s_add_u32 s78, s78, {WS_G - 252}
    s_mov_b32 exec_lo, 0
    s_brev_b32 exec_hi, 1
    {'s_nop 0 ;' if 'nog' in OPT else ''} buffer_store_dword v{g}, v{V_L4}, {WSR}, s78 offen {SC}
    s_mov_b64 exec, -1
    s_cmp_eq_u32 s{S_W}, 3
    s_cselect_b32 s78, s2, 1
    s_cmp_eq_u32 s78, 0
    s_cbranch_scc0 k_nosig
    s_mov_b64 exec, 1
    buffer_store_dword v{V_ONE}, v{V_L4}, {sr(SRD_M,4)}, 0 offen {SC}
    s_mov_b64 exec, -1
    k_nosig:
    s_cmp_ge_u32 s{S_RU}, 680
    s_cbranch_scc1 k_back
    v_lshrrev_b32 v{e}, 2, v0
    v_lshlrev_b32 v{e}, 7, v{e}
    v_and_b32 v{e+1}, 3, v0
    v_lshl_add_u32 v{e}, v{e+1}, 3, v{e}
    s_lshl_b32 s79, s{S_W}, 12
    s_add_u32 s79, s79, {RB}
    v_add_u32 v{e}, s79, v{e}
    s_lshl_b32 s79, s{S_RU}, 12
    s_add_u32 s79, s79, {WS_W2}
    ''')
    for uu in range(4):
        for h in range(2):
            a(f'ds_read_b64_tr_b16 {vr(e+4+4*uu+2*h,2)}, v{e} offset:{h*2048+uu*32}')
    a('s_waitcnt lgkmcnt(0)')
    for uu in range(4):
        a(f'buffer_store_dwordx4 {vr(e+4+4*uu,4)}, v{V_L16}, {WSR}, s79 offen offset:{1024*uu} {SC}')
    z = t + 40
    a(f'''s_branch k_back
    k_side2:
    s_cmp_eq_u32 s{S_W}, 3
    s_cbranch_scc0 k_back
    s_cmp_eq_u32 s{S_CNT}, 4
    s_cbranch_scc1 k_side4
    s_cmp_eq_u32 s{S_CNT}, 6
    s_cbranch_scc1 k_side6
    v_mov_b32 v{z}, 0
    v_lshrrev_b32 v{z+1}, 1, v0
    v_lshlrev_b32 v{z+1}, 3, v{z+1}
    v_and_or_b32 v{z+1}, v0, 1, v{z+1}
    v_lshlrev_b32 v{z+1}, 4, v{z+1}
    buffer_load_dword v{V_PL}, v{z}, {sr(SRD_M,4)}, 0 offen {SC}
    s_branch k_back
    k_side4:
    s_waitcnt vmcnt(7)''')
    spin(a, z, sr(SRD_M, 4), 0, 1, True)
    flag(a, 3)
    a(f'''s_branch k_back
    k_side6:
    s_mov_b32 s99, {WS_F0}
    buffer_load_dwordx4 {vr(z+2,4)}, v{z+1}, {WSR}, s99 offen {SC}
    k_back:
    s_cmp_eq_u32 s{S_P}, 0
    s_cbranch_scc1 k_l0
    s_branch k_l1
    k_tail:''')
    s4_setup(a)
    a(w_next())
    a(f'''s_cmp_eq_u32 s{S_W}, 3
    s_cbranch_scc0 k_rdy
    s_waitcnt vmcnt(12)
    s_mov_b32 s98, 0
    s_mov_b32 s99, {WS_F0}
    k_rdl:
    v_and_b32 v{z+2}, v{z+2}, v{z+3}
    v_and_b32 v{z+4}, v{z+4}, v{z+5}
    v_and_b32 v{z+2}, v{z+2}, v{z+4}
    v_cmp_ne_u32 vcc, 1, v{z+2}
    s_add_u32 s98, s98, 1
    s_cbranch_vccz k_rdy
    buffer_load_dwordx4 {vr(z+2,4)}, v{z+1}, {WSR}, s99 offen {SC}
    s_waitcnt vmcnt(0)
    s_cmp_lt_u32 s98, 0x40000
    s_cbranch_scc1 k_rdl
    k_rdy:''')
    a(f's_cmp_eq_u32 s{S_P}, 0\ns_cbranch_scc1 k_todd0\ns_branch k_todd1')
    for P in (1, 0):
        a(f'k_teven{P}:')
        step(0, 5 if P == 0 else None, w2dyn if P == 0 else [])
        a(f'k_todd{P}:')
        step(1, 10 if P == 0 else 5, w2dyn if P == 1 else [])
        a(f's_add_u32 s{S_CNT}, s{S_CNT}, 1\ns_cmp_lt_u32 s{S_CNT}, 10\ns_cbranch_scc1 k_teven{P}')
        if P == 1: a('s_branch k_s1e')
    a('k_s1e:')
    stamp(a, 3, prof)
    u = V_T + 16
    a(f'''
    s_and_b32 s{S_T0}, s{S_W}, 3
    s_lshl_b32 s{S_T2}, s{S_LC0}, 2
    s_add_u32 s{S_T2}, s{S_T2}, s{S_T0}
    s_mul_i32 s{S_T2}, s{S_T2}, {4*PS}
    s_lshl_b32 s{S_T3}, s{S_MB}, 10
    s_add_u32 s{S_T2}, s{S_T2}, s{S_T3}
    s_lshl_b32 s{S_T3}, s{S_P}, 9
    s_add_u32 s{S_T2}, s{S_T2}, s{S_T3}
    v_lshrrev_b32 v{u}, 4, v0
    v_mul_u32_u24 v{u}, {PS}, v{u}
    v_and_b32 v{u+1}, 15, v0
    v_lshl_add_u32 v{u}, v{u+1}, 4, v{u}
    s_cmp_lt_u32 s{S_LC0}, 10
    s_cselect_b32 s{S_T3}, {hex(f2u(20 ** -0.5 * LOG2E))}, 1.0
    ''')
    def qkv_tile(c, scale):
        for tp in range(2):
            d = u + 4 + 4 * tp + 8 * (c & 1)
            for tt in range(2):
                b = acc(c, 2 * tp + tt)
                if scale:
                    for r in range(4): a(f'v_mul_f32 v{b+r}, s{S_T3}, v{b+r}')
                a(f'v_cvt_pk_bf16_f32 v{d+2*tt}, v{b}, v{b+1}\nv_cvt_pk_bf16_f32 v{d+2*tt+1}, v{b+2}, v{b+3}')
            a(f'buffer_store_dwordx4 {vr(d,4)}, v{u}, {WSR}, s{S_T2} offen offset:{256*tp} {SC}')
    a(f's_waitcnt lgkmcnt(0)\ns_and_b32 s98, s{S_J}, 7\ns_cmp_eq_u32 s98, 1\ns_cbranch_scc1 k_eg')
    qkv_tile(0, True)
    a(f's_cmp_lt_u32 s{S_J}, 12\ns_cbranch_scc1 k_eg')
    for c in range(1, 5):
        a(f's_add_u32 s{S_T2}, s{S_T2}, {16*PS}')
        qkv_tile(c, False)
    a(f'''s_waitcnt vmcnt(0)
    s_branch k_ef
    k_eg:
    s_mov_b32 s{S_T3}, {hex(f2u(-LOG2E))}
    ''')
    a(f'''
    s_lshl_b32 s{Q_HO}, s{S_MB}, 1
    s_add_u32 s{Q_HO}, s{Q_HO}, s{S_P}
    s_mul_i32 s{Q_HO}, s{Q_HO}, {4*68}
    s_lshl_b32 s{S_T2}, s{S_J}, 2
    s_add_u32 s{Q_HO}, s{Q_HO}, s{S_T2}
    s_add_u32 s{Q_HO}, s{Q_HO}, s{S_T0}
    s_lshl_b32 s{Q_HO}, s{Q_HO}, 10
    s_add_u32 s{Q_HO}, s{Q_HO}, {WS_A2}
    ''')
    e = 104
    def htile(tt):
        idx = [(c, r) for c in range(2) for r in range(4)]
        for k, (c, r) in enumerate(idx): a(f'v_mul_f32 v{e+k}, s{S_T3}, v{acc(1+c,tt)+r}')
        for k in range(8): a(f'v_exp_f32 v{e+k}, v{e+k}')
        for k, (c, r) in enumerate(idx):
            a(f'v_mul_f32 v{acc(1+c,tt)+r}, v{acc(1+c,tt)+r}, v{acc(3+c,tt)+r}\nv_add_f32 v{e+k}, 1.0, v{e+k}')
        for k in range(8): a(f'v_rcp_f32 v{e+k}, v{e+k}')
        a('s_nop 0')
        for k, (c, r) in enumerate(idx): a(f'v_mul_f32 v{e+k}, v{e+k}, v{acc(1+c,tt)+r}')
        for k in range(4): a(f'v_cvt_pk_bf16_f32 v{V_H+4*tt+k}, v{e+2*k}, v{e+2*k+1}')
        a(f'buffer_store_dwordx4 {vr(V_H+4*tt,4)}, v{V_L16}, {WSR}, s{Q_HO} offen {SC}\ns_add_u32 s{Q_HO}, s{Q_HO}, {68*1024}')
    HS = 2 if 'hs2' in OPT else 1 if 'hs1' in OPT else 0
    for tt in range(HS): htile(tt)
    st3.LB = 5 * SLOT
    p = 130
    a('k_ef:')
    st3.ids(a)
    a(f'''
    s_lshl_b32 s98, s{st3.S_QB}, 1
    s_sub_u32 s98, s98, 2
    v_lshrrev_b32 v{p}, 4, v0
    v_add_u32 v{p}, s98, v{p}
    v_max_i32 v{p}, 0, v{p}
    v_and_b32 v{p+2}, 7, v0
    v_cmp_eq_u32 vcc, 1, v{p+2}
    v_and_b32 v{p+1}, 15, v0
    v_and_b32 v{p+2}, 14, v0
    v_cndmask_b32 v{p+1}, v{p+1}, v{p+2}, vcc
    v_lshlrev_b32 v{p+1}, {FS}, v{p+1}
    v_lshl_add_u32 v{p}, v{p}, {FS+FM}, v{p+1}
    s_mov_b32 s99, {WS_F1}
    s_waitcnt vmcnt({HS})
    s_barrier
    s_cmp_eq_u32 s{S_W}, 0
    s_cbranch_scc0 k_f1''')
    flag(a, 2)
    a('k_f1:')
    stamp(a, 4, prof)
    st3.loads_pre(a)
    def hstores():
        for tt in range(4):
            a(f'buffer_store_dwordx4 {vr(V_H+4*tt,4)}, v{V_L16}, {WSR}, s{Q_HO} offen {SC}')
            if tt < 3: a(f's_add_u32 s{Q_HO}, s{Q_HO}, {68*1024}')
    a(f's_cmp_lt_u32 s{Q_J}, 12\ns_cbranch_scc0 k_nh0')
    for tt in range(HS, 4): htile(tt)
    HL = 'hl' in OPT
    a(f'k_nh0:\ns_cmp_eq_u32 s{S_W}, 1\ns_cbranch_scc0 k_p0\nbuffer_load_dword v{V_PL}, v{p}, {WSR}, s99 offen {SC}\nk_p0:')
    st3.setup(a)
    a('s_waitcnt vmcnt(0)')
    if WF: flag(a, 0)
    a(f's_cmp_eq_u32 s{S_W}, 1\ns_cbranch_scc0 k_p1')
    spin(a, p, WSR, 's99', 1, True)
    a('k_p1:\ns_barrier')
    stamp(a, 5, prof)
    st3.loads(a, SC)
    if WF: a(f's_lshl_b32 s99, s{Q_MT}, 8\ns_add_u32 s99, s99, {WS_F2}')
    else:
        a(f's_cmp_eq_u32 s{S_W}, 2\ns_cbranch_scc0 k_f2')
        flag(a, 0)
        a(f'k_f2:\ns_lshr_b32 s99, s{Q_MT}, 1\ns_lshl_b32 s99, s99, {FS+FM}\ns_add_u32 s99, s99, {WS_F2}\nv_and_b32 v{V_L4}, 15, v0\nv_lshlrev_b32 v{V_L4}, {FS}, v{V_L4}')
    pre = {0: [0, 1], 1: [2, 3], 2: [4, 10], 3: [5, 6], 4: [7, 11], 5: [8, 9]}
    if 'pb' in OPT: pre = {-1: [0, 1], 0: [2, 3], 1: [4, 10], 2: [5], 3: [6], 4: [7], 5: [8, 9]}
    if 'pc' in OPT: pre = {1: [0, 1], 2: [2, 3], 3: [4, 5], 4: [6, 7], 5: [8, 9], 6: [10, 11]}
    if 'pd' in OPT: pre = {2: [0, 1, 2], 3: [3, 4, 5], 4: [6, 7], 5: [8, 9], 6: [10, 11]}
    if 'pe' in OPT: pre = {3: [0, 1, 2], 4: [3, 4, 5], 5: [6, 7, 8], 6: [9, 10, 11]}
    if 'pg' in OPT: pre = {4: [0, 1, 2], 5: [3, 4, 5], 6: [6, 7]}
    TC = min(pre)
    NPRE = sum(len(v) for v in pre.values())
    def hook(x):
        if HL and x == -2:
            a(f's_cmp_lt_u32 s{Q_J}, 12\ns_cbranch_scc0 k_hl0')
            hstores()
            a('k_hl0:')
        if HL and x == -3:
            a(f's_cmp_lt_u32 s{Q_J}, 12\ns_cbranch_scc1 k_hl1\ns_waitcnt vmcnt(0)\nk_hl1:\ns_waitcnt vmcnt(4)')
            return True
        if HL and x == (1 if 'hf1' in OPT else 0):
            a('s_waitcnt vmcnt(0)'); flag(a, 0)
        if 'prio' in OPT:
            if x == -2: a(f's_cmp_eq_u32 s{S_P}, 0\ns_cbranch_scc1 k_pr0\ns_setprio 1\nk_pr0:')
            if x == (2 if 'pr2' in OPT else 3 if 'pr3' in OPT else 1): a('s_setprio 0')
        if x == TC - 1:
            a(f'buffer_load_dword v{V_PL}, v{V_L4}, {WSR}, s99 offen {SC}')
        if x == TC:
            a('s_waitcnt vmcnt(0)')
            spin(a, V_L4, WSR, 's99', 1, True)
        g_ = []
        for r in pre.get(x, []): g_ += issue_a(r)
        for s_, tag in g_: a.vm.append(tag)
        return [s_ for s_, tag in g_]
    st3.compute(a, prof, SC, hook)
    srd(a, SRD_O, S_OUT, 2048 * 1280)
    a4 = lambda f, t_: V4_ACC + (f * 2 + t_) * 4
    a(f'''v_and_b32 v2, 15, v0
    v_lshrrev_b32 v3, 4, v0
    v_mul_u32_u24 v3, {PS}, v3
    v_lshl_add_u32 v4, v2, 4, v3
    v_and_b32 v3, 3, v0
    v_lshlrev_b32 v3, 3, v3
    v_lshrrev_b32 v2, 2, v2
    v_lshl_add_u32 v2, v2, 7, v3
    ''')
    if WF: a(f'v_and_b32 v3, 31, v0\nv_lshlrev_b32 v3, 2, v3\ns_add_u32 s99, s{Q_G}, {WS_F3}')
    else: a(f'v_bfe_u32 v3, v0, 3, 2\nv_lshlrev_b32 v3, 5, v3\nv_and_or_b32 v3, v0, 7, v3\nv_lshlrev_b32 v3, 2, v3\ns_lshr_b32 s99, s{Q_MT}, 2\ns_lshl_b32 s99, s99, 9\ns_add_u32 s99, s99, {WS_F3}')
    a(f'''
    s_mul_i32 s{Q_O}, s{Q0}, {4*PS}
    s_add_u32 s{Q_O}, s{Q_O}, s{Q_G}
    s_lshl_b32 s{Q_O}, s{Q_O}, 1
    s_add_u32 s{Q_O}, s{Q_O}, {WS_O - 12*32*PS}
    s_lshl_b32 s{Q_G}, s{Q_G}, 2
    s_add_u32 s{Q_G}, s{Q_G}, {WS_G}''')
    a.vmem(f'buffer_load_dwordx2 {vr(V_G1,2)}, v2, {WSR}, s{Q_G} offen {SC}', 'g')
    def rds(r):
        sl = r % NS
        return [f'ds_read_b128 {vr(V4_F+20*(r&1)+4*f,4)}, v{[V_RA,V_RA2,V_RA3][sl//3]} offset:{(sl%3)*SLOT+f*1024}' for f in range(5)]
    for l in rds(0): a(l)
    t = 5
    RED = SLOT
    a(f'''
    v_and_b32 v{t}, 15, v0
    v_mul_u32_u24 v{t}, 336, v{t}
    v_lshrrev_b32 v{t+1}, 4, v0
    v_lshl_add_u32 v{t}, v{t+1}, 4, v{t}
    s_mul_i32 s{Q2}, s{S_W}, 10752
    s_add_u32 s{Q2}, s{Q2}, {RED}
    v_add_u32 v{t}, s{Q2}, v{t}
    v_mul_u32_u24 v{t+1}, 26, v0
    v_lshrrev_b32 v{t+1}, 8, v{t+1}
    v_mul_u32_u24 v{t+2}, 10, v{t+1}
    v_sub_u32 v{t+2}, v0, v{t+2}
    v_and_b32 v{t+3}, 1, v{t+1}
    v_lshlrev_b32 v{t+3}, 4, v{t+3}
    v_bfe_u32 v{t+4}, v{t+1}, 1, 1
    s_lshl_b32 s{Q2}, s{Q0}, 2
    v_add3_u32 v{t+3}, v{t+3}, v{t+4}, s{Q2}
    v_mul_u32_u24 v{t+3}, 336, v{t+3}
    v_lshl_add_u32 v{t+3}, v{t+2}, 5, v{t+3}
    s_mul_i32 s{Q2}, s{S_P}, {4*10752}
    s_add_u32 s{Q2}, s{Q2}, {RED}
    v_add_u32 v{t+3}, s{Q2}, v{t+3}
    v_mul_u32_u24 v{t+1}, 1280, v{t+1}
    v_lshl_add_u32 v{t+1}, v{t+2}, 4, v{t+1}
    s_lshl_b32 s{Q_HO}, s{Q_MT}, 3
    s_add_u32 s{Q_HO}, s{Q_HO}, s{S_W}
    s_mul_i32 s{Q_HO}, s{Q_HO}, {8*1280}
    s_mul_i32 s{Q3}, s{Q_N}, 160
    s_add_u32 s{Q_HO}, s{Q_HO}, s{Q3}
    s_add_u32 s{Q3}, s{Q_HO}, {4*1280}
    ''')
    RF = 2 if 'rf2' in OPT else 0
    RP = 10 if 'rp10' in OPT else 8 if 'rp8' in OPT else 9
    asched = {r: [] for r in range(17)}
    for i, rr in enumerate(range(NPRE, 12)): asched[i if NPRE < 8 else 2 * i + 1].append(rr)
    for i, rr in enumerate(range(12, 17)): asched[RP + (0, 0, 1, 1, 1)[i]].append(rr)
    for r in range(17):
        need = [f'a{r}'] + (['f3'] if r == RP else []) + (['ost'] if r == RF else [])
        if r % 2 == 0: need.append(f'w{r}')
        a.vmwait(need, 'lgkmcnt(0)')
        if r == RF and WF: flag(a, 1); a.vm.append('fl')
        if r % 2 == 0 and r < 16: a('s_barrier')
        if r == RF and not WF:
            a(f's_cmp_eq_u32 s{S_W}, 0\ns_cbranch_scc0 k_f3')
            flag(a, 1)
            a('k_f3:')
        if r in (0, 4, 9, 12): stamp(a, {0: 8, 4: 11, 9: 12, 12: 13}[r], prof)
        if r == RP: spin(a, 3, WSR, 's99', 1, True)
        if r == 12:
            a(f'v_sub_f32 v{V_G1}, 1.0, v{V_G1}\nv_sub_f32 v{V_G1+1}, 1.0, v{V_G1+1}\ns_nop 4')
            for f in range(5):
                for t_ in range(2):
                    for i in range(4): a(f'v_mul_f32 v{a4(f,t_)+i}, v{V_G1+t_}, v{a4(f,t_)+i}')
        if r >= 12: a(f'v_swap_b32 v{AREG[r]+2}, v{AREG[r]+4}\nv_swap_b32 v{AREG[r]+3}, v{AREG[r]+5}\ns_nop 1')
        mf = [f'v_mfma_f32_16x16x32_bf16 {vr(a4(f,t_),4)}, {vr(V4_F+20*(r&1)+4*f,4)}, {vr(AREG[r]+4*t_,4)}, ' + ('0' if r == 0 else vr(a4(f, t_), 4)) for f in range(5) for t_ in range(2)]
        iss = []
        if r == RP - 2: iss.append((f'buffer_load_dword v{V_PL}, v3, {WSR}, s99 offen {SC}', 'f3'))
        wg_ = []
        if r == 0: wg_ = issue_w('w4') + [(w_next(), None)]
        elif r == 1: wg_ = issue_w('w6') + [(w_next(), None)]
        elif r <= 9:
            full = issue_w(f'w{(r & ~1) + 6}') + [(w_next(), None)]
            wg_ = full[:3] if r % 2 == 0 else full[3:]
        aa = []
        for rr in asched[r]: aa += issue_a(rr)
        iss += aa + wg_ if NPRE < 8 else wg_ + aa
        for s_, tag in iss:
            if tag: a.vm.append(tag)
        slots = [[] for _ in range(10)]
        if r < 16:
            for i, l in enumerate(rds(r + 1)): slots[i].append(l)
        n = len(iss)
        for i, (s_, tag) in enumerate(iss): slots[(i * 10) // n if n > 4 else 1 + 2 * i].append(s_)
        if r == 16:
            wr = [f'ds_write_b128 v{t}, {vr(a4(f,tt),4)} offset:{tt*16*336+f*64}' for f in range(5) for tt in range(2)]
            slots[8].append(wr[0]); slots[9] += wr[1:3] + ['s_nop 1'] + wr[3:]
        for m_, sl in zip(mf, slots):
            a(m_)
            for l in sl: a(l)
    stamp(a, 9, prof)
    a('s_waitcnt lgkmcnt(0)\ns_barrier\ns_mov_b32 exec_hi, 0xff')
    R = 26
    for ps in range(2):
        for kq in range(4):
            for h in range(2):
                if ps == 1 and kq == 3 and h == 1: a('s_waitcnt lgkmcnt(14)')
                a(f'ds_read_b128 {vr(R+32*ps+8*kq+4*h,4)}, v{t+3} offset:{kq*10752+ps*2*336+h*16}')
    for ps in range(2):
        b = R + 32 * ps
        a(f's_waitcnt lgkmcnt({8 if ps == 0 else 0})')
        for i in range(8): a(f'v_add_f32 v{b+i}, v{b+i}, v{b+8+i}\nv_add_f32 v{b+16+i}, v{b+16+i}, v{b+24+i}')
        for i in range(8): a(f'v_add_f32 v{b+i}, v{b+i}, v{b+16+i}')
        for k in range(4): a(f'v_cvt_pk_bf16_f32 v{b+8+k}, v{b+2*k}, v{b+2*k+1}')
        a(f'buffer_store_dwordx4 {vr(b+8,4)}, v{t+1}, {sr(SRD_O,4)}, s{Q_HO if ps == 0 else Q3} offen' + (' sc1' if 'osc' in OPT else ' nt' if 'ont' in OPT else ''))
    a('s_mov_b64 exec, -1')
    stamp(a, 10, prof)
    stamp_flush(a, prof, 0)
    if 'fix' in OPT: a('k_fix:\ns_memrealtime s[98:99]\ns_waitcnt lgkmcnt(0)\ns_sub_u32 s98, s98, s100\ns_cmp_lt_u32 s98, 6000\ns_cbranch_scc1 k_fix')
    a('k_end:\ns_endpgm')
    ref = open('gated_mix__sliding_block__swiglu_ffn__prompt.s.ref').read()
    hdr = ref.split('; Override')[0]
    s = hdr + '; @launch grid=(256,1,1) block=(512,1,1) lds=163840\n.amdgcn_target "amdgcn-amd-amdhsa--gfx950"\n.text\n'
    s += f'.globl {NAME}\n.p2align 8\n.type {NAME},@function\n{NAME}:\n' + a.text()
    s += ref[ref.index('.section .rodata'):]
    return s
if __name__ == '__main__':
    open('gated_mix__sliding_block__swiglu_ffn__prompt.s', 'w').write(build())
    open('prof.s', 'w').write(build(True))
    for o in sys.argv[1:]:
        OPT.clear(); OPT.update(o.split('+'))
        open(f'prof_{o}.s', 'w').write(build(True))
        open(f'v_{o}.s', 'w').write(build(False))
```

```python
from base import *
PL = 4128; KB = 0; VB = 6 * PL; LB = 0
S_H, S_QB, T0, T1, T2, T3 = 60, 61, 62, 63, 64, 65
S_MSK = 66
V_Q0, V_Q1 = 4, 8
V_G, V_KA0, V_KA1, V_VA, V_M = 1, 2, 3, 12, 13
V_PM = 14
V_OA = 22
V_K = 26
V_S = 82
V_MG = 130
V_NM = 146
V_O = 162
V_V = 178
V_P = 194
MF = 'v_mfma_f32_32x32x16_bf16'

def ids(a):
    a(f's_and_b32 s{S_H}, s2, 31\ns_lshr_b32 s{S_QB}, s2, 5')

def setup(a):
    t = V_S
    a(f'''
    s_lshl_b32 s{T0}, s{S_W}, 9
    s_add_u32 s{T0}, s{T0}, {LB}
    v_lshl_add_u32 v{t}, v0, 3, s{T0}
    s_lshr_b32 s{T1}, s{S_W}, 2
    s_or_b32 s{T1}, s{T1}, s{S_QB}
    s_cmp_eq_u32 s{T1}, 0
    s_cselect_b32 s{T1}, 0xf149, 0
    v_mov_b32 v{t+2}, s{T1}
    v_mov_b32 v{t+3}, 0
    v_mov_b32 v{t+4}, 0x3f803f80
    v_mov_b32 v{t+5}, 0x3f803f80
    ds_write_b64 v{t}, v[{t+2}:{t+3}] offset:{KB+5*PL}
    ds_write_b64 v{t}, v[{t+4}:{t+5}] offset:{VB+5*PL}
    ''')
    a(f'''
    v_and_b32 v{t}, 31, v0
    v_lshrrev_b32 v{t+1}, 5, v0
    s_lshl_b32 s{T0}, s{S_W}, 8
    s_add_u32 s{T0}, s{T0}, {LB}
    v_lshl_add_u32 v{t+2}, v{t}, 3, s{T0}
    v_mul_u32_u24 v{t+3}, {PL}, v{t+1}
    v_add_u32 v{V_KA1}, v{t+2}, v{t+3}
    v_add_u32 v{V_KA0}, v{V_KA1}, v{t+3}
    v_and_b32 v{t+3}, 3, v0
    v_min_u32 v{t+4}, 1, v{t+3}
    v_add_u32 v{t+4}, 4, v{t+4}
    v_and_b32 v{t+5}, 16, v0
    v_cmp_eq_u32 vcc, 0, v{t+5}
    v_bfe_u32 v{t+5}, v0, 2, 2
    v_lshl_add_u32 v{t+5}, v{t+1}, 2, v{t+5}
    v_cndmask_b32 v{t+3}, v{t+4}, v{t+3}, vcc
    v_mul_u32_u24 v{t+3}, {PL}, v{t+3}
    v_lshl_add_u32 v{t+3}, v{t+5}, 3, v{t+3}
    v_add_u32 v{V_VA}, s{T0}, v{t+3}
    ''')
    for e in range(16):
        g, r = e >> 2, e & 3
        for hf in range(2):
            i = 8 * g + 4 * hf + r
            a(f's_mov_b32 s{S_MSK+2*e+hf}, {hex((0xffffffff << i) & 0xffffffff)}')
    a(f'v_mov_b32 v{t+4}, 0xffff')
    for k in range(8):
        a(f'v_cndmask_b32 v{V_PM+k}, 0, v{t+4}, {sr(S_MSK+4*k,2)}\nv_cndmask_b32 v{V_PM+k}, v{V_PM+k}, -1, {sr(S_MSK+4*k+2,2)}')
    a(f'''
    s_lshl_b32 s{T0}, s{S_QB}, 3
    s_add_u32 s{T0}, s{T0}, s{S_W}
    s_lshl_b32 s{T0}, s{T0}, 8
    s_mul_i32 s{T1}, s{S_H}, {5*PS}
    s_add_u32 s{T0}, s{T0}, s{T1}
    s_add_u32 s{T0}, s{T0}, {WS_O}
    v_lshl_add_u32 v{t+2}, v{t}, 3, s{T0}
    v_mul_u32_u24 v{V_OA}, {PS}, v{t+1}
    v_add_u32 v{V_OA}, v{V_OA}, v{t+2}
    v_add_u32 v{V_OA+1}, {2*PS}, v{V_OA}
    v_lshl_add_u32 v{V_OA+2}, v{t+1}, 30, v{t+2}
    v_add_u32 v{V_OA+2}, {4*PS}, v{V_OA+2}
    v_mov_b32 v{V_K+54}, 0
    v_mov_b32 v{V_K+55}, 0
    v_mov_b32 v{V_Q1+2}, 0
    v_mov_b32 v{V_Q1+3}, 0
    ''')

U0, U1, U2, U3, U4, U5, U6, U7 = 4, 5, 6, 7, 8, 9, 10, 11
def loads_pre(a):
    t = V_S + 16
    a(f'''
    s_and_b32 s{T0}, s{S_W}, 3
    s_lshr_b32 s{T1}, s{S_W}, 2
    s_lshl_b32 s{U1}, s{S_QB}, 1
    s_add_u32 s{U1}, s{U1}, s{T0}
    s_sub_u32 s{U1}, s{U1}, 2
    s_cselect_b32 s{U1}, s{T0}, s{U1}
    s_lshl_b32 s{U1}, s{U1}, 10
    s_add_u32 s{T3}, s{S_H}, 32
    s_mul_i32 s{T3}, s{T3}, 5
    s_mul_i32 s{T2}, s{T1}, 3
    s_add_u32 s{T3}, s{T3}, s{T2}
    s_mul_i32 s{T3}, s{T3}, {PS}
    s_add_u32 s{U1}, s{U1}, s{T3}
    s_mul_i32 s{T2}, s{T2}, {PL}
    s_lshl_b32 s{T0}, s{T0}, 10
    s_add_u32 s{U0}, s{T0}, s{T2}
    s_mul_i32 s{U6}, s{T1}, {157*PS}
    s_mul_i32 s{U7}, s{T1}, {VB - 3*PL}
    v_lshlrev_b32 v{t}, 4, v0
    v_and_b32 v{t+1}, 31, v0
    v_lshrrev_b32 v{t+2}, 5, v0
    v_lshlrev_b32 v{t+3}, 3, v{t+1}
    v_mul_u32_u24 v{t+2}, {2*PS}, v{t+2}
    v_add_u32 v{t+2}, v{t+2}, v{t+3}
    v_lshrrev_b32 v{t+1}, 3, v{t+1}
    v_lshlrev_b32 v{t+1}, 5, v{t+1}
    v_and_or_b32 v{t+1}, v0, 7, v{t+1}
    v_lshlrev_b32 v{t+1}, 2, v{t+1}
    s_lshl_b32 s{T0}, s{S_QB}, 3
    s_add_u32 s{T0}, s{T0}, s{S_W}
    s_lshl_b32 s{T1}, s{T0}, 8
    s_mul_i32 s{T2}, s{S_H}, {5*PS}
    s_add_u32 s{U2}, s{T1}, s{T2}
    s_add_u32 s{U3}, s{U2}, {PS}
    s_add_u32 s{U4}, s{U2}, {4*PS}
    s_lshl_b32 s{T0}, s{T0}, 9
    s_add_u32 s{U5}, s{T0}, {WS_G}
    ''')
def loads(a, sc=''):
    t = V_S + 16
    def dma(lds, glob, third, tag):
        a(f's_add_u32 m0, s{U0}, {LB+lds}\ns_add_u32 s{T0}, s{U1}, {glob}')
        if third: a(f's_add_u32 m0, m0, s{U7}\ns_add_u32 s{T0}, s{T0}, s{U6}')
        a.vmem(f'buffer_load_dwordx4 v{t}, {sr(SRD_WS,4)}, s{T0} offen {sc} lds', tag)
    for p in range(3): dma(KB + p * PL, p * PS, p == 2, 'kv')
    a.vmem(f'buffer_load_dwordx2 {vr(V_Q0,2)}, v{t+2}, {sr(SRD_WS,4)}, s{U2} offen {sc}', 'kv')
    a.vmem(f'buffer_load_dwordx2 {vr(V_Q0+2,2)}, v{t+2}, {sr(SRD_WS,4)}, s{U3} offen {sc}', 'kv')
    a.vmem(f'buffer_load_dwordx2 {vr(V_Q1,2)}, v{t+3}, {sr(SRD_WS,4)}, s{U4} offen {sc}', 'kv')
    a.vmem(f'buffer_load_dword v{V_G}, v{t+1}, {sr(SRD_WS,4)}, s{U5} offen {sc}', 'kv')
    for p in range(2): dma(VB + p * PL, (160 + p) * PS, False, 'v')

def qk(T, d, c):
    k = V_K + 6 * T
    return [f'{MF} {vr(d,16)}, {vr(k,4)}, {vr(V_Q0,4)}, {c}', f'{MF} {vr(d,16)}, {vr(k+4,4)}, {vr(V_Q1,4)}, {vr(d,16)}']
def vread(T, st):
    return [f'ds_read_b64_tr_b16 {vr(V_V+8*st+4*m+2*h,2)}, v{V_VA} offset:{VB+(32*T+16*m+8*h)*8}' for m in range(2) for h in range(2)]
def pv(st, pst, first=False):
    return [f'{MF} {vr(V_O,16)}, {vr(V_V+8*st+4*m,4)}, {vr(V_P+8*pst+4*m,4)}, ' + ('0' if first and m == 0 else vr(V_O, 16)) for m in range(2)]
def spread(valu, mf):
    out = []; n = len(valu); k = len(mf)
    pos = [(i * n) // k for i in range(k)]
    j = 0
    for i, v in enumerate(valu):
        while j < k and pos[j] == i:
            out.append(mf[j]); j += 1
        out.append(v)
    return out + mf[j:]

def compute(a, prof, sc='', hook=lambda x: None):
    a.vmwait(['kv'] if 'vsplit' in OPT else ['kv', 'v'], 'lgkmcnt(0)')
    a('s_barrier')
    stamp(a, 6, prof)
    hook(-2)
    order = [0, 8, 1, 2, 3, 4, 5, 6, 7]
    def kread(T):
        k = V_K + 6 * T
        return [f'ds_read_b64 {vr(k,2)}, v{V_KA0} offset:{KB+256*T}', f'ds_read_b64 {vr(k+2,2)}, v{V_KA0} offset:{KB+PL+256*T}',
                f'ds_read_b64 {vr(k+4,2)}, v{V_KA1} offset:{KB+4*PL+256*T}']
    for T in (0, 1, 8, 2, 3):
        for l in kread(T): a(l)
    a(f'''
    s_mov_b32 exec_lo, 0
    v_mov_b32 v{V_Q1}, 0x3f80
    v_mov_b32 v{V_Q1+1}, 0
    s_mov_b32 exec_lo, -1
    s_waitcnt lgkmcnt(6)
    ''')
    S = lambda i: V_S + 16 * i
    for l in qk(0, S(0), '0') + qk(8, S(1), '0'): a(l)
    a('s_waitcnt lgkmcnt(0)')
    for T in (4, 5, 6, 7):
        for l in kread(T): a(l)
    for l in qk(1, S(2), '0'): a(l)
    cn = [f'v_cndmask_b32 v{V_MG+e}, v{S(0)+e}, v{S(1)+e}, {sr(S_MSK+2*e,2)}' for e in range(16)]
    def mx(b, first=False):
        o = []
        for e in range(0, 16, 2):
            o.append(f'v_max_f32 v{V_M}, v{b}, v{b+1}' if first and e == 0 else f'v_max3_f32 v{V_M}, v{b+e}, v{b+e+1}, v{V_M}')
        return o
    for l in cn: a(l)
    a('s_waitcnt lgkmcnt(0)')
    for l in spread(mx(V_MG, True), qk(2, S(0), '0')): a(l)
    buf = {1: 2, 2: 0, 3: 1, 4: 2, 5: 0, 6: 1, 7: 2}
    for l in spread(mx(S(2)), qk(3, S(1), '0')): a(l)
    ex1 = []
    for T in range(2, 8):
        if T == 4: ex1 = hook(-1.5) or []
        if ex1: a(ex1.pop(0))
        if T + 2 <= 7:
            for l in spread(mx(S(buf[T])), qk(T + 2, S(buf[T+2]), '0')): a(l)
        else:
            if T == 7: a('s_nop 1')
            for l in mx(S(buf[T])): a(l)
    if 'vsplit' in OPT: a('s_waitcnt vmcnt(0)\ns_barrier')
    a.vm = []
    for l in vread(0, 0) + vread(8, 1): a(l)
    extra = hook(-1) or []
    a(f'''
    v_mov_b32 v{V_NM}, v{V_M}
    s_nop 1
    v_permlane32_swap_b32 v{V_NM}, v{V_M}
    s_nop 1
    v_max_f32 v{V_M}, v{V_M}, v{V_NM}
    ''')
    for e in range(16): a(f'v_sub_f32 v{V_NM+e}, 0, v{V_M}')
    NM = vr(V_NM, 16)
    val = [f'v_sub_f32 v{V_MG+e}, v{V_MG+e}, v{V_M}' for e in range(16)] + [f'v_exp_f32 v{V_MG+e}, v{V_MG+e}' for e in range(16)]
    val += [f'v_cvt_pk_bf16_f32 v{V_P+k}, v{V_MG+2*k}, v{V_MG+2*k+1}' for k in range(8)]
    val += [f'v_and_b32 v{V_P+8+k}, v{V_P+k}, v{V_PM+k}' for k in range(8)] + [f'v_xor_b32 v{V_P+k}, v{V_P+k}, v{V_P+8+k}' for k in range(8)]
    for l in val[:2]: a(l)
    seq = spread(val[2:], qk(1, S(1 % 3), NM) + qk(2, S(2 % 3), NM))
    if extra: seq = seq[:2] + spread(seq[2:], extra)
    for l in seq: a(l)
    pend = pv(0, 0, True) + pv(1, 1)
    extra = hook(0) or []
    for T in range(1, 8):
        b = S(T % 3); ps = (T + 1) & 1
        ex = [f'v_exp_f32 v{b+e}, v{b+e}' for e in range(16)]
        cv = [f'v_cvt_pk_bf16_f32 v{V_P+8*ps+k}, v{b+2*k}, v{b+2*k+1}' for k in range(8)]
        pend[0] = 's_waitcnt lgkmcnt(0)\n' + pend[0]
        pend[-1] += '\n' + '\n'.join(vread(T, ps))
        mf = pend + (qk(T + 2, S((T + 2) % 3), NM) if T + 2 <= 7 else [])
        for l in ex[:2]: a(l)
        seq = spread(ex[2:], pend) + spread(cv, mf[4:]) if T == 1 else spread(ex[2:] + cv, mf)
        if extra: seq = seq[:2] + spread(seq[2:], extra)
        for l in seq: a(l)
        pend = pv(ps, ps)
        extra = hook(T) or []
    a('s_waitcnt lgkmcnt(0)\ns_nop 0')
    for l in pend: a(l)
    a(f's_nop 11\nv_rcp_f32 v{V_M}, v{V_O+12}\ns_nop 0\nv_mul_f32 v{V_M}, v{V_M}, v{V_G}')
    for e in range(12): a(f'v_mul_f32 v{V_O+e}, v{V_O+e}, v{V_M}')
    for k in range(6): a(f'v_cvt_pk_bf16_f32 v{V_P+k}, v{V_O+2*k}, v{V_O+2*k+1}')
    for g in range(3):
        a.vmem(f'buffer_store_dwordx2 {vr(V_P+2*g,2)}, v{V_OA+g}, {sr(SRD_WS,4)}, 0 offen {sc}', 'ost')
    stamp(a, 7, prof)
```

```python
import sys, struct
from base import *
import st1, st3
from st1 import *
NAME = 'gated_mix__sliding_block__swiglu_ffn__prompt_kernel'
SC = 'sc1'
WS_F1, WS_F2, WS_F3, WS_F0 = 0x1510000, 0x1512000, 0x1514000, 0x1515000
S_P = 27
V_L16, V_FLG, V_ONE, V_PL, V_L4, V_RA, V_RA2, V_RA3, V_G1 = 244, 245, 246, 247, 248, 249, 250, 251, 242
V_H = 210
Q_MT, Q_N, Q0, Q1, Q2, Q3, Q_A0, Q_A1, Q_WO, Q_WL, Q_RH, Q_RO, Q_R, Q_PR, Q_HO, Q_J, Q_G, Q_O, Q_WA, Q_WM = range(32, 52)
SRD_O = 28
SLOT = 20480; NS = 8
WSR = sr(SRD_WS, 4)
uid = [0]

def spin(a, vaddr, srd_, soff, expect, first_issued=False):
    uid[0] += 1; L = f'spin{uid[0]}'
    a('s_mov_b32 s98, 0')
    if first_issued: a(f's_branch {L}c')
    a(f'''{L}:
    buffer_load_dword v{V_PL}, v{vaddr}, {srd_}, {soff} offen {SC}
    s_waitcnt vmcnt(0)
    {L}c:
    v_cmp_ne_u32 vcc, {expect}, v{V_PL}
    s_add_u32 s98, s98, 1
    s_cbranch_vccz {L}d
    s_cmp_lt_u32 s98, 0x40000
    s_cbranch_scc1 {L}
    {L}d:''')
def flag(a, lane):
    a(f's_mov_b64 exec, {1 << lane}\nbuffer_store_dword v{V_ONE}, v{V_FLG}, {WSR}, 0 offen {SC}\ns_mov_b64 exec, -1')

def s4_setup(a):
    a(f'''
    s_and_b32 s{Q0}, s2, 7
    s_lshr_b32 s{Q1}, s2, 3
    s_lshr_b32 s{Q_MT}, s{Q0}, 1
    s_lshl_b32 s{Q_MT}, s{Q_MT}, 3
    s_and_b32 s{Q2}, s{Q1}, 7
    s_add_u32 s{Q_MT}, s{Q_MT}, s{Q2}
    s_and_b32 s{Q_N}, s{Q0}, 1
    s_lshl_b32 s{Q_N}, s{Q_N}, 2
    s_lshr_b32 s{Q1}, s{Q1}, 3
    s_add_u32 s{Q_N}, s{Q_N}, s{Q1}
    s_lshl_b32 s{Q_RH}, s{Q1}, 1
    s_add_u32 s{Q_RH}, s{Q_RH}, s{Q2}
    s_and_b32 s{Q_RH}, s{Q_RH}, {0 if 'norot4' in OPT else 7}
    s_mul_i32 s{Q_RO}, s{Q_RH}, 5
    s_lshr_b32 s{Q_RO}, s{Q_RO}, 3
    s_mul_i32 s{Q_RH}, s{Q_RH}, 3
    s_lshr_b32 s{Q_RH}, s{Q_RH}, 1
    s_and_b32 s{Q0}, s{S_W}, 3
    s_lshl_b32 s{Q2}, s{Q_MT}, 1
    s_add_u32 s{Q2}, s{Q2}, s{S_P}
    s_lshl_b32 s{Q_G}, s{Q2}, 7
    s_mul_i32 s{Q_A0}, s{Q2}, {2*68}
    s_add_u32 s{Q_A0}, s{Q_A0}, s{Q0}
    s_lshl_b32 s{Q_A0}, s{Q_A0}, 10
    s_add_u32 s{Q_A0}, s{Q_A0}, {WS_A2}
    s_add_u32 s{Q_A1}, s{Q_A0}, {68*1024}
    s_lshl_b32 s{Q2}, s{Q0}, 3
    s_add_u32 s{Q2}, s{Q2}, s{Q_N}
    s_mul_i32 s{Q_WO}, s{Q2}, 5120
    s_add_u32 s{Q_WO}, s{Q_WO}, {WS_W2}
    s_mul_i32 s{Q_WL}, s{Q0}, 5120
    s_xor_b32 s{Q_PR}, s{S_P}, 1
    s_mov_b32 s{Q_J}, s{S_J}
    v_add_u32 v{V_RA}, s{Q_WL}, v{V_L16}
    v_add_u32 v{V_RA2}, {3*SLOT}, v{V_RA}
    v_add_u32 v{V_RA3}, {6*SLOT}, v{V_RA}
    ''')
def rot(r):
    if r < 12: return f's_add_u32 s{Q_R}, s{Q_RH}, {r}\ns_cmp_ge_u32 s{Q_R}, 12\ns_cselect_b32 s{Q2}, 12, 0\ns_sub_u32 s{Q_R}, s{Q_R}, s{Q2}\n'
    return f's_add_u32 s{Q_R}, s{Q_RO}, {r}\ns_cmp_ge_u32 s{Q_R}, 17\ns_cselect_b32 s{Q2}, 5, 0\ns_sub_u32 s{Q_R}, s{Q_R}, s{Q2}\n'
def issue_w(tag):
    g = []
    for f in range(5):
        pre = ''
        if f == 0: pre = f's_mov_b32 m0, s{Q_WM}\ns_add_u32 s{Q_PR}, s{Q_PR}, 2\n'
        if f == 4: pre = f's_add_u32 m0, m0, 4096\ns_add_u32 s{Q_WA}, s{Q_WA}, 4096\n'
        g.append((pre + f'buffer_load_dwordx4 v{V_L16}, {WSR}, s{Q_WA} offen offset:{(f&3)*1024} {SC} lds', tag))
    return g
def w_next():
    return f'''s_cmp_lt_u32 s{Q_PR}, 12
    s_cselect_b32 s{Q_WA}, s{Q_RH}, s{Q_RO}
    s_cselect_b32 s{Q_WM}, 12, 17
    s_cselect_b32 s{Q1}, 12, 5
    s_add_u32 s{Q_WA}, s{Q_WA}, s{Q_PR}
    s_cmp_ge_u32 s{Q_WA}, s{Q_WM}
    s_cselect_b32 s{Q1}, s{Q1}, 0
    s_sub_u32 s{Q_WA}, s{Q_WA}, s{Q1}
    s_mul_i32 s{Q_WA}, s{Q_WA}, {160*1024}
    s_add_u32 s{Q_WA}, s{Q_WA}, s{Q_WO}
    s_and_b32 s{Q_WM}, s{Q_PR}, 7
    s_mul_i32 s{Q_WM}, s{Q_WM}, {SLOT}
    s_add_u32 s{Q_WM}, s{Q_WM}, s{Q_WL}'''
AREG = [210 + 8 * r for r in range(4)] + [26 + 8 * r for r in range(7)] + [14] + [82 + 8 * r for r in range(5)]
V4_ACC = 130; V4_F = 170
def issue_a(r):
    g = []
    if r >= 12:
        for t in range(2):
            pre = rot(r) + f's_mul_i32 s{Q_R}, s{Q_R}, {32*PS}\ns_add_u32 s{Q2}, s{Q_R}, s{Q_O}\n' if t == 0 else f's_add_u32 s{Q2}, s{Q2}, {4*PS}\n'
            g.append((pre + f'buffer_load_dwordx4 {vr(AREG[r]+4*t,4)}, v4, {WSR}, s{Q2} offen {SC}', f'a{r}'))
        return g
    for t in range(2):
        pre = rot(r) + f's_lshl_b32 s{Q_R}, s{Q_R}, 12\n' if t == 0 else ''
        g.append((pre + f's_add_u32 s{Q2}, s{Q_R}, s{Q_A0+t}\nbuffer_load_dwordx4 {vr(AREG[r]+4*t,4)}, v{V_L16}, {WSR}, s{Q2} offen {SC}', f'a{r}'))
    return g

def build(prof=False):
    uid[0] = 0
    config(5)
    XB, RB = st1.XBASE, st1.RBASE
    a = Asm(); name = 'k'
    common_entry(a, name)
    stamp(a, 0, prof)
    if 'fix' in OPT: a('s_memrealtime s[100:101]')
    t = V_T
    a(f'''
    s_and_b32 s{S_T0}, s2, 7
    s_lshr_b32 s{S_T1}, s2, 3
    s_and_b32 s{S_MB}, s{S_T0}, 1
    s_lshl_b32 s{S_MB}, s{S_MB}, 3
    s_and_b32 s{S_T2}, s{S_T1}, 7
    s_add_u32 s{S_MB}, s{S_MB}, s{S_T2}
    s_lshr_b32 s{S_J}, s{S_T0}, 1
    s_lshr_b32 s{S_T1}, s{S_T1}, 3
    s_add_u32 s{S_XM}, s{S_T1}, s{S_T2}
    ''')
    if 'rot' in OPT:
        a(f'''s_add_u32 s{S_XM}, s{S_XM}, s{S_T1}
        s_and_b32 s{S_XM}, s{S_XM}, 7
        s_mul_i32 s{S_XM}, s{S_XM}, 5
        s_lshr_b32 s{S_XM}, s{S_XM}, 2
        s_mov_b32 s{S_CW}, s{S_XM}
        s_mov_b32 s{S_CX}, s{S_XM}''')
    else:
        a(f'''s_and_b32 s{S_XM}, s{S_XM}, {0 if 'x0' in OPT else 1 if 'x1' in OPT else 3}
        s_mov_b32 s{S_CW}, 0
        s_mov_b32 s{S_CX}, 0''')
    a(f'''
    s_lshl_b32 s{S_J if 'map2' in OPT else S_T1}, s{S_J if 'map2' in OPT else S_T1}, 2
    s_add_u32 s{S_J}, s{S_J}, s{S_T1}
    s_mul_i32 s{S_T0}, s{S_J}, 5
    s_sub_u32 s{S_T0}, s{S_T0}, 50
    s_add_u32 s{S_LC0}, s{S_J}, 6
    s_lshr_b32 s{S_LC0}, s{S_LC0}, 3
    s_sub_u32 s{S_LC0}, s{S_J}, s{S_LC0}
    s_cmp_lt_u32 s{S_J}, 12
    s_cselect_b32 s{S_LC0}, s{S_LC0}, s{S_T0}
    s_mov_b32 s{S_STW0}, 3840
    s_cselect_b32 s{S_STW1}, 3072, s{S_STW0}
    s_and_b32 s{S_T0}, s{S_W}, 3
    s_lshr_b32 s{S_P}, s{S_W}, 2
    v_lshrrev_b32 v{t}, 3, v0
    v_and_b32 v{t+1}, 7, v0
    v_bfe_u32 v{t+2}, v0, 4, 1
    s_and_b32 s{S_T3}, s{S_W}, 1
    s_lshl_b32 s{S_T2}, s{S_T3}, 1
    v_or_b32 v{t+2}, s{S_T2}, v{t+2}
    v_lshlrev_b32 v{t+2}, 1, v{t+2}
    v_xor_b32 v{t+2}, v{t+2}, v{t+1}
    v_lshlrev_b32 v{t+2}, 4, v{t+2}
    s_lshl_b32 s{S_T2}, s{S_T0}, 3
    v_add_u32 v{t+3}, s{S_T2}, v{t}
    v_mad_u32_u24 v{V_OW0}, v{t+3}, s{S_STW0}, v{t+2}
    v_mad_u32_u24 v{V_OW1}, v{t+3}, s{S_STW1}, v{t+2}
    s_lshr_b32 s{S_T2}, s{S_W}, 1
    s_lshl_b32 s{S_T2}, s{S_T2}, 5
    s_add_u32 s{S_T2}, s{S_T2}, s{S_T3}
    v_lshl_add_u32 v{t+3}, v{t}, 1, s{S_T2}
    v_mul_u32_u24 v{t+3}, 1280, v{t+3}
    v_lshrrev_b32 v{t+4}, 4, v0
    v_xor_b32 v{t+4}, v{t+4}, v{t+1}
    v_lshl_add_u32 v{V_OX0}, v{t+4}, 4, v{t+3}
    v_xor_b32 v{V_OX1}, 64, v{V_OX0}
    v_add_u32 v{V_OX1}, {16*1280}, v{V_OX1}
    s_xor_b32 s{S_T2}, s{S_P}, 1
    s_mul_i32 s{S_WDS}, s{S_T2}, {WSLOT}
    s_lshl_b32 s{S_T3}, s{S_T0}, 10
    s_add_u32 s{S_WDS}, s{S_WDS}, s{S_T3}
    s_lshl_b32 s{S_T2}, s{S_T2}, 5
    s_mul_i32 s{S_WEND0}, s{S_T2}, s{S_STW0}
    s_mul_i32 s{S_WEND1}, s{S_T2}, s{S_STW1}
    s_lshl_b32 s{S_STW0}, s{S_STW0}, 6
    s_lshl_b32 s{S_STW1}, s{S_STW1}, 6
    s_mul_i32 s{S_SW0}, s{S_XM}, s{S_STW0}
    s_mul_i32 s{S_SW1}, s{S_XM}, s{S_STW1}
    s_add_u32 s{S_SW0}, s{S_SW0}, s{S_WEND0}
    s_add_u32 s{S_SW1}, s{S_SW1}, s{S_WEND1}
    s_lshl_b32 s{S_SX}, s{S_XM}, 7
    s_lshl_b32 s{S_XDS}, s{S_W}, 11
    s_add_u32 s{S_XDS}, s{S_XDS}, {XB}
    s_mul_i32 s{S_T2}, s{S_MB}, {128*1280}
    s_lshl_b32 s{S_T3}, s{S_LC0}, 7
    s_waitcnt lgkmcnt(0)
    ''')
    srd(a, SRD_X, S_X, 128 * 1280, f's{S_T2}')
    nq = 639 * 3840 + 128; ng = 639 * 3072 + 128
    srd(a, SRD_W, S_WQKV, nq, f's{S_T3}')
    a(f's_cmp_lt_u32 s{S_J}, 12\ns_cbranch_scc1 k_s1g')
    for c in range(1, 5):
        srd(a, SRD_W + 4 * c, SRD_W, nq, 128 * c)
    sp = 'split' in OPT
    a(f's_branch k_s1h\nk_s1g:\ns_lshl_b32 s{S_T3}, s{S_J}, {7 if sp else 8}')
    srd(a, SRD_W + 4, S_WG, ng, f's{S_T3}')
    srd(a, SRD_W + 8, SRD_W + 4, ng, 1536 if sp else 128)
    srd(a, SRD_W + 12, S_WU, ng, f's{S_T3}')
    srd(a, SRD_W + 16, SRD_W + 12, ng, 1536 if sp else 128)
    a(f's_and_b32 s{S_T3}, s{S_J}, 7\ns_cmp_eq_u32 s{S_T3}, 1\ns_cselect_b32 s{SRD_W+2}, 0, s{SRD_W+2}')
    a('k_s1h:')
    stamp(a, 1, prof)
    def groups(lbl, g1, g0):
        a(f's_cmp_eq_u32 s{S_P}, 0\ns_cbranch_scc1 {lbl}0')
        for grp in g1:
            for g in grp(a): a(g)
        a(f's_branch {lbl}e\n{lbl}0:')
        for grp in g0:
            for g in grp(a): a(g)
        a(f'{lbl}e:')
    PF = 'pf' in OPT
    PFN = int(PF and 'pf0' not in OPT)
    V_PF, V_PD, S_PO, S_PS = 252, 253, 93, 94
    def pf_setup():
        a(f'''
        s_mov_b64 s[96:97], s[{SRD_X}:{SRD_X+1}]
        s_mov_b32 s98, s{SRD_X+2}
        s_mov_b32 s99, 0x20000''')
        for c in range(5):
            b = SRD_W + 4 * c
            a(f's_cmp_eq_u32 s{S_W}, {c}\ns_cselect_b64 s[96:97], s[{b}:{b+1}], s[96:97]\ns_cselect_b32 s98, s{b+2}, s98')
        a(f'''
        s_cmp_eq_u32 s{S_W}, 0
        s_cselect_b32 s{S_PO}, s{S_STW0}, s{S_STW1}
        s_lshr_b32 s78, s{S_PO}, 6
        s_and_b32 s79, s{S_MB}, 7
        s_lshl_b32 s79, s79, 3
        v_lshl_add_u32 v{t+5}, v{t}, 6, v{t+1}
        v_add_u32 v{t+5}, s79, v{t+5}
        v_mul_u32_u24 v{V_PF}, s78, v{t+5}
        v_cmp_le_u32 vcc, 24, v0
        v_mov_b32 v{t+5}, 0x40000000
        s_cmp_lt_u32 s{S_W}, 5
        v_cndmask_b32 v{V_PF}, v{V_PF}, v{t+5}, vcc
        s_cbranch_scc1 k_pfw
        s_lshr_b32 s79, s2, 6
        s_lshl_b32 s79, s79, 5
        v_add_u32 v{t+5}, s79, v0
        s_sub_u32 s79, s{S_W}, 5
        s_lshl_b32 s79, s79, 7
        v_mov_b32 v{V_PF}, s79
        v_mov_b32 v{t+6}, 1280
        v_mad_u32_u24 v{V_PF}, v{t+5}, v{t+6}, v{V_PF}
        s_mov_b32 s{S_PO}, 128
        k_pfw:
        s_mul_i32 s{S_PS}, s{S_PO}, 3''')
    def pf():
        if PF: a(f's_mov_b32 exec_hi, 0\nbuffer_load_dword v{V_PD}, v{V_PF}, s[96:99], s{S_PO} offen\ns_mov_b32 exec_hi, -1\ns_add_u32 s{S_PO}, s{S_PO}, s{S_PS}')
    def slowpf():
        a(f'''
        s_mov_b64 s[96:97], s[{S_X}:{S_X+1}]
        s_mov_b32 s98, {2048*1280}
        s_mov_b32 s99, 0x20000
        s_and_b32 s78, s{S_W}, 3
        s_cmp_eq_u32 s78, 1
        s_cselect_b64 s[96:97], s[{S_WQKV}:{S_WQKV+1}], s[96:97]
        s_cselect_b32 s98, {640*3840}, s98
        s_cmp_eq_u32 s78, 2
        s_cselect_b64 s[96:97], s[{S_WG}:{S_WG+1}], s[96:97]
        s_cselect_b32 s98, {640*3072}, s98
        s_cmp_eq_u32 s78, 3
        s_cselect_b64 s[96:97], s[{S_WU}:{S_WU+1}], s[96:97]
        s_cselect_b32 s98, {640*3072}, s98
        s_lshl_b32 s78, s{S_P}, 8
        s_add_u32 s78, s78, s2
        s_lshl_b32 s78, s78, 10
        v_lshlrev_b32 v{V_PF}, 19, v0
        s_mov_b64 exec, 31
        buffer_load_dword v{V_PD}, v{V_PF}, s[96:99], s78 offen offset:384
        s_mov_b64 exec, -1''')
    def gupf():
        R0 = 0 if 'gr0' in OPT else 128
        nl = (640 - R0) * 24 // 1024
        a(f'''
        s_cmp_eq_u32 s{S_P}, 0
        s_cselect_b64 s[96:97], s[{S_WG}:{S_WG+1}], s[{S_WU}:{S_WU+1}]
        s_mov_b32 s98, {640*3072}
        s_mov_b32 s99, 0x20000
        s_and_b32 s78, s{S_W}, 3
        s_lshl_b32 s78, s78, 8
        s_add_u32 s78, s78, s2
        s_mul_i32 s78, s78, {nl*128}
        s_add_u32 s78, s78, {R0*3072}
        v_lshlrev_b32 v{V_PF}, 7, v0
        s_mov_b64 exec, {hex((1 << nl) - 1)}
        buffer_load_dword v{V_PD}, v{V_PF}, s[96:99], s78 offen
        s_mov_b64 exec, -1''')
    if 'gp0' in OPT: gupf()
    if 'sp0' in OPT: slowpf()
    if 'pf0' in OPT: pf_setup(); pf()
    groups('k_pa', (dma_w, dma_x), (dma_x, dma_w))
    if PFN: pf_setup(); pf()
    if 'sp1' in OPT: slowpf(); PFN += 1
    if 'gp1' in OPT: gupf(); PFN += 1
    srd(a, SRD_WS, S_WS, WS_SIZE)
    srd(a, SRD_M, S_GW, 1280)
    a(f'''
    v_lshlrev_b32 v{V_L16}, 4, v0
    v_lshlrev_b32 v{V_L4}, 2, v0
    s_mul_i32 s{S_RU}, s2, 3
    s_add_u32 s{S_RU}, s{S_RU}, s{S_W}
    s_cmp_lt_u32 s{S_W}, 3
    s_cselect_b32 s{S_RU}, s{S_RU}, 1000
    s_cmp_ge_u32 s{S_RU}, 680
    s_cbranch_scc1 k_s1r
    s_mul_i32 s78, s{S_RU}, 6554
    s_lshr_b32 s78, s78, 16
    s_mul_i32 s79, s78, 10
    s_sub_u32 s79, s{S_RU}, s79
    s_lshl_b32 s79, s79, 7
    s_lshr_b32 s80, s78, 2
    s_lshl_b32 s80, s80, {6 if sp else 7}
    s_and_b32 s81, s78, 3
    s_lshl_b32 s81, s81, 4
    s_add_u32 s80, s80, s81
    s_sub_u32 s81, s78, 48
    s_lshl_b32 s81, s81, 5
    s_cmp_lt_u32 s78, 48
    s_cselect_b32 s80, s80, s81
    s_mov_b32 s81, {16*1280}
    s_mov_b32 s86, {640*1280}
    s_cselect_b32 s81, {(768 if sp else 64)*1280}, s81
    s_cselect_b32 s84, s{S_WD}, s{S_WO}
    s_cselect_b32 s85, s{S_WD+1}, s{S_WO+1}
    s_cselect_b32 s86, {1536*1280}, s86
    s_mov_b32 s87, 0x20000
    s_mul_i32 s80, s80, 1280
    s_add_u32 s80, s80, s79
    v_mul_u32_u24 v{t+12}, 1280, v{t}
    v_lshl_add_u32 v{t+12}, v{t+1}, 4, v{t+12}
    s_lshl_b32 s79, s{S_W}, 12
    s_add_u32 s79, s79, {RB}
    ''')
    for i in range(4):
        a(f's_add_u32 m0, s79, {i*1024}')
        a([f's_nop 0', f's_add_u32 s82, s80, {8*1280}', 's_add_u32 s80, s80, s81', f's_add_u32 s82, s80, {8*1280}'][i])
        a(f'buffer_load_dwordx4 v{t+12}, s[84:87], s{82 if i & 1 else 80} offen' + (' nt' if 'nont' not in OPT else '') + ' lds')
    gx, gw = t + 16, t + 22
    a(f'''k_s1r:
    s_lshl_b32 s{S_T2}, s{S_J}, 3
    s_add_u32 s{S_T2}, s{S_T2}, s{S_W}
    s_mul_i32 s{S_T3}, s{S_T2}, 1280
    buffer_load_dwordx4 {vr(gx,4)}, v{V_L16}, {sr(SRD_X,4)}, s{S_T3} offen
    buffer_load_dword v{gx+4}, v{V_L4}, {sr(SRD_X,4)}, s{S_T3} offen offset:1024
    buffer_load_dwordx4 {vr(gw,4)}, v{V_L16}, {sr(SRD_M,4)}, 0 offen
    buffer_load_dword v{gw+4}, v{V_L4}, {sr(SRD_M,4)}, 0 offen offset:1024
    ''')
    WF = False
    FS = 2 if 'fs2' in OPT else 5
    FM = 5 if 'fs2' in OPT else 4
    if True: a(f'''
    s_lshl_b32 s78, s{S_MB}, {FM}
    s_add_u32 s78, s78, s{S_J}
    s_lshl_b32 s78, s78, {FS}
    s_add_u32 s79, s78, {WS_F2}
    v_mov_b32 v{V_FLG}, s79
    s_add_u32 s78, s78, {WS_F1}
    v_writelane_b32 v{V_FLG}, s78, 2
    s_lshr_b32 s78, s2, 3
    s_lshl_b32 s78, s78, 5
    s_and_b32 s79, s2, 7
    s_add_u32 s78, s78, s79
    s_lshl_b32 s78, s78, 2
    s_add_u32 s78, s78, {WS_F3}
    v_writelane_b32 v{V_FLG}, s78, 1
    s_add_u32 s78, s78, {WS_F0 - WS_F3}
    v_writelane_b32 v{V_FLG}, s78, 3
    s_cmp_eq_u32 s2, 0
    s_cbranch_scc0 k_noclr
    s_mul_i32 s78, s{S_W}, 3072
    s_add_u32 s78, s78, {WS_F1}
    v_mov_b32 v{V_ACC}, 0
    v_mov_b32 v{V_ACC+1}, 0
    v_mov_b32 v{V_ACC+2}, 0
    v_mov_b32 v{V_ACC+3}, 0
    buffer_store_dwordx4 {vr(V_ACC,4)}, v{V_L16}, {WSR}, s78 offen {SC}
    buffer_store_dwordx4 {vr(V_ACC,4)}, v{V_L16}, {WSR}, s78 offen offset:1024 {SC}
    buffer_store_dwordx4 {vr(V_ACC,4)}, v{V_L16}, {WSR}, s78 offen offset:2048 {SC}
    k_noclr:''')
    a(f'''
    v_mov_b32 v{V_ONE}, 1
    v_mov_b32 v{t+40}, 0
    v_mov_b32 v{t+41}, 0
    ''')
    RAMP = 'noramp' not in OPT
    if not RAMP: groups('k_pb', (dma_w, dma_x, dma_w), (dma_x, dma_w, dma_x))
    srd(a, SRD_M, S_DBG, 256)
    a(f'''
    v_lshrrev_b32 v{t+12}, 4, v0
    v_bfe_u32 v{t+13}, v0, 2, 2
    v_and_b32 v{t+14}, 3, v0
    v_lshlrev_b32 v{V_WB}, 10, v{t+12}
    v_lshl_add_u32 v{V_WB}, v{t+13}, 7, v{V_WB}
    v_lshl_add_u32 v{V_WB}, v{t+14}, 3, v{V_WB}
    v_bfe_u32 v{t+14}, v0, 3, 2
    s_and_b32 s{S_T0}, s{S_W}, 3
    v_xor_b32 v{t+14}, s{S_T0}, v{t+14}
    v_lshl_add_u32 v{V_WB}, v{t+14}, 5, v{V_WB}
    v_and_b32 v{t+13}, 15, v0
    v_bfe_u32 v{t+14}, v0, 1, 3
    v_xor_b32 v{t+14}, v{t+14}, v{t+12}
    v_lshlrev_b32 v{t+14}, 4, v{t+14}
    v_lshl_add_u32 v{t+14}, v{t+13}, 7, v{t+14}
    s_lshl_b32 s{S_T0}, s{S_P}, 13
    v_add_u32 v{V_XB0}, s{S_T0}, v{t+14}
    v_xor_b32 v{V_XB1}, 64, v{V_XB0}
    s_mov_b32 s{S_WRS}, 0
    s_mov_b32 s{S_XRS}, {XB}
    v_mov_b32 v{V_WA}, v{V_WB}
    v_add_u32 v{V_XA}, s{S_XRS}, v{V_XB0}
    s_mov_b32 s{S_CNT}, 0
    ''')
    for i in range(80): a(f'v_mov_b32 v{V_ACC+i}, 0')
    if 'p1' in OPT: a(f's_cmp_eq_u32 s{S_P}, 0\ns_cbranch_scc1 k_pr1\ns_setprio 1\nk_pr1:')
    def lines(x): return [l.strip() for l in x.split('\n') if l.strip()]
    def step(par, n, dma, salu=''):
        a(f's_waitcnt lgkmcnt(0)' + (f' vmcnt({n})' if n is not None else '') + '\ns_barrier')
        mf = [f'v_mfma_f32_16x16x32_bf16 {vr(acc(c,tt),4)}, {vr(wfr(par,c),4)}, {vr(xfr(par,tt),4)}, {vr(acc(c,tt),4)}' for c in range(5) for tt in range(4)]
        rd = reads(1 - par)
        slots = [[] for _ in range(20)]
        for i in range(14): slots[i + 1].append(rd[i])
        na = lines(next_addr(par))
        slots[15].append(na[-2]); slots[16].append(na[-1])
        units = []
        for l in na[:-2] + lines(salu):
            if l.startswith('s_cselect'): units[-1].append(l)
            else: units.append([l])
        pos = {5: [1, 5, 9, 13, 17] if 'dl' in OPT else [1, 4, 7, 10, 13] if 'de' in OPT else [2, 5, 9, 12, 16], 2: [3, 11] if 'dl' in OPT else [7, 14], 0: [],
               8: [1, 3, 5, 7, 10, 12, 15, 17], 9: [1, 3, 5, 7, 9, 11, 13, 16, 17]}[len(dma)]
        for p_, d_ in zip(pos, dma):
            ls = [l for l in lines(d_) if l != 's_nop 0']
            if ls[-1].startswith('buffer'):
                slots[p_ - 1] += ls[:-1]; slots[p_].insert(0, ls[-1])
            else: slots[p_] += ls
        for i, u_ in enumerate(units): slots[(i * 14) // len(units)] += u_
        for m_, sl in zip(mf, slots):
            a(m_)
            for l in sl: a(l)
    w2dyn = [s for s, _ in issue_w('')]
    for P in (1, 0):
        if P == 1: a(f's_cmp_eq_u32 s{S_P}, 0\ns_cbranch_scc1 k_l0pre')
        else: a('k_l0pre:')
        a(f's_waitcnt vmcnt({(9 if P == 0 else 4) if RAMP else (14 if P == 0 else 12) + 4 + PFN})\ns_barrier')
        stamp(a, 2, prof)
        for g in reads(0): a(g)
        a(next_addr(1))
        if RAMP:
            for g in (dma_w(a) if P == 1 else dma_x(a)): a(g)
            two = (lambda: dma_x(a) + dma_w(a)) if P == 1 else (lambda: dma_w(a) + dma_x(a))
            step(0, 6 if P == 0 else None, two())
            step(1, 7 if P == 0 else 5, two()[:-1])
            a(f's_mov_b32 s{S_CNT}, 1\ns_branch k_side')
        a(f'k_l{P}:')
        for par in range(2):
            n = {(0, 0): 9, (0, 1): 12, (1, 1): 7, (1, 0): None}[(P, par)]
            step(par, n, dma_w(a)[:-1] if par == P else dma_x(a)[:-1], dma_x(a)[-1] if par == P else dma_w(a)[-1])
            if par == 0: a(f's_cmp_eq_u32 s{S_CNT}, 7\ns_cbranch_scc1 k_tail')
        a(f's_add_u32 s{S_CNT}, s{S_CNT}, 1\ns_bitcmp1_b32 {0b1011010}, s{S_CNT}\ns_cbranch_scc0 k_l{P}')
        if P == 1: a('s_branch k_side')
    a(f'k_side:\ns_cmp_eq_u32 s{S_CNT}, 1\ns_cbranch_scc0 k_side2')
    g = t + 11
    pf()
    a(f'v_mov_b32 v{g}, 0')
    for i in range(5):
        a(f'''v_lshlrev_b32 v{t+12}, 16, v{gx+i}
        v_lshlrev_b32 v{t+13}, 16, v{gw+i}
        v_and_b32 v{t+14}, 0xffff0000, v{gx+i}
        v_and_b32 v{t+15}, 0xffff0000, v{gw+i}
        v_fmac_f32 v{g}, v{t+12}, v{t+13}
        v_fmac_f32 v{g}, v{t+14}, v{t+15}''')
    for dpp in ('row_shr:1', 'row_shr:2', 'row_shr:4', 'row_shr:8', 'row_bcast:15 row_mask:0xa', 'row_bcast:31 row_mask:0xc'):
        a(f's_nop 1\nv_add_f32_dpp v{g}, v{g}, v{g} {dpp}' + (' bound_ctrl:0' if 'shr' in dpp else ''))
    e = t + 16
    a(f'''
    v_mul_f32 v{g}, {hex(f2u(-LOG2E))}, v{g}
    v_exp_f32 v{g}, v{g}
    s_lshl_b32 s78, s{S_MB}, 4
    s_add_u32 s78, s78, s{S_J}
    v_add_f32 v{g}, 1.0, v{g}
    v_rcp_f32 v{g}, v{g}
    s_lshl_b32 s78, s78, 5
    s_add_u32 s78, s78, s{S_W}
    s_lshl_b32 s78, s78, 2
    s_add_u32 s78, s78, {WS_G - 252}
    s_mov_b32 exec_lo, 0
    s_brev_b32 exec_hi, 1
    {'s_nop 0 ;' if 'nog' in OPT else ''} buffer_store_dword v{g}, v{V_L4}, {WSR}, s78 offen {SC}
    s_mov_b64 exec, -1
    s_cmp_eq_u32 s{S_W}, 3
    s_cselect_b32 s78, s2, 1
    s_cmp_eq_u32 s78, 0
    s_cbranch_scc0 k_nosig
    s_mov_b64 exec, 1
    buffer_store_dword v{V_ONE}, v{V_L4}, {sr(SRD_M,4)}, 0 offen {SC}
    s_mov_b64 exec, -1
    k_nosig:
    s_cmp_ge_u32 s{S_RU}, 680
    s_cbranch_scc1 k_back
    v_lshrrev_b32 v{e}, 2, v0
    v_lshlrev_b32 v{e}, 7, v{e}
    v_and_b32 v{e+1}, 3, v0
    v_lshl_add_u32 v{e}, v{e+1}, 3, v{e}
    s_lshl_b32 s79, s{S_W}, 12
    s_add_u32 s79, s79, {RB}
    v_add_u32 v{e}, s79, v{e}
    s_lshl_b32 s79, s{S_RU}, 12
    s_add_u32 s79, s79, {WS_W2}
    ''')
    for uu in range(4):
        for h in range(2):
            a(f'ds_read_b64_tr_b16 {vr(e+4+4*uu+2*h,2)}, v{e} offset:{h*2048+uu*32}')
    a('s_waitcnt lgkmcnt(0)')
    for uu in range(4):
        a(f'buffer_store_dwordx4 {vr(e+4+4*uu,4)}, v{V_L16}, {WSR}, s79 offen offset:{1024*uu} {SC}')
    z = t + 40
    a(f'''s_branch k_back
    k_side2:''')
    if prof:
        a(f's_cmp_eq_u32 s{S_CNT}, 4\ns_cbranch_scc0 k_nst')
        stamp(a, 14, prof)
        a('k_nst:')
    a(f'''
    s_cmp_eq_u32 s{S_W}, 3
    s_cbranch_scc0 k_back
    s_cmp_eq_u32 s{S_CNT}, 4
    s_cbranch_scc1 k_side4
    s_cmp_eq_u32 s{S_CNT}, 6
    s_cbranch_scc1 k_side6
    v_mov_b32 v{z}, 0
    v_lshrrev_b32 v{z+1}, 1, v0
    v_lshlrev_b32 v{z+1}, 3, v{z+1}
    v_and_or_b32 v{z+1}, v0, 1, v{z+1}
    v_lshlrev_b32 v{z+1}, 4, v{z+1}
    buffer_load_dword v{V_PL}, v{z}, {sr(SRD_M,4)}, 0 offen {SC}
    s_branch k_back
    k_side4:
    s_waitcnt vmcnt(7)''')
    spin(a, z, sr(SRD_M, 4), 0, 1, True)
    flag(a, 3)
    a(f'''s_branch k_back
    k_side6:
    s_mov_b32 s99, {WS_F0}
    buffer_load_dwordx4 {vr(z+2,4)}, v{z+1}, {WSR}, s99 offen {SC}
    k_back:
    s_cmp_eq_u32 s{S_P}, 0
    s_cbranch_scc1 k_l0
    s_branch k_l1
    k_tail:''')
    stamp(a, 15, prof)
    s4_setup(a)
    a(w_next())
    a(f'''s_cmp_eq_u32 s{S_W}, 3
    s_cbranch_scc0 k_rdy
    s_waitcnt vmcnt(12)
    s_mov_b32 s98, 0
    s_mov_b32 s99, {WS_F0}
    k_rdl:
    v_and_b32 v{z+2}, v{z+2}, v{z+3}
    v_and_b32 v{z+4}, v{z+4}, v{z+5}
    v_and_b32 v{z+2}, v{z+2}, v{z+4}
    v_cmp_ne_u32 vcc, 1, v{z+2}
    s_add_u32 s98, s98, 1
    s_cbranch_vccz k_rdy
    buffer_load_dwordx4 {vr(z+2,4)}, v{z+1}, {WSR}, s99 offen {SC}
    s_waitcnt vmcnt(0)
    s_cmp_lt_u32 s98, 0x40000
    s_cbranch_scc1 k_rdl
    k_rdy:''')
    a(f's_cmp_eq_u32 s{S_P}, 0\ns_cbranch_scc1 k_todd0\ns_branch k_todd1')
    for P in (1, 0):
        a(f'k_teven{P}:')
        step(0, 5 if P == 0 else None, w2dyn if P == 0 else [], '' if P == 0 else w_next())
        a(f'k_todd{P}:')
        step(1, 10 if P == 0 else 5, w2dyn if P == 1 else [], '' if P == 1 else w_next())
        a(f's_add_u32 s{S_CNT}, s{S_CNT}, 1\ns_cmp_lt_u32 s{S_CNT}, 10\ns_cbranch_scc1 k_teven{P}')
        if P == 1: a('s_branch k_s1e')
    a('k_s1e:\ns_setprio 0')
    stamp(a, 3, prof)
    u = V_T + 16
    a(f'''
    s_and_b32 s{S_T0}, s{S_W}, 3
    s_lshl_b32 s{S_T2}, s{S_LC0}, 2
    s_add_u32 s{S_T2}, s{S_T2}, s{S_T0}
    s_mul_i32 s{S_T2}, s{S_T2}, {4*PS}
    s_lshl_b32 s{S_T3}, s{S_MB}, 10
    s_add_u32 s{S_T2}, s{S_T2}, s{S_T3}
    s_lshl_b32 s{S_T3}, s{S_P}, 9
    s_add_u32 s{S_T2}, s{S_T2}, s{S_T3}
    v_lshrrev_b32 v{u}, 4, v0
    v_mul_u32_u24 v{u}, {PS}, v{u}
    v_and_b32 v{u+1}, 15, v0
    v_lshl_add_u32 v{u}, v{u+1}, 4, v{u}
    s_cmp_lt_u32 s{S_LC0}, 10
    s_cselect_b32 s{S_T3}, {hex(f2u(20 ** -0.5 * LOG2E))}, 1.0
    ''')
    HP = 'sc1 nt' if 'hnt' in OPT else 'sc0 sc1' if 'h01' in OPT else SC
    QP = 'sc1 nt' if 'qnt' in OPT else 'sc0 sc1' if 'q01' in OPT else SC
    def qkv_tile(c, scale):
        for tp in range(2):
            d = u + 4 + 4 * tp + 8 * (c & 1)
            for tt in range(2):
                b = acc(c, 2 * tp + tt)
                if scale:
                    for r in range(4): a(f'v_mul_f32 v{b+r}, s{S_T3}, v{b+r}')
                a(f'v_cvt_pk_bf16_f32 v{d+2*tt}, v{b}, v{b+1}\nv_cvt_pk_bf16_f32 v{d+2*tt+1}, v{b+2}, v{b+3}')
            a(f'buffer_store_dwordx4 {vr(d,4)}, v{u}, {WSR}, s{S_T2} offen offset:{256*tp} {QP}')
    a(f's_waitcnt lgkmcnt(0)\ns_and_b32 s98, s{S_J}, 7\ns_cmp_eq_u32 s98, 1\ns_cbranch_scc1 k_eg')
    qkv_tile(0, True)
    a(f's_cmp_lt_u32 s{S_J}, 12\ns_cbranch_scc1 k_eg')
    for c in range(1, 5):
        a(f's_add_u32 s{S_T2}, s{S_T2}, {16*PS}')
        qkv_tile(c, False)
    a(f'''s_waitcnt vmcnt(0)
    s_branch k_ef
    k_eg:
    s_mov_b32 s{S_T3}, {hex(f2u(-LOG2E))}
    ''')
    a(f'''
    s_lshl_b32 s{Q_HO}, s{S_MB}, 1
    s_add_u32 s{Q_HO}, s{Q_HO}, s{S_P}
    s_mul_i32 s{Q_HO}, s{Q_HO}, {4*68}
    s_lshl_b32 s{S_T2}, s{S_J}, 2
    s_add_u32 s{Q_HO}, s{Q_HO}, s{S_T2}
    s_add_u32 s{Q_HO}, s{Q_HO}, s{S_T0}
    s_lshl_b32 s{Q_HO}, s{Q_HO}, 10
    s_add_u32 s{Q_HO}, s{Q_HO}, {WS_A2}
    ''')
    e = 104
    def htile(tt):
        idx = [(c, r) for c in range(2) for r in range(4)]
        for k, (c, r) in enumerate(idx): a(f'v_mul_f32 v{e+k}, s{S_T3}, v{acc(1+c,tt)+r}')
        for k in range(8): a(f'v_exp_f32 v{e+k}, v{e+k}')
        for k, (c, r) in enumerate(idx):
            a(f'v_mul_f32 v{acc(1+c,tt)+r}, v{acc(1+c,tt)+r}, v{acc(3+c,tt)+r}\nv_add_f32 v{e+k}, 1.0, v{e+k}')
        for k in range(8): a(f'v_rcp_f32 v{e+k}, v{e+k}')
        a('s_nop 0')
        for k, (c, r) in enumerate(idx): a(f'v_mul_f32 v{e+k}, v{e+k}, v{acc(1+c,tt)+r}')
        for k in range(4): a(f'v_cvt_pk_bf16_f32 v{V_H+4*tt+k}, v{e+2*k}, v{e+2*k+1}')
        if 'hend' not in OPT and 'hkv' not in OPT: a(f'buffer_store_dwordx4 {vr(V_H+4*tt,4)}, v{V_L16}, {WSR}, s{Q_HO} offen {HP}\ns_add_u32 s{Q_HO}, s{Q_HO}, {68*1024}')
    HS = 2 if 'hs2' in OPT else 1 if 'hs1' in OPT else 0
    for tt in range(HS): htile(tt)
    st3.LB = 5 * SLOT
    p = 130
    a('k_ef:')
    st3.ids(a)
    a(f'''
    s_mov_b32 s99, {WS_F1}
    s_waitcnt vmcnt({HS})
    s_barrier
    s_cmp_eq_u32 s{S_W}, 0
    s_cbranch_scc0 k_f1''')
    flag(a, 2)
    a('k_f1:')
    stamp(a, 4, prof)
    a(w_next())
    st3.loads_pre(a)
    def hstores():
        for tt in range(4):
            a(f'buffer_store_dwordx4 {vr(V_H+4*tt,4)}, v{V_L16}, {WSR}, s{Q_HO} offen {SC}')
            if tt < 3: a(f's_add_u32 s{Q_HO}, s{Q_HO}, {68*1024}')
    a(f's_cmp_lt_u32 s{Q_J}, 12\ns_cbranch_scc0 k_nh0')
    for tt in range(HS, 4): htile(tt)
    HL = 'hl' in OPT
    if 'hend' in OPT: hstores()
    a('k_nh0:')
    H_, QB_ = st3.S_H, st3.S_QB
    a(f'''
    s_and_b32 s62, s{S_W}, 3
    s_lshl_b32 s63, s{QB_}, 1
    s_add_u32 s64, s63, s62
    s_sub_u32 s64, s64, 2
    s_cselect_b32 s64, s62, s64
    s_lshl_b32 s64, s64, 4
    s_lshr_b32 s62, s{H_}, 4
    s_add_u32 s64, s64, s62
    s_add_u32 s64, s64, 12
    v_mov_b32 v{p}, s64
    s_add_u32 s64, s64, 2
    v_writelane_b32 v{p}, s64, 1
    s_add_u32 s63, s63, s{S_P}
    s_lshl_b32 s63, s63, 4
    s_mul_i32 s62, s{H_}, 20''')
    for k in range(2):
        a(f'''
        s_lshr_b32 s64, s62, 6
        s_min_u32 s65, s64, 1
        s_add_u32 s65, s65, s64
        s_lshr_b32 s64, s64, 3
        s_add_u32 s65, s65, s64
        s_add_u32 s65, s65, s63
        v_writelane_b32 v{p}, s65, {2+k}
        s_add_u32 s62, s62, 19''')
    a(f'v_lshlrev_b32 v{p}, {FS}, v{p}')
    a(f'buffer_load_dword v{V_PL}, v{p}, {WSR}, s99 offen {SC}')
    st3.setup(a)
    F2L = 'f2l' in OPT or 'hkv' in OPT
    def f2():
        a(f's_cmp_eq_u32 s{S_W}, 2\ns_cbranch_scc0 k_f2')
        flag(a, 0)
        a('k_f2:')
    a('s_waitcnt vmcnt(0)')
    if not F2L: a('s_barrier'); f2()
    if 'hkv' in OPT:
        a(f'v_cmp_ne_u32 vcc, 1, v{V_PL}\ns_cbranch_vccz k_hk1\ns_cmp_lt_u32 s{Q_J}, 12\ns_cbranch_scc0 k_hk0\ns_mov_b32 s{Q_J}, 12')
        hstores()
        a('k_hk0:')
        spin(a, p, WSR, 's99', 1)
        a('k_hk1:')
    else: spin(a, p, WSR, 's99', 1, True)
    stamp(a, 5, prof)
    st3.loads(a, SC)
    if 'hkv' in OPT:
        a(f's_cmp_lt_u32 s{Q_J}, 12\ns_cbranch_scc0 k_hk2')
        hstores()
        a('k_hk2:')
    a(f's_lshr_b32 s99, s{Q_MT}, 1\ns_lshl_b32 s99, s99, {FS+FM}\ns_add_u32 s99, s99, {WS_F2}\nv_and_b32 v{V_L4}, 15, v0\nv_lshlrev_b32 v{V_L4}, {FS}, v{V_L4}')
    pre = {0: [0, 1], 1: [2, 3], 2: [4, 10], 3: [5, 6], 4: [7, 11], 5: [8, 9]}
    if 'pb' in OPT: pre = {-1: [0, 1], 0: [2, 3], 1: [4, 10], 2: [5, 11], 3: [6], 4: [7], 5: [8, 9]}
    if 'pc' in OPT: pre = {1: [0, 1], 2: [2, 3], 3: [4, 5], 4: [6, 7], 5: [8, 9], 6: [10, 11]}
    if 'pd' in OPT: pre = {2: [0, 1, 2], 3: [3, 4, 5], 4: [6, 7], 5: [8, 9], 6: [10, 11]}
    if 'pe' in OPT: pre = {3: [0, 1, 2], 4: [3, 4, 5], 5: [6, 7, 8], 6: [9, 10, 11]}
    if 'pg' in OPT: pre = {4: [0, 1, 2], 5: [3, 4, 5], 6: [6, 7]}
    if 'pm' in OPT: pre = {-1.5: [0, 1], -1: [2, 3], 0: [10], 1: [4, 11], 2: [5], 3: [6], 4: [7], 5: [8], 6: [9]}
    if 'pn' in OPT: pre = {-1.5: [0, 1], -1: [2, 3], 0: [10, 4], 1: [11], 2: [5], 3: [6], 4: [7], 5: [8, 9]}
    TC = min(pre)
    NPRE = sum(len(v) for v in pre.values())
    def hook(x):
        if F2L and x == -2: f2()
        if HL and x == -2:
            a(f's_cmp_lt_u32 s{Q_J}, 12\ns_cbranch_scc0 k_hl0')
            hstores()
            a('k_hl0:')
        if HL and x == -3:
            a(f's_cmp_lt_u32 s{Q_J}, 12\ns_cbranch_scc1 k_hl1\ns_waitcnt vmcnt(0)\nk_hl1:\ns_waitcnt vmcnt(4)')
            return True
        if HL and x == (1 if 'hf1' in OPT else 0):
            a('s_waitcnt vmcnt(0)'); flag(a, 0)
        if 'noprio' not in OPT:
            if x == -2: a(f's_cmp_eq_u32 s{S_P}, 0\ns_cbranch_scc1 k_pr0\ns_setprio 1\nk_pr0:')
            if x == (2 if 'pr2' in OPT else 3 if 'pr3' in OPT else 1): a('s_setprio 0')
        if x == max(-2, TC - 1):
            a(f'buffer_load_dword v{V_PL}, v{V_L4}, {WSR}, s99 offen {SC}')
        if x == TC:
            a('s_waitcnt vmcnt(0)')
            spin(a, V_L4, WSR, 's99', 1, True)
        g_ = []
        for r in pre.get(x, []): g_ += issue_a(r)
        for s_, tag in g_: a.vm.append(tag)
        return [s_ for s_, tag in g_]
    st3.compute(a, prof, SC, hook)
    srd(a, SRD_O, S_OUT, 2048 * 1280)
    a4 = lambda f, t_: V4_ACC + (f * 2 + t_) * 4
    a(f'''v_and_b32 v2, 15, v0
    v_lshrrev_b32 v3, 4, v0
    v_mul_u32_u24 v3, {PS}, v3
    v_lshl_add_u32 v4, v2, 4, v3
    v_and_b32 v3, 3, v0
    v_lshlrev_b32 v3, 3, v3
    v_lshrrev_b32 v2, 2, v2
    v_lshl_add_u32 v2, v2, 7, v3
    ''')
    if WF: a(f'v_and_b32 v3, 31, v0\nv_lshlrev_b32 v3, 2, v3\ns_add_u32 s99, s{Q_G}, {WS_F3}')
    else: a(f'v_bfe_u32 v3, v0, 3, 2\nv_lshlrev_b32 v3, 5, v3\nv_and_or_b32 v3, v0, 7, v3\nv_lshlrev_b32 v3, 2, v3\ns_lshr_b32 s99, s{Q_MT}, 2\ns_lshl_b32 s99, s99, 9\ns_add_u32 s99, s99, {WS_F3}')
    a(f'''
    s_mul_i32 s{Q_O}, s{Q0}, {4*PS}
    s_add_u32 s{Q_O}, s{Q_O}, s{Q_G}
    s_lshl_b32 s{Q_O}, s{Q_O}, 1
    s_add_u32 s{Q_O}, s{Q_O}, {WS_O - 12*32*PS}
    s_lshl_b32 s{Q_G}, s{Q_G}, 2
    s_add_u32 s{Q_G}, s{Q_G}, {WS_G}''')
    a.vmem(f'buffer_load_dwordx2 {vr(V_G1,2)}, v2, {WSR}, s{Q_G} offen {SC}', 'g')
    def rds(r):
        sl = r % NS
        return [f'ds_read_b128 {vr(V4_F+20*(r&1)+4*f,4)}, v{[V_RA,V_RA2,V_RA3][sl//3]} offset:{(sl%3)*SLOT+f*1024}' for f in range(5)]
    for l in rds(0): a(l)
    t = 5
    RED = SLOT
    a(f'''
    v_and_b32 v{t}, 15, v0
    v_mul_u32_u24 v{t}, 336, v{t}
    v_lshrrev_b32 v{t+1}, 4, v0
    v_lshl_add_u32 v{t}, v{t+1}, 4, v{t}
    s_mul_i32 s{Q2}, s{S_W}, 10752
    s_add_u32 s{Q2}, s{Q2}, {RED}
    v_add_u32 v{t}, s{Q2}, v{t}
    v_mul_u32_u24 v{t+1}, 26, v0
    v_lshrrev_b32 v{t+1}, 8, v{t+1}
    v_mul_u32_u24 v{t+2}, 10, v{t+1}
    v_sub_u32 v{t+2}, v0, v{t+2}
    v_and_b32 v{t+3}, 1, v{t+1}
    v_lshlrev_b32 v{t+3}, 4, v{t+3}
    v_bfe_u32 v{t+4}, v{t+1}, 1, 1
    s_lshl_b32 s{Q2}, s{Q0}, 2
    v_add3_u32 v{t+3}, v{t+3}, v{t+4}, s{Q2}
    v_mul_u32_u24 v{t+3}, 336, v{t+3}
    v_lshl_add_u32 v{t+3}, v{t+2}, 5, v{t+3}
    s_mul_i32 s{Q2}, s{S_P}, {4*10752}
    s_add_u32 s{Q2}, s{Q2}, {RED}
    v_add_u32 v{t+3}, s{Q2}, v{t+3}
    v_mul_u32_u24 v{t+1}, 1280, v{t+1}
    v_lshl_add_u32 v{t+1}, v{t+2}, 4, v{t+1}
    s_lshl_b32 s{Q_HO}, s{Q_MT}, 3
    s_add_u32 s{Q_HO}, s{Q_HO}, s{S_W}
    s_mul_i32 s{Q_HO}, s{Q_HO}, {8*1280}
    s_mul_i32 s{Q3}, s{Q_N}, 160
    s_add_u32 s{Q_HO}, s{Q_HO}, s{Q3}
    s_add_u32 s{Q3}, s{Q_HO}, {4*1280}
    ''')
    RF = 2 if 'rf2' in OPT else 0
    RP = 7 if 'rp7' in OPT else 8 if 'rp8' in OPT else 9
    assert NPRE == 12
    Wg = lambda g: issue_w(f'w{4+2*g}') + [(w_next(), None)]
    stream = Wg(0) + Wg(1) + Wg(2) + Wg(3) + Wg(4) + issue_a(12) + issue_a(13) + issue_a(14) + Wg(5) + issue_a(15) + issue_a(16)
    quota = {'qa': [4, 3, 3, 3, 3, 3, 3, 3, 4, 4, 4, 3], 'qb': [3, 3, 3, 3, 3, 3, 3, 2, 2, 4, 4, 3, 4], 'qc': [4, 4, 4, 4, 3, 3, 3, 4, 4, 4, 3],
             'qd': [4, 3, 3, 3, 3, 3, 3, 3, 3, 3, 3, 3, 3]}[([o for o in OPT if o in ('qb', 'qa')] + ['qd'])[0]] + [0] * 8
    RP = [r for r in range(17) if sum(quota[:r + 1]) > 25][0]
    assert sum(quota[:RP]) == 25 and sum(quota) == 40
    for r in range(17):
        need = [f'a{r}'] + (['f3'] if r == RP else []) + (['ost'] if r == RF else [])
        if r % 2 == 0: need.append(f'w{r}')
        a.vmwait(need, 'lgkmcnt(0)')
        if r == RF and WF: flag(a, 1); a.vm.append('fl')
        if r % 2 == 0 and r < 16: a('s_barrier')
        if r == RF and not WF:
            a(f's_cmp_eq_u32 s{S_W}, 0\ns_cbranch_scc0 k_f3')
            flag(a, 1)
            a('k_f3:')
        if r in (0, 4, 9, 12): stamp(a, {0: 8, 4: 11, 9: 12, 12: 13}[r], prof)
        if r == RP: spin(a, 3, WSR, 's99', 1, True)
        if r == 12:
            a(f'v_sub_f32 v{V_G1}, 1.0, v{V_G1}\nv_sub_f32 v{V_G1+1}, 1.0, v{V_G1+1}\ns_nop 4')
            for f in range(5):
                for t_ in range(2):
                    for i in range(4): a(f'v_mul_f32 v{a4(f,t_)+i}, v{V_G1+t_}, v{a4(f,t_)+i}')
        if r >= 12: a(f'v_swap_b32 v{AREG[r]+2}, v{AREG[r]+4}\nv_swap_b32 v{AREG[r]+3}, v{AREG[r]+5}\ns_nop 1')
        mf = [f'v_mfma_f32_16x16x32_bf16 {vr(a4(f,t_),4)}, {vr(V4_F+20*(r&1)+4*f,4)}, {vr(AREG[r]+4*t_,4)}, ' + ('0' if r == 0 else vr(a4(f, t_), 4)) for f in range(5) for t_ in range(2)]
        iss = []
        if r == RP - (1 if 'pd1' in OPT else 2): iss.append((f'buffer_load_dword v{V_PL}, v3, {WSR}, s99 offen {SC}', 'f3'))
        n_ = quota[r]
        while n_ > 0 and stream:
            it = stream.pop(0); iss.append(it)
            if it[1]: n_ -= 1
        if stream and stream[0][1] is None: iss.append(stream.pop(0))
        for s_, tag in iss:
            if tag: a.vm.append(tag)
        slots = [[] for _ in range(10)]
        if r < 16:
            for i, l in enumerate(rds(r + 1)): slots[i].append(l)
        n = len(iss)
        for i, (s_, tag) in enumerate(iss): slots[(i * 10) // n if n > 4 else 1 + 2 * i].append(s_)
        if r == 16:
            wr = [f'ds_write_b128 v{t}, {vr(a4(f,tt),4)} offset:{tt*16*336+f*64}' for f in range(5) for tt in range(2)]
            slots[8].append(wr[0]); slots[9] += wr[1:3] + ['s_nop 1'] + wr[3:]
        for m_, sl in zip(mf, slots):
            a(m_)
            for l in sl: a(l)
    stamp(a, 9, prof)
    a('s_waitcnt lgkmcnt(0)\ns_barrier\ns_mov_b32 exec_hi, 0xff')
    R = 26
    for ps in range(2):
        for kq in range(4):
            for h in range(2):
                if ps == 1 and kq == 3 and h == 1: a('s_waitcnt lgkmcnt(14)')
                a(f'ds_read_b128 {vr(R+32*ps+8*kq+4*h,4)}, v{t+3} offset:{kq*10752+ps*2*336+h*16}')
    for ps in range(2):
        b = R + 32 * ps
        a(f's_waitcnt lgkmcnt({8 if ps == 0 else 0})')
        for i in range(8): a(f'v_add_f32 v{b+i}, v{b+i}, v{b+8+i}\nv_add_f32 v{b+16+i}, v{b+16+i}, v{b+24+i}')
        for i in range(8): a(f'v_add_f32 v{b+i}, v{b+i}, v{b+16+i}')
        for k in range(4): a(f'v_cvt_pk_bf16_f32 v{b+8+k}, v{b+2*k}, v{b+2*k+1}')
        a(f'buffer_store_dwordx4 {vr(b+8,4)}, v{t+1}, {sr(SRD_O,4)}, s{Q_HO if ps == 0 else Q3} offen' + (' sc1' if 'osc' in OPT else ' nt' if 'ont' in OPT else ''))
    a('s_mov_b64 exec, -1')
    stamp(a, 10, prof)
    stamp_flush(a, prof, 0)
    if 'fix' in OPT: a('k_fix:\ns_memrealtime s[98:99]\ns_waitcnt lgkmcnt(0)\ns_sub_u32 s98, s98, s100\ns_cmp_lt_u32 s98, 6000\ns_cbranch_scc1 k_fix')
    a('k_end:\ns_endpgm')
    ref = open('gated_mix__sliding_block__swiglu_ffn__prompt.s.ref').read()
    hdr = ref.split('; Override')[0]
    s = hdr + '; @launch grid=(256,1,1) block=(512,1,1) lds=163840\n.amdgcn_target "amdgcn-amd-amdhsa--gfx950"\n.text\n'
    s += f'.globl {NAME}\n.p2align 8\n.type {NAME},@function\n{NAME}:\n' + a.text()
    s += ref[ref.index('.section .rodata'):]
    return s
if __name__ == '__main__':
    open('gated_mix__sliding_block__swiglu_ffn__prompt.s', 'w').write(build())
    open('prof.s', 'w').write(build(True))
    for o in sys.argv[1:]:
        OPT.clear(); OPT.update(o.split('+'))
        open(f'prof_{o}.s', 'w').write(build(True))
        open(f'v_{o}.s', 'w').write(build(False))
```

```python
import sys, struct
from base import *
import st1, st3
from st1 import *
NAME = 'gated_mix__sliding_block__swiglu_ffn__prompt_kernel'
SC = 'sc1'
WS_F1, WS_F2, WS_F3, WS_F0 = 0x1510000, 0x1512000, 0x1514000, 0x1515000
S_P = 27
V_L16, V_FLG, V_ONE, V_PL, V_L4, V_RA, V_RA2, V_RA3, V_G1 = 244, 245, 246, 247, 248, 249, 250, 251, 242
V_H = 210
Q_MT, Q_N, Q0, Q1, Q2, Q3, Q_A0, Q_A1, Q_WO, Q_WL, Q_RH, Q_RO, Q_R, Q_PR, Q_HO, Q_J, Q_G, Q_O, Q_WA, Q_WM = range(32, 52)
SRD_O = 28
SLOT = 20480; NS = 8
WSR = sr(SRD_WS, 4)
uid = [0]

def spin(a, vaddr, srd_, soff, expect, first_issued=False):
    uid[0] += 1; L = f'spin{uid[0]}'
    a('s_mov_b32 s98, 0')
    if first_issued: a(f's_branch {L}c')
    a(f'''{L}:
    buffer_load_dword v{V_PL}, v{vaddr}, {srd_}, {soff} offen {SC}
    s_waitcnt vmcnt(0)
    {L}c:
    v_cmp_ne_u32 vcc, {expect}, v{V_PL}
    s_add_u32 s98, s98, 1
    s_cbranch_vccz {L}d
    s_cmp_lt_u32 s98, 0x40000
    s_cbranch_scc1 {L}
    {L}d:''')
def flag(a, lane):
    a(f's_mov_b64 exec, {1 << lane}\nbuffer_store_dword v{V_ONE}, v{V_FLG}, {WSR}, 0 offen {SC}\ns_mov_b64 exec, -1')

def s4_setup(a):
    a(f'''
    s_and_b32 s{Q0}, s2, 7
    s_lshr_b32 s{Q1}, s2, 3
    s_lshr_b32 s{Q_MT}, s{Q0}, 1
    s_lshl_b32 s{Q_MT}, s{Q_MT}, 3
    s_and_b32 s{Q2}, s{Q1}, 7
    s_add_u32 s{Q_MT}, s{Q_MT}, s{Q2}
    s_and_b32 s{Q_N}, s{Q0}, 1
    s_lshl_b32 s{Q_N}, s{Q_N}, 2
    s_lshr_b32 s{Q1}, s{Q1}, 3
    s_add_u32 s{Q_N}, s{Q_N}, s{Q1}
    s_and_b32 s{Q0}, s{S_W}, 3
    s_lshl_b32 s{Q2}, s{Q_MT}, 1
    s_add_u32 s{Q2}, s{Q2}, s{S_P}
    s_lshl_b32 s{Q_G}, s{Q2}, 7
    s_mul_i32 s{Q_A0}, s{Q2}, {2*68}
    s_add_u32 s{Q_A0}, s{Q_A0}, s{Q0}
    s_lshl_b32 s{Q_A0}, s{Q_A0}, 10
    s_add_u32 s{Q_A0}, s{Q_A0}, {WS_A2}
    s_lshl_b32 s{Q2}, s{Q0}, 3
    s_add_u32 s{Q2}, s{Q2}, s{Q_N}
    s_mul_i32 s{Q_WO}, s{Q2}, 5120
    s_add_u32 s{Q_WO}, s{Q_WO}, {WS_W2}
    s_mul_i32 s{Q_WL}, s{Q0}, 5120
    s_xor_b32 s{Q_PR}, s{S_P}, 1
    s_mov_b32 s{Q_J}, s{S_J}
    v_add_u32 v{V_RA}, s{Q_WL}, v{V_L16}
    v_add_u32 v{V_RA2}, {3*SLOT}, v{V_RA}
    v_add_u32 v{V_RA3}, {6*SLOT}, v{V_RA}
    ''')
def rot(r):
    if r < 12: return f's_add_u32 s{Q_R}, s{Q_RH}, {r}\ns_cmp_ge_u32 s{Q_R}, 12\ns_cselect_b32 s{Q2}, 12, 0\ns_sub_u32 s{Q_R}, s{Q_R}, s{Q2}\n'
    return f's_add_u32 s{Q_R}, s{Q_RO}, {r}\ns_cmp_ge_u32 s{Q_R}, 17\ns_cselect_b32 s{Q2}, 5, 0\ns_sub_u32 s{Q_R}, s{Q_R}, s{Q2}\n'
def issue_w(tag):
    g = []
    for f in range(5):
        pre = ''
        if f == 0: pre = f's_mov_b32 m0, s{Q_WM}\ns_add_u32 s{Q_PR}, s{Q_PR}, 2\n'
        if f == 4: pre = f's_add_u32 m0, m0, 4096\ns_add_u32 s{Q_WA}, s{Q_WA}, 4096\n'
        g.append((pre + f'buffer_load_dwordx4 v{V_L16}, {WSR}, s{Q_WA} offen offset:{(f&3)*1024} {SC} lds', tag))
    return g
def w_next():
    return f'''s_mul_i32 s{Q_WA}, s{Q_PR}, {160*1024}
    s_add_u32 s{Q_WA}, s{Q_WA}, s{Q_WO}
    s_and_b32 s{Q_WM}, s{Q_PR}, 7
    s_mul_i32 s{Q_WM}, s{Q_WM}, {SLOT}
    s_add_u32 s{Q_WM}, s{Q_WM}, s{Q_WL}'''
AREG = [210 + 8 * r for r in range(4)] + [26 + 8 * r for r in range(7)] + [14] + [82 + 8 * r for r in range(5)]
V4_ACC = 130; V4_F = 170
def issue_a(r):
    g = []
    for t in range(2):
        if r >= 12: g.append((f's_add_u32 s{Q2}, s{Q_O}, {(32*r+4*t)*PS}\nbuffer_load_dwordx4 {vr(AREG[r]+4*t,4)}, v4, {WSR}, s{Q2} offen {SC}', f'a{r}'))
        else: g.append((f's_add_u32 s{Q2}, s{Q_A0}, {r*4096+t*68*1024}\nbuffer_load_dwordx4 {vr(AREG[r]+4*t,4)}, v{V_L16}, {WSR}, s{Q2} offen {SC}', f'a{r}'))
    return g

def build(prof=False):
    uid[0] = 0
    config(5)
    XB, RB = st1.XBASE, st1.RBASE
    a = Asm(); name = 'k'
    common_entry(a, name)
    stamp(a, 0, prof)
    if 'fix' in OPT: a('s_memrealtime s[100:101]')
    t = V_T
    a(f'''
    s_and_b32 s{S_T0}, s2, 7
    s_lshr_b32 s{S_T1}, s2, 3
    s_and_b32 s{S_MB}, s{S_T0}, 1
    s_lshl_b32 s{S_MB}, s{S_MB}, 3
    s_and_b32 s{S_T2}, s{S_T1}, 7
    s_add_u32 s{S_MB}, s{S_MB}, s{S_T2}
    s_lshr_b32 s{S_J}, s{S_T0}, 1
    s_lshr_b32 s{S_T1}, s{S_T1}, 3
    s_add_u32 s{S_XM}, s{S_T1}, s{S_T2}
    ''')
    if 'rot' in OPT:
        a(f'''s_add_u32 s{S_XM}, s{S_XM}, s{S_T1}
        s_and_b32 s{S_XM}, s{S_XM}, 7
        s_mul_i32 s{S_XM}, s{S_XM}, 5
        s_lshr_b32 s{S_XM}, s{S_XM}, 2
        s_mov_b32 s{S_CW}, s{S_XM}
        s_mov_b32 s{S_CX}, s{S_XM}''')
    else:
        a(f'''s_and_b32 s{S_XM}, s{S_XM}, {0 if 'x0' in OPT else 3 if 'x3' in OPT else 1}
        s_mov_b32 s{S_CW}, 0
        s_mov_b32 s{S_CX}, 0''')
    a(f'''
    s_lshl_b32 s{S_J if 'map2' in OPT else S_T1}, s{S_J if 'map2' in OPT else S_T1}, 2
    s_add_u32 s{S_J}, s{S_J}, s{S_T1}
    s_mul_i32 s{S_T0}, s{S_J}, 5
    s_sub_u32 s{S_T0}, s{S_T0}, 50
    s_add_u32 s{S_LC0}, s{S_J}, 6
    s_lshr_b32 s{S_LC0}, s{S_LC0}, 3
    s_sub_u32 s{S_LC0}, s{S_J}, s{S_LC0}
    s_cmp_lt_u32 s{S_J}, 12
    s_cselect_b32 s{S_LC0}, s{S_LC0}, s{S_T0}
    s_mov_b32 s{S_STW0}, 3840
    s_cselect_b32 s{S_STW1}, 3072, s{S_STW0}
    s_and_b32 s{S_T0}, s{S_W}, 3
    s_lshr_b32 s{S_P}, s{S_W}, 2
    v_lshrrev_b32 v{t}, 3, v0
    v_and_b32 v{t+1}, 7, v0
    v_bfe_u32 v{t+2}, v0, 4, 1
    s_and_b32 s{S_T3}, s{S_W}, 1
    s_lshl_b32 s{S_T2}, s{S_T3}, 1
    v_or_b32 v{t+2}, s{S_T2}, v{t+2}
    v_lshlrev_b32 v{t+2}, 1, v{t+2}
    v_xor_b32 v{t+2}, v{t+2}, v{t+1}
    v_lshlrev_b32 v{t+2}, 4, v{t+2}
    s_lshl_b32 s{S_T2}, s{S_T0}, 3
    v_add_u32 v{t+3}, s{S_T2}, v{t}
    v_mad_u32_u24 v{V_OW0}, v{t+3}, s{S_STW0}, v{t+2}
    v_mad_u32_u24 v{V_OW1}, v{t+3}, s{S_STW1}, v{t+2}
    s_lshr_b32 s{S_T2}, s{S_W}, 1
    s_lshl_b32 s{S_T2}, s{S_T2}, 5
    s_add_u32 s{S_T2}, s{S_T2}, s{S_T3}
    v_lshl_add_u32 v{t+3}, v{t}, 1, s{S_T2}
    v_mul_u32_u24 v{t+3}, 1280, v{t+3}
    v_lshrrev_b32 v{t+4}, 4, v0
    v_xor_b32 v{t+4}, v{t+4}, v{t+1}
    v_lshl_add_u32 v{V_OX0}, v{t+4}, 4, v{t+3}
    v_xor_b32 v{V_OX1}, 64, v{V_OX0}
    v_add_u32 v{V_OX1}, {16*1280}, v{V_OX1}
    s_xor_b32 s{S_T2}, s{S_P}, 1
    s_mul_i32 s{S_WDS}, s{S_T2}, {WSLOT}
    s_lshl_b32 s{S_T3}, s{S_T0}, 10
    s_add_u32 s{S_WDS}, s{S_WDS}, s{S_T3}
    s_lshl_b32 s{S_T2}, s{S_T2}, 5
    s_mul_i32 s{S_WEND0}, s{S_T2}, s{S_STW0}
    s_mul_i32 s{S_WEND1}, s{S_T2}, s{S_STW1}
    s_lshl_b32 s{S_STW0}, s{S_STW0}, 6
    s_lshl_b32 s{S_STW1}, s{S_STW1}, 6
    s_mul_i32 s{S_SW0}, s{S_XM}, s{S_STW0}
    s_mul_i32 s{S_SW1}, s{S_XM}, s{S_STW1}
    s_add_u32 s{S_SW0}, s{S_SW0}, s{S_WEND0}
    s_add_u32 s{S_SW1}, s{S_SW1}, s{S_WEND1}
    s_lshl_b32 s{S_SX}, s{S_XM}, 7
    s_lshl_b32 s{S_XDS}, s{S_W}, 11
    s_add_u32 s{S_XDS}, s{S_XDS}, {XB}
    s_mul_i32 s{S_T2}, s{S_MB}, {128*1280}
    s_lshl_b32 s{S_T3}, s{S_LC0}, 7
    s_waitcnt lgkmcnt(0)
    ''')
    srd(a, SRD_X, S_X, 128 * 1280, f's{S_T2}')
    nq = 639 * 3840 + 128; ng = 639 * 3072 + 128
    srd(a, SRD_W, S_WQKV, nq, f's{S_T3}')
    a(f's_cmp_lt_u32 s{S_J}, 12\ns_cbranch_scc1 k_s1g')
    for c in range(1, 5):
        srd(a, SRD_W + 4 * c, SRD_W, nq, 128 * c)
    sp = 'split' in OPT
    a(f's_branch k_s1h\nk_s1g:\ns_lshl_b32 s{S_T3}, s{S_J}, {7 if sp else 8}')
    srd(a, SRD_W + 4, S_WG, ng, f's{S_T3}')
    srd(a, SRD_W + 8, SRD_W + 4, ng, 1536 if sp else 128)
    srd(a, SRD_W + 12, S_WU, ng, f's{S_T3}')
    srd(a, SRD_W + 16, SRD_W + 12, ng, 1536 if sp else 128)
    a(f's_and_b32 s{S_T3}, s{S_J}, 7\ns_cmp_eq_u32 s{S_T3}, 1\ns_cselect_b32 s{SRD_W+2}, 0, s{SRD_W+2}')
    a('k_s1h:')
    stamp(a, 1, prof)
    def groups(lbl, g1, g0):
        a(f's_cmp_eq_u32 s{S_P}, 0\ns_cbranch_scc1 {lbl}0')
        for grp in g1:
            for g in grp(a): a(g)
        a(f's_branch {lbl}e\n{lbl}0:')
        for grp in g0:
            for g in grp(a): a(g)
        a(f'{lbl}e:')
    PF = 'pf' in OPT
    PFN = int(PF and 'pf0' not in OPT)
    V_PF, V_PD, S_PO, S_PS = 252, 253, 93, 94
    def pf_setup():
        a(f'''
        s_mov_b64 s[96:97], s[{SRD_X}:{SRD_X+1}]
        s_mov_b32 s98, s{SRD_X+2}
        s_mov_b32 s99, 0x20000''')
        for c in range(5):
            b = SRD_W + 4 * c
            a(f's_cmp_eq_u32 s{S_W}, {c}\ns_cselect_b64 s[96:97], s[{b}:{b+1}], s[96:97]\ns_cselect_b32 s98, s{b+2}, s98')
        a(f'''
        s_cmp_eq_u32 s{S_W}, 0
        s_cselect_b32 s{S_PO}, s{S_STW0}, s{S_STW1}
        s_lshr_b32 s78, s{S_PO}, 6
        s_and_b32 s79, s{S_MB}, 7
        s_lshl_b32 s79, s79, 3
        v_lshl_add_u32 v{t+5}, v{t}, 6, v{t+1}
        v_add_u32 v{t+5}, s79, v{t+5}
        v_mul_u32_u24 v{V_PF}, s78, v{t+5}
        v_cmp_le_u32 vcc, 24, v0
        v_mov_b32 v{t+5}, 0x40000000
        s_cmp_lt_u32 s{S_W}, 5
        v_cndmask_b32 v{V_PF}, v{V_PF}, v{t+5}, vcc
        s_cbranch_scc1 k_pfw
        s_lshr_b32 s79, s2, 6
        s_lshl_b32 s79, s79, 5
        v_add_u32 v{t+5}, s79, v0
        s_sub_u32 s79, s{S_W}, 5
        s_lshl_b32 s79, s79, 7
        v_mov_b32 v{V_PF}, s79
        v_mov_b32 v{t+6}, 1280
        v_mad_u32_u24 v{V_PF}, v{t+5}, v{t+6}, v{V_PF}
        s_mov_b32 s{S_PO}, 128
        k_pfw:
        s_mul_i32 s{S_PS}, s{S_PO}, 3''')
    def pf():
        if PF: a(f's_mov_b32 exec_hi, 0\nbuffer_load_dword v{V_PD}, v{V_PF}, s[96:99], s{S_PO} offen\ns_mov_b32 exec_hi, -1\ns_add_u32 s{S_PO}, s{S_PO}, s{S_PS}')
    def slowpf():
        a(f'''
        s_mov_b64 s[96:97], s[{S_X}:{S_X+1}]
        s_mov_b32 s98, {2048*1280}
        s_mov_b32 s99, 0x20000
        s_and_b32 s78, s{S_W}, 3
        s_cmp_eq_u32 s78, 1
        s_cselect_b64 s[96:97], s[{S_WQKV}:{S_WQKV+1}], s[96:97]
        s_cselect_b32 s98, {640*3840}, s98
        s_cmp_eq_u32 s78, 2
        s_cselect_b64 s[96:97], s[{S_WG}:{S_WG+1}], s[96:97]
        s_cselect_b32 s98, {640*3072}, s98
        s_cmp_eq_u32 s78, 3
        s_cselect_b64 s[96:97], s[{S_WU}:{S_WU+1}], s[96:97]
        s_cselect_b32 s98, {640*3072}, s98
        s_lshl_b32 s78, s{S_P}, 8
        s_add_u32 s78, s78, s2
        s_lshl_b32 s78, s78, 10
        v_lshlrev_b32 v{V_PF}, 19, v0
        s_mov_b64 exec, 31
        buffer_load_dword v{V_PD}, v{V_PF}, s[96:99], s78 offen offset:384
        s_mov_b64 exec, -1''')
    def gupf():
        R0 = 0 if 'gr0' in OPT else 128
        nl = (640 - R0) * 24 // 1024
        a(f'''
        s_cmp_eq_u32 s{S_P}, 0
        s_cselect_b64 s[96:97], s[{S_WG}:{S_WG+1}], s[{S_WU}:{S_WU+1}]
        s_mov_b32 s98, {640*3072}
        s_mov_b32 s99, 0x20000
        s_and_b32 s78, s{S_W}, 3
        s_lshl_b32 s78, s78, 8
        s_add_u32 s78, s78, s2
        s_mul_i32 s78, s78, {nl*128}
        s_add_u32 s78, s78, {R0*3072}
        v_lshlrev_b32 v{V_PF}, 7, v0
        s_mov_b64 exec, {hex((1 << nl) - 1)}
        buffer_load_dword v{V_PD}, v{V_PF}, s[96:99], s78 offen
        s_mov_b64 exec, -1''')
    def codepf():
        a(f'''
        s_lshr_b32 s78, s2, 3
        s_cmp_eq_u32 s{S_W}, 7
        s_cselect_b32 s78, s78, 8
        s_cmp_lt_u32 s78, 3
        s_cbranch_scc0 k_nocpf
        s_getpc_b64 s[96:97]
        k_pcref:
        s_lshl_b32 s78, s78, 6
        v_add_u32 v{V_PF}, s78, v0
        v_lshlrev_b32 v{V_PF}, 7, v{V_PF}
        v_min_u32 v{V_PF}, k_end-k_pcref, v{V_PF}
        v_mov_b32 v{V_PF+1}, s97
        v_add_co_u32 v{V_PF}, vcc, s96, v{V_PF}
        s_nop 1
        v_addc_co_u32 v{V_PF+1}, vcc, 0, v{V_PF+1}, vcc
        global_load_dword v{V_PL}, v[{V_PF}:{V_PF+1}], off
        k_nocpf:''')
    if 'cp0' in OPT: codepf()
    if 'gp0' in OPT: gupf()
    if 'sp0' in OPT: slowpf()
    if 'pf0' in OPT: pf_setup(); pf()
    groups('k_pa', (dma_w, dma_x), (dma_x, dma_w))
    if PFN: pf_setup(); pf()
    if 'sp1' in OPT: slowpf(); PFN += 1
    if 'gp1' in OPT: gupf(); PFN += 1
    if 'cp1' in OPT: codepf()
    srd(a, SRD_WS, S_WS, WS_SIZE)
    srd(a, SRD_M, S_GW, 1280)
    a(f'''
    v_lshlrev_b32 v{V_L16}, 4, v0
    v_lshlrev_b32 v{V_L4}, 2, v0
    s_mul_i32 s{S_RU}, s2, 3
    s_add_u32 s{S_RU}, s{S_RU}, s{S_W}
    s_cmp_lt_u32 s{S_W}, 3
    s_cselect_b32 s{S_RU}, s{S_RU}, 1000
    s_cmp_ge_u32 s{S_RU}, 680
    s_cbranch_scc1 k_s1r
    s_mul_i32 s78, s{S_RU}, 6554
    s_lshr_b32 s78, s78, 16
    s_mul_i32 s79, s78, 10
    s_sub_u32 s79, s{S_RU}, s79
    s_lshl_b32 s79, s79, 7
    s_lshr_b32 s80, s78, 2
    s_lshl_b32 s80, s80, {6 if sp else 7}
    s_and_b32 s81, s78, 3
    s_lshl_b32 s81, s81, 4
    s_add_u32 s80, s80, s81
    s_sub_u32 s81, s78, 48
    s_lshl_b32 s81, s81, 5
    s_cmp_lt_u32 s78, 48
    s_cselect_b32 s80, s80, s81
    s_mov_b32 s81, {16*1280}
    s_mov_b32 s86, {640*1280}
    s_cselect_b32 s81, {(768 if sp else 64)*1280}, s81
    s_cselect_b32 s84, s{S_WD}, s{S_WO}
    s_cselect_b32 s85, s{S_WD+1}, s{S_WO+1}
    s_cselect_b32 s86, {1536*1280}, s86
    s_mov_b32 s87, 0x20000
    s_mul_i32 s80, s80, 1280
    s_add_u32 s80, s80, s79
    v_mul_u32_u24 v{t+12}, 1280, v{t}
    v_lshl_add_u32 v{t+12}, v{t+1}, 4, v{t+12}
    s_lshl_b32 s79, s{S_W}, 12
    s_add_u32 s79, s79, {RB}
    ''')
    for i in range(4):
        a(f's_add_u32 m0, s79, {i*1024}')
        a([f's_nop 0', f's_add_u32 s82, s80, {8*1280}', 's_add_u32 s80, s80, s81', f's_add_u32 s82, s80, {8*1280}'][i])
        a(f'buffer_load_dwordx4 v{t+12}, s[84:87], s{82 if i & 1 else 80} offen' + (' nt' if 'ntw' in OPT else '') + ' lds')
    gx, gw = t + 16, t + 22
    a(f'''k_s1r:
    s_lshl_b32 s{S_T2}, s{S_J}, 3
    s_add_u32 s{S_T2}, s{S_T2}, s{S_W}
    s_mul_i32 s{S_T3}, s{S_T2}, 1280
    buffer_load_dwordx4 {vr(gx,4)}, v{V_L16}, {sr(SRD_X,4)}, s{S_T3} offen
    buffer_load_dword v{gx+4}, v{V_L4}, {sr(SRD_X,4)}, s{S_T3} offen offset:1024
    buffer_load_dwordx4 {vr(gw,4)}, v{V_L16}, {sr(SRD_M,4)}, 0 offen
    buffer_load_dword v{gw+4}, v{V_L4}, {sr(SRD_M,4)}, 0 offen offset:1024
    ''')
    WF = False
    FS = 2 if 'fs2' in OPT else 5
    FM = 5 if 'fs2' in OPT else 4
    if True: a(f'''
    s_lshl_b32 s78, s{S_MB}, {FM}
    s_add_u32 s78, s78, s{S_J}
    s_lshl_b32 s78, s78, {FS}
    s_add_u32 s79, s78, {WS_F2}
    v_mov_b32 v{V_FLG}, s79
    s_add_u32 s78, s78, {WS_F1}
    v_writelane_b32 v{V_FLG}, s78, 2
    s_lshr_b32 s78, s2, 3
    s_lshl_b32 s78, s78, 5
    s_and_b32 s79, s2, 7
    s_add_u32 s78, s78, s79
    s_lshl_b32 s78, s78, 2
    s_add_u32 s78, s78, {WS_F3}
    v_writelane_b32 v{V_FLG}, s78, 1
    s_add_u32 s78, s78, {WS_F0 - WS_F3}
    v_writelane_b32 v{V_FLG}, s78, 3
    s_cmp_eq_u32 s2, 0
    s_cbranch_scc0 k_noclr
    s_mul_i32 s78, s{S_W}, 3072
    s_add_u32 s78, s78, {WS_F1}
    v_mov_b32 v{V_ACC}, 0
    v_mov_b32 v{V_ACC+1}, 0
    v_mov_b32 v{V_ACC+2}, 0
    v_mov_b32 v{V_ACC+3}, 0
    buffer_store_dwordx4 {vr(V_ACC,4)}, v{V_L16}, {WSR}, s78 offen {SC}
    buffer_store_dwordx4 {vr(V_ACC,4)}, v{V_L16}, {WSR}, s78 offen offset:1024 {SC}
    buffer_store_dwordx4 {vr(V_ACC,4)}, v{V_L16}, {WSR}, s78 offen offset:2048 {SC}
    k_noclr:''')
    a(f'''
    v_mov_b32 v{V_ONE}, 1
    v_mov_b32 v{t+40}, 0
    v_mov_b32 v{t+41}, 0
    ''')
    RAMP = 'noramp' not in OPT
    if not RAMP: groups('k_pb', (dma_w, dma_x, dma_w), (dma_x, dma_w, dma_x))
    srd(a, SRD_M, S_DBG, 256)
    a(f'''
    v_lshrrev_b32 v{t+12}, 4, v0
    v_bfe_u32 v{t+13}, v0, 2, 2
    v_and_b32 v{t+14}, 3, v0
    v_lshlrev_b32 v{V_WB}, 10, v{t+12}
    v_lshl_add_u32 v{V_WB}, v{t+13}, 7, v{V_WB}
    v_lshl_add_u32 v{V_WB}, v{t+14}, 3, v{V_WB}
    v_bfe_u32 v{t+14}, v0, 3, 2
    s_and_b32 s{S_T0}, s{S_W}, 3
    v_xor_b32 v{t+14}, s{S_T0}, v{t+14}
    v_lshl_add_u32 v{V_WB}, v{t+14}, 5, v{V_WB}
    v_and_b32 v{t+13}, 15, v0
    v_bfe_u32 v{t+14}, v0, 1, 3
    v_xor_b32 v{t+14}, v{t+14}, v{t+12}
    v_lshlrev_b32 v{t+14}, 4, v{t+14}
    v_lshl_add_u32 v{t+14}, v{t+13}, 7, v{t+14}
    s_lshl_b32 s{S_T0}, s{S_P}, 13
    v_add_u32 v{V_XB0}, s{S_T0}, v{t+14}
    v_xor_b32 v{V_XB1}, 64, v{V_XB0}
    s_mov_b32 s{S_WRS}, 0
    s_mov_b32 s{S_XRS}, {XB}
    v_mov_b32 v{V_WA}, v{V_WB}
    v_add_u32 v{V_XA}, s{S_XRS}, v{V_XB0}
    s_mov_b32 s{S_CNT}, 0
    ''')
    for i in range(80): a(f'v_mov_b32 v{V_ACC+i}, 0')
    if 'p1' in OPT: a(f's_cmp_eq_u32 s{S_P}, 0\ns_cbranch_scc1 k_pr1\ns_setprio 1\nk_pr1:')
    def lines(x): return [l.strip() for l in x.split('\n') if l.strip()]
    def step(par, n, dma, salu='', per=None):
        a(f's_waitcnt lgkmcnt(0)' + (f' vmcnt({n})' if n is not None else '') + '\ns_barrier')
        mf = [f'v_mfma_f32_16x16x32_bf16 {vr(acc(c,tt),4)}, {vr(wfr(par,c),4)}, {vr(xfr(par,tt),4)}, {vr(acc(c,tt),4)}' for c in range(5) for tt in range(4)]
        rd = reads(1 - par)
        slots = [[] for _ in range(20)]
        for i in range(14): slots[i + 1].append(rd[i])
        na = lines(next_addr(par))
        slots[15].append(na[-2]); slots[16].append(na[-1])
        units = []
        for l in na[:-2] + lines(salu):
            if l.startswith('s_cselect'): units[-1].append(l)
            else: units.append([l])
        pos = {5: [1, 5, 9, 13, 17] if 'dl' in OPT else [1, 4, 7, 10, 13] if 'de' in OPT else [2, 5, 9, 12, 16], 2: [3, 11] if 'dl' in OPT else [7, 14], 0: [],
               8: [1, 3, 5, 7, 10, 12, 15, 17], 9: [1, 3, 5, 7, 9, 11, 13, 16, 17]}[len(dma)]
        for p_, d_ in zip(pos, dma):
            ls = [l for l in lines(d_) if l != 's_nop 0']
            if ls[-1].startswith('buffer'):
                slots[p_ - 1] += ls[:-1]; slots[p_].insert(0, ls[-1])
            else: slots[p_] += ls
        for i, u_ in enumerate(units): slots[(i * 14) // len(units)] += u_
        if per:
            for i in range(20): slots[i] += per[i]
        for m_, sl in zip(mf, slots):
            a(m_)
            for l in sl: a(l)
    g = t + 11
    gu = [[f'v_mov_b32 v{g}, 0']]
    for i in range(5):
        gu.append([f'v_lshlrev_b32 v{t+12}, 16, v{gx+i}', f'v_lshlrev_b32 v{t+13}, 16, v{gw+i}', f'v_fmac_f32 v{g}, v{t+12}, v{t+13}'])
        gu.append([f'v_and_b32 v{t+14}, 0xffff0000, v{gx+i}', f'v_and_b32 v{t+15}, 0xffff0000, v{gw+i}', f'v_fmac_f32 v{g}, v{t+14}, v{t+15}'])
    gu[0] += gu.pop(1)
    for dpp in ('row_shr:1', 'row_shr:2', 'row_shr:4', 'row_shr:8', 'row_bcast:15 row_mask:0xa', 'row_bcast:31 row_mask:0xc'):
        gu.append(['s_nop 0', f'v_add_f32_dpp v{g}, v{g}, v{g} {dpp}' + (' bound_ctrl:0' if 'shr' in dpp else '')])
    gu.append([f'v_mul_f32 v{g}, {hex(f2u(-LOG2E))}, v{g}', f'v_exp_f32 v{g}, v{g}', f's_lshl_b32 s78, s{S_MB}, 4', f's_add_u32 s78, s78, s{S_J}'])
    gu.append([f'v_add_f32 v{g}, 1.0, v{g}', f'v_rcp_f32 v{g}, v{g}', 's_lshl_b32 s78, s78, 5', f's_add_u32 s78, s78, s{S_W}'])
    gu.append(['s_lshl_b32 s78, s78, 2', f's_add_u32 s78, s78, {WS_G - 252}'])
    gu.append(['s_mov_b32 exec_lo, 0', 's_brev_b32 exec_hi, 1', f'buffer_store_dword v{g}, v{V_L4}, {WSR}, s78 offen {SC}', 's_mov_b64 exec, -1'])
    assert len(gu) == 20
    w2dyn = [s for s, _ in issue_w('')]
    for P in (1, 0):
        if P == 1: a(f's_cmp_eq_u32 s{S_P}, 0\ns_cbranch_scc1 k_l0pre')
        else: a('k_l0pre:')
        a(f's_waitcnt vmcnt({(9 if P == 0 else 4) if RAMP else (14 if P == 0 else 12) + 4 + PFN})\ns_barrier')
        stamp(a, 2, prof)
        for g in reads(0): a(g)
        a(next_addr(1))
        if RAMP:
            for g in (dma_w(a) if P == 1 else dma_x(a)): a(g)
            two = (lambda: dma_x(a) + dma_w(a)) if P == 1 else (lambda: dma_w(a) + dma_x(a))
            step(0, 6 if P == 0 else None, two())
            step(1, 7 if P == 0 else 5, two()[:-1], '', gu)
            a(f's_mov_b32 s{S_CNT}, 1\ns_branch k_side')
        a(f'k_l{P}:')
        for par in range(2):
            n = {(0, 0): 9, (0, 1): 12, (1, 1): 7, (1, 0): None}[(P, par)]
            step(par, n, dma_w(a)[:-1] if par == P else dma_x(a)[:-1], dma_x(a)[-1] if par == P else dma_w(a)[-1])
            if par == 0: a(f's_cmp_eq_u32 s{S_CNT}, 7\ns_cbranch_scc1 k_tail')
        a(f's_add_u32 s{S_CNT}, s{S_CNT}, 1\ns_bitcmp1_b32 {0b1011010}, s{S_CNT}\ns_cbranch_scc0 k_l{P}')
        if P == 1: a('s_branch k_side')
    a(f'k_side:\ns_cmp_eq_u32 s{S_CNT}, 1\ns_cbranch_scc0 k_side2')
    e = t + 16
    a(f'''
    s_cmp_eq_u32 s{S_W}, 3
    s_cselect_b32 s78, s2, 1
    s_cmp_eq_u32 s78, 0
    s_cbranch_scc0 k_nosig
    s_mov_b64 exec, 1
    buffer_store_dword v{V_ONE}, v{V_L4}, {sr(SRD_M,4)}, 0 offen {SC}
    s_mov_b64 exec, -1
    k_nosig:
    s_cmp_ge_u32 s{S_RU}, 680
    s_cbranch_scc1 k_back
    v_lshrrev_b32 v{e}, 2, v0
    v_lshlrev_b32 v{e}, 7, v{e}
    v_and_b32 v{e+1}, 3, v0
    v_lshl_add_u32 v{e}, v{e+1}, 3, v{e}
    s_lshl_b32 s79, s{S_W}, 12
    s_add_u32 s79, s79, {RB}
    v_add_u32 v{e}, s79, v{e}
    s_lshl_b32 s79, s{S_RU}, 12
    s_add_u32 s79, s79, {WS_W2}
    ''')
    for uu in range(4):
        for h in range(2):
            a(f'ds_read_b64_tr_b16 {vr(e+4+4*uu+2*h,2)}, v{e} offset:{h*2048+uu*32}')
    a('s_waitcnt lgkmcnt(0)')
    for uu in range(4):
        a(f'buffer_store_dwordx4 {vr(e+4+4*uu,4)}, v{V_L16}, {WSR}, s79 offen offset:{1024*uu} {SC}')
    z = t + 40
    a(f'''s_branch k_back
    k_side2:''')
    if prof:
        a(f's_cmp_eq_u32 s{S_CNT}, 4\ns_cbranch_scc0 k_nst')
        stamp(a, 14, prof)
        a('k_nst:')
    a(f'''
    s_cmp_eq_u32 s{S_W}, 3
    s_cbranch_scc0 k_back
    s_cmp_eq_u32 s{S_CNT}, 4
    s_cbranch_scc1 k_side4
    s_cmp_eq_u32 s{S_CNT}, 6
    s_cbranch_scc1 k_side6
    v_mov_b32 v{z}, 0
    v_lshrrev_b32 v{z+1}, 1, v0
    v_lshlrev_b32 v{z+1}, 3, v{z+1}
    v_and_or_b32 v{z+1}, v0, 1, v{z+1}
    v_lshlrev_b32 v{z+1}, 4, v{z+1}
    buffer_load_dword v{V_PL}, v{z}, {sr(SRD_M,4)}, 0 offen {SC}
    s_branch k_back
    k_side4:
    s_waitcnt vmcnt(7)''')
    spin(a, z, sr(SRD_M, 4), 0, 1, True)
    flag(a, 3)
    a(f'''s_branch k_back
    k_side6:
    s_mov_b32 s99, {WS_F0}
    buffer_load_dwordx4 {vr(z+2,4)}, v{z+1}, {WSR}, s99 offen {SC}
    k_back:
    s_cmp_eq_u32 s{S_P}, 0
    s_cbranch_scc1 k_l0
    s_branch k_l1
    k_tail:''')
    stamp(a, 15, prof)
    s4_setup(a)
    a(w_next())
    a(f'''s_cmp_eq_u32 s{S_W}, 3
    s_cbranch_scc0 k_rdy
    s_waitcnt vmcnt(12)
    s_mov_b32 s98, 0
    s_mov_b32 s99, {WS_F0}
    k_rdl:
    v_and_b32 v{z+2}, v{z+2}, v{z+3}
    v_and_b32 v{z+4}, v{z+4}, v{z+5}
    v_and_b32 v{z+2}, v{z+2}, v{z+4}
    v_cmp_ne_u32 vcc, 1, v{z+2}
    s_add_u32 s98, s98, 1
    s_cbranch_vccz k_rdy
    buffer_load_dwordx4 {vr(z+2,4)}, v{z+1}, {WSR}, s99 offen {SC}
    s_waitcnt vmcnt(0)
    s_cmp_lt_u32 s98, 0x40000
    s_cbranch_scc1 k_rdl
    k_rdy:''')
    a(f's_cmp_eq_u32 s{S_P}, 0\ns_cbranch_scc1 k_todd0\ns_branch k_todd1')
    def w2touch(L='k_not'):
        a(f'''
        s_and_b32 s62, s{Q_MT}, 7
        s_lshl_b32 s62, s62, 3
        s_add_u32 s62, s62, s{S_W}
        s_cmp_lt_u32 s62, 48
        s_cbranch_scc0 {L}
        s_lshl_b32 s62, s62, 3
        s_add_u32 s62, s62, s{Q_N}
        s_mul_i32 s62, s62, 5120
        s_add_u32 s62, s62, {WS_W2 + 20*40*1024}
        v_lshlrev_b32 v{V_PF}, 7, v0
        s_mov_b32 exec_hi, 0xff
        buffer_load_dword v{V_PD}, v{V_PF}, {WSR}, s62 offen {SC}
        s_mov_b32 exec_hi, -1
        {L}:''')
    for P in (1, 0):
        a(f'k_teven{P}:')
        step(0, 5 if P == 0 else None, w2dyn if P == 0 else [], '' if P == 0 else w_next())
        a(f'k_todd{P}:')
        step(1, 10 if P == 0 else 5, w2dyn if P == 1 else [], '' if P == 1 else w_next())
        if OPT & {'wt7', 'wt8'}:
            a(f's_cmp_eq_u32 s{S_CNT}, {7 if "wt7" in OPT else 8}\ns_cbranch_scc0 k_not{P}')
            w2touch(f'k_not{P}')
        a(f's_add_u32 s{S_CNT}, s{S_CNT}, 1\ns_cmp_lt_u32 s{S_CNT}, 10\ns_cbranch_scc1 k_teven{P}')
        if P == 1: a('s_branch k_s1e')
    a('k_s1e:\ns_setprio 0')
    stamp(a, 3, prof)
    u = V_T + 16
    a(f'''
    s_and_b32 s{S_T0}, s{S_W}, 3
    s_lshl_b32 s{S_T2}, s{S_LC0}, 2
    s_add_u32 s{S_T2}, s{S_T2}, s{S_T0}
    s_mul_i32 s{S_T2}, s{S_T2}, {4*PS}
    s_lshl_b32 s{S_T3}, s{S_MB}, 10
    s_add_u32 s{S_T2}, s{S_T2}, s{S_T3}
    s_lshl_b32 s{S_T3}, s{S_P}, 9
    s_add_u32 s{S_T2}, s{S_T2}, s{S_T3}
    v_lshrrev_b32 v{u}, 4, v0
    v_mul_u32_u24 v{u}, {PS}, v{u}
    v_and_b32 v{u+1}, 15, v0
    v_lshl_add_u32 v{u}, v{u+1}, 4, v{u}
    s_cmp_lt_u32 s{S_LC0}, 10
    s_cselect_b32 s{S_T3}, {hex(f2u(20 ** -0.5 * LOG2E))}, 1.0
    ''')
    HP = 'sc1 nt' if 'hnt' in OPT else 'sc0 sc1' if 'h01' in OPT else SC
    QP = 'sc1 nt' if 'qnt' in OPT else 'sc0 sc1' if 'q01' in OPT else SC
    def qkv_tile(c, scale):
        for tp in range(2):
            d = u + 4 + 4 * tp + 8 * (c & 1)
            for tt in range(2):
                b = acc(c, 2 * tp + tt)
                if scale:
                    for r in range(4): a(f'v_mul_f32 v{b+r}, s{S_T3}, v{b+r}')
                a(f'v_cvt_pk_bf16_f32 v{d+2*tt}, v{b}, v{b+1}\nv_cvt_pk_bf16_f32 v{d+2*tt+1}, v{b+2}, v{b+3}')
            a(f'buffer_store_dwordx4 {vr(d,4)}, v{u}, {WSR}, s{S_T2} offen offset:{256*tp} {QP}')
    a(f's_waitcnt lgkmcnt(0)\ns_and_b32 s98, s{S_J}, 7\ns_cmp_eq_u32 s98, 1\ns_cbranch_scc1 k_eg')
    qkv_tile(0, True)
    a(f's_cmp_lt_u32 s{S_J}, 12\ns_cbranch_scc1 k_eg')
    for c in range(1, 5):
        a(f's_add_u32 s{S_T2}, s{S_T2}, {16*PS}')
        qkv_tile(c, False)
    a(f'''s_waitcnt vmcnt(0)
    s_branch k_ef
    k_eg:
    s_mov_b32 s{S_T3}, {hex(f2u(-LOG2E))}
    ''')
    a(f'''
    s_lshl_b32 s{Q_HO}, s{S_MB}, 1
    s_add_u32 s{Q_HO}, s{Q_HO}, s{S_P}
    s_mul_i32 s{Q_HO}, s{Q_HO}, {4*68}
    s_lshl_b32 s{S_T2}, s{S_J}, 2
    s_add_u32 s{Q_HO}, s{Q_HO}, s{S_T2}
    s_add_u32 s{Q_HO}, s{Q_HO}, s{S_T0}
    s_lshl_b32 s{Q_HO}, s{Q_HO}, 10
    s_add_u32 s{Q_HO}, s{Q_HO}, {WS_A2}
    ''')
    e = 104
    def htile(tt):
        idx = [(c, r) for c in range(2) for r in range(4)]
        for k, (c, r) in enumerate(idx): a(f'v_mul_f32 v{e+k}, s{S_T3}, v{acc(1+c,tt)+r}')
        for k in range(8): a(f'v_exp_f32 v{e+k}, v{e+k}')
        for k, (c, r) in enumerate(idx):
            a(f'v_mul_f32 v{acc(1+c,tt)+r}, v{acc(1+c,tt)+r}, v{acc(3+c,tt)+r}\nv_add_f32 v{e+k}, 1.0, v{e+k}')
        for k in range(8): a(f'v_rcp_f32 v{e+k}, v{e+k}')
        a('s_nop 0')
        for k, (c, r) in enumerate(idx): a(f'v_mul_f32 v{e+k}, v{e+k}, v{acc(1+c,tt)+r}')
        for k in range(4): a(f'v_cvt_pk_bf16_f32 v{V_H+4*tt+k}, v{e+2*k}, v{e+2*k+1}')
        if 'hend' not in OPT and 'hkv' not in OPT: a(f'buffer_store_dwordx4 {vr(V_H+4*tt,4)}, v{V_L16}, {WSR}, s{Q_HO} offen {HP}\ns_add_u32 s{Q_HO}, s{Q_HO}, {68*1024}')
    HS = 2 if 'hs2' in OPT else 1 if 'hs1' in OPT else 0
    for tt in range(HS): htile(tt)
    st3.LB = 5 * SLOT
    p = 130
    a('k_ef:')
    st3.ids(a)
    a(f'''
    s_mov_b32 s99, {WS_F1}
    s_waitcnt vmcnt({HS})
    s_barrier
    s_cmp_eq_u32 s{S_W}, 0
    s_cbranch_scc0 k_f1''')
    flag(a, 2)
    a('k_f1:')
    stamp(a, 4, prof)
    a(w_next())
    st3.loads_pre(a)
    def hstores():
        for tt in range(4):
            a(f'buffer_store_dwordx4 {vr(V_H+4*tt,4)}, v{V_L16}, {WSR}, s{Q_HO} offen {SC}')
            if tt < 3: a(f's_add_u32 s{Q_HO}, s{Q_HO}, {68*1024}')
    a(f's_cmp_lt_u32 s{Q_J}, 12\ns_cbranch_scc0 k_nh0')
    for tt in range(HS, 4): htile(tt)
    HL = 'hl' in OPT
    if 'hend' in OPT: hstores()
    a('k_nh0:')
    H_, QB_ = st3.S_H, st3.S_QB
    a(f'''
    s_and_b32 s62, s{S_W}, 3
    s_lshl_b32 s63, s{QB_}, 1
    s_add_u32 s64, s63, s62
    s_sub_u32 s64, s64, 2
    s_cselect_b32 s64, s62, s64
    s_lshl_b32 s64, s64, 4
    s_lshr_b32 s62, s{H_}, 4
    s_add_u32 s64, s64, s62
    s_add_u32 s64, s64, 12
    v_mov_b32 v{p}, s64
    s_add_u32 s64, s64, 2
    v_writelane_b32 v{p}, s64, 1
    s_add_u32 s63, s63, s{S_P}
    s_lshl_b32 s63, s63, 4
    s_mul_i32 s62, s{H_}, 20''')
    for k in range(2):
        a(f'''
        s_lshr_b32 s64, s62, 6
        s_min_u32 s65, s64, 1
        s_add_u32 s65, s65, s64
        s_lshr_b32 s64, s64, 3
        s_add_u32 s65, s65, s64
        s_add_u32 s65, s65, s63
        v_writelane_b32 v{p}, s65, {2+k}
        s_add_u32 s62, s62, 19''')
    a(f'v_lshlrev_b32 v{p}, {FS}, v{p}')
    if 'wt1' in OPT: w2touch()
    a(f'buffer_load_dword v{V_PL}, v{p}, {WSR}, s99 offen {SC}')
    st3.setup(a)
    F2L = 'f2l' in OPT or 'hkv' in OPT
    def f2():
        a(f's_cmp_eq_u32 s{S_W}, 2\ns_cbranch_scc0 k_f2')
        flag(a, 0)
        a('k_f2:')
    a('s_waitcnt vmcnt(0)')
    if not F2L: a('s_barrier'); f2()
    if 'hkv' in OPT:
        a(f'v_cmp_ne_u32 vcc, 1, v{V_PL}\ns_cbranch_vccz k_hk1\ns_cmp_lt_u32 s{Q_J}, 12\ns_cbranch_scc0 k_hk0\ns_mov_b32 s{Q_J}, 12')
        hstores()
        a('k_hk0:')
        spin(a, p, WSR, 's99', 1)
        a('k_hk1:')
    else: spin(a, p, WSR, 's99', 1, True)
    stamp(a, 5, prof)
    st3.loads(a, SC)
    if 'hkv' in OPT:
        a(f's_cmp_lt_u32 s{Q_J}, 12\ns_cbranch_scc0 k_hk2')
        hstores()
        a('k_hk2:')
    a(f's_lshr_b32 s99, s{Q_MT}, 1\ns_lshl_b32 s99, s99, {FS+FM}\ns_add_u32 s99, s99, {WS_F2}\nv_and_b32 v{V_L4}, 15, v0\nv_lshlrev_b32 v{V_L4}, {FS}, v{V_L4}')
    pre = {0: [0, 1], 1: [2, 3], 2: [4, 10], 3: [5, 6], 4: [7, 11], 5: [8, 9]}
    if 'pb' in OPT: pre = {-1: [0, 1], 0: [2, 3], 1: [4, 10], 2: [5, 11], 3: [6], 4: [7], 5: [8, 9]}
    if 'pc' in OPT: pre = {1: [0, 1], 2: [2, 3], 3: [4, 5], 4: [6, 7], 5: [8, 9], 6: [10, 11]}
    if 'pd' in OPT: pre = {2: [0, 1, 2], 3: [3, 4, 5], 4: [6, 7], 5: [8, 9], 6: [10, 11]}
    if 'pe' in OPT: pre = {3: [0, 1, 2], 4: [3, 4, 5], 5: [6, 7, 8], 6: [9, 10, 11]}
    if 'pg' in OPT: pre = {4: [0, 1, 2], 5: [3, 4, 5], 6: [6, 7]}
    if 'pm' in OPT: pre = {-1.5: [0, 1], -1: [2, 3], 0: [10], 1: [4, 11], 2: [5], 3: [6], 4: [7], 5: [8], 6: [9]}
    if not OPT & {'pa', 'pb', 'pc', 'pm'}: pre = {-1.5: [0, 1], -1: [2, 3], 0: [10, 4], 1: [11], 2: [5], 3: [6], 4: [7], 5: [8, 9]}
    TC = min(pre)
    NPRE = sum(len(v) for v in pre.values())
    def hook(x):
        if 'wt2' in OPT and x == -2: w2touch()
        if 'wt3' in OPT and x == 6: w2touch(); a.vm.append(None); a.vm.pop()
        if HL and x == -2:
            a(f's_cmp_lt_u32 s{Q_J}, 12\ns_cbranch_scc0 k_hl0')
            hstores()
            a('k_hl0:')
        if HL and x == -3:
            a(f's_cmp_lt_u32 s{Q_J}, 12\ns_cbranch_scc1 k_hl1\ns_waitcnt vmcnt(0)\nk_hl1:\ns_waitcnt vmcnt(4)')
            return True
        if HL and x == (1 if 'hf1' in OPT else 0):
            a('s_waitcnt vmcnt(0)'); flag(a, 0)
        if 'noprio' not in OPT:
            if x == -2: a(f's_cmp_eq_u32 s{S_P}, 0\ns_cbranch_scc1 k_pr0\ns_setprio 1\nk_pr0:')
            if x == (2 if 'pr2' in OPT else 3 if 'pr3' in OPT else 1): a('s_setprio 0')
        if x == max(-2, TC - 1):
            a(f'buffer_load_dword v{V_PL}, v{V_L4}, {WSR}, s99 offen {SC}')
        if x == TC:
            a('s_waitcnt vmcnt(0)')
            spin(a, V_L4, WSR, 's99', 1, True)
        g_ = []
        for r in pre.get(x, []): g_ += issue_a(r)
        for s_, tag in g_: a.vm.append(tag)
        return [s_ for s_, tag in g_]
    st3.compute(a, prof, SC, hook)
    srd(a, SRD_O, S_OUT, 2048 * 1280)
    a4 = lambda f, t_: V4_ACC + (f * 2 + t_) * 4
    a(f'''v_and_b32 v2, 15, v0
    v_lshrrev_b32 v3, 4, v0
    v_mul_u32_u24 v3, {PS}, v3
    v_lshl_add_u32 v4, v2, 4, v3
    v_and_b32 v3, 3, v0
    v_lshlrev_b32 v3, 3, v3
    v_lshrrev_b32 v2, 2, v2
    v_lshl_add_u32 v2, v2, 7, v3
    ''')
    if WF: a(f'v_and_b32 v3, 31, v0\nv_lshlrev_b32 v3, 2, v3\ns_add_u32 s99, s{Q_G}, {WS_F3}')
    else: a(f'v_bfe_u32 v3, v0, 3, 2\nv_lshlrev_b32 v3, 5, v3\nv_and_or_b32 v3, v0, 7, v3\nv_lshlrev_b32 v3, 2, v3\ns_lshr_b32 s99, s{Q_MT}, 2\ns_lshl_b32 s99, s99, 9\ns_add_u32 s99, s99, {WS_F3}')
    a(f'''
    s_mul_i32 s{Q_O}, s{Q0}, {4*PS}
    s_add_u32 s{Q_O}, s{Q_O}, s{Q_G}
    s_lshl_b32 s{Q_O}, s{Q_O}, 1
    s_add_u32 s{Q_O}, s{Q_O}, {WS_O - 12*32*PS}
    s_lshl_b32 s{Q_G}, s{Q_G}, 2
    s_add_u32 s{Q_G}, s{Q_G}, {WS_G}''')
    a.vmem(f'buffer_load_dwordx2 {vr(V_G1,2)}, v2, {WSR}, s{Q_G} offen {SC}', 'g')
    def rds(r):
        sl = r % NS
        return [f'ds_read_b128 {vr(V4_F+20*(r&1)+4*f,4)}, v{[V_RA,V_RA2,V_RA3][sl//3]} offset:{(sl%3)*SLOT+f*1024}' for f in range(5)]
    for l in rds(0): a(l)
    t = 5
    RED = SLOT
    a(f'''
    v_and_b32 v{t}, 15, v0
    v_mul_u32_u24 v{t}, 336, v{t}
    v_lshrrev_b32 v{t+1}, 4, v0
    v_lshl_add_u32 v{t}, v{t+1}, 4, v{t}
    s_mul_i32 s{Q2}, s{S_W}, 10752
    s_add_u32 s{Q2}, s{Q2}, {RED}
    v_add_u32 v{t}, s{Q2}, v{t}
    v_mul_u32_u24 v{t+1}, 26, v0
    v_lshrrev_b32 v{t+1}, 8, v{t+1}
    v_mul_u32_u24 v{t+2}, 10, v{t+1}
    v_sub_u32 v{t+2}, v0, v{t+2}
    v_and_b32 v{t+3}, 1, v{t+1}
    v_lshlrev_b32 v{t+3}, 4, v{t+3}
    v_bfe_u32 v{t+4}, v{t+1}, 1, 1
    s_lshl_b32 s{Q2}, s{Q0}, 2
    v_add3_u32 v{t+3}, v{t+3}, v{t+4}, s{Q2}
    v_mul_u32_u24 v{t+3}, 336, v{t+3}
    v_lshl_add_u32 v{t+3}, v{t+2}, 5, v{t+3}
    s_mul_i32 s{Q2}, s{S_P}, {4*10752}
    s_add_u32 s{Q2}, s{Q2}, {RED}
    v_add_u32 v{t+3}, s{Q2}, v{t+3}
    v_mul_u32_u24 v{t+1}, 1280, v{t+1}
    v_lshl_add_u32 v{t+1}, v{t+2}, 4, v{t+1}
    s_lshl_b32 s{Q_HO}, s{Q_MT}, 3
    s_add_u32 s{Q_HO}, s{Q_HO}, s{S_W}
    s_mul_i32 s{Q_HO}, s{Q_HO}, {8*1280}
    s_mul_i32 s{Q3}, s{Q_N}, 160
    s_add_u32 s{Q_HO}, s{Q_HO}, s{Q3}
    s_add_u32 s{Q3}, s{Q_HO}, {4*1280}
    ''')
    RF = 2 if 'rf2' in OPT else 0 if 'rf0' in OPT else 1
    RP = 7 if 'rp7' in OPT else 8 if 'rp8' in OPT else 9
    assert NPRE == 12
    Wg = lambda g: issue_w(f'w{4+2*g}') + [(w_next(), None)]
    stream = Wg(0) + Wg(1) + Wg(2) + Wg(3) + Wg(4) + issue_a(12) + issue_a(13) + issue_a(14) + Wg(5) + issue_a(15) + issue_a(16)
    quota = {'qa': [4, 3, 3, 3, 3, 3, 3, 3, 4, 4, 4, 3], 'qb': [3, 3, 3, 3, 3, 3, 3, 2, 2, 4, 4, 3, 4], 'qc': [4, 4, 4, 4, 3, 3, 3, 4, 4, 4, 3],
             'qd': [4, 3, 3, 3, 3, 3, 3, 3, 3, 3, 3, 3, 3], 'qe': [3, 3, 3, 3, 3, 3, 3, 2, 2, 3, 3, 3, 3, 3]}[([o for o in OPT if o in ('qd', 'qa', 'qe')] + ['qb'])[0]] + [0] * 8
    RP = [r for r in range(17) if sum(quota[:r + 1]) > 25][0]
    assert sum(quota[:RP]) == 25 and sum(quota) == 40
    for r in range(17):
        need = [f'a{r}'] + (['f3'] if r == RP else []) + (['ost'] if r == RF else [])
        if r % 2 == 0: need.append(f'w{r}')
        a.vmwait(need, 'lgkmcnt(0)')
        if r == RF and WF: flag(a, 1); a.vm.append('fl')
        if (r % 2 == 0 and r < 16) or r == RF: a('s_barrier')
        if r == RF and not WF:
            a(f's_cmp_eq_u32 s{S_W}, 0\ns_cbranch_scc0 k_f3')
            flag(a, 1)
            a('k_f3:')
        if r in (0, 4, 9, 12): stamp(a, {0: 8, 4: 11, 9: 12, 12: 13}[r], prof)
        if r == RP: spin(a, 3, WSR, 's99', 1, True)
        if r == 12:
            a(f'v_sub_f32 v{V_G1}, 1.0, v{V_G1}\nv_sub_f32 v{V_G1+1}, 1.0, v{V_G1+1}\ns_nop 4')
            for f in range(5):
                for t_ in range(2):
                    for i in range(4): a(f'v_mul_f32 v{a4(f,t_)+i}, v{V_G1+t_}, v{a4(f,t_)+i}')
        if r >= 12: a(f'v_swap_b32 v{AREG[r]+2}, v{AREG[r]+4}\nv_swap_b32 v{AREG[r]+3}, v{AREG[r]+5}\ns_nop 1')
        mf = [f'v_mfma_f32_16x16x32_bf16 {vr(a4(f,t_),4)}, {vr(V4_F+20*(r&1)+4*f,4)}, {vr(AREG[r]+4*t_,4)}, ' + ('0' if r == 0 else vr(a4(f, t_), 4)) for f in range(5) for t_ in range(2)]
        iss = []
        if r == RP - (1 if 'pd1' in OPT else 2): iss.append((f'buffer_load_dword v{V_PL}, v3, {WSR}, s99 offen {SC}', 'f3'))
        n_ = quota[r]
        while n_ > 0 and stream:
            it = stream.pop(0); iss.append(it)
            if it[1]: n_ -= 1
        if stream and stream[0][1] is None: iss.append(stream.pop(0))
        for s_, tag in iss:
            if tag: a.vm.append(tag)
        slots = [[] for _ in range(10)]
        if r < 16:
            for i, l in enumerate(rds(r + 1)): slots[i].append(l)
        n = len(iss)
        for i, (s_, tag) in enumerate(iss): slots[(i * 10) // n if n > 4 else 1 + 2 * i].append(s_)
        if r == 16:
            wr = [f'ds_write_b128 v{t}, {vr(a4(f,tt),4)} offset:{tt*16*336+f*64}' for f in range(5) for tt in range(2)]
            slots[8].append(wr[0]); slots[9] += wr[1:3] + ['s_nop 1'] + wr[3:]
        for m_, sl in zip(mf, slots):
            a(m_)
            for l in sl: a(l)
    stamp(a, 9, prof)
    a('s_waitcnt lgkmcnt(0)\ns_barrier\ns_mov_b32 exec_hi, 0xff')
    R = 26
    for ps in range(2):
        for kq in range(4):
            for h in range(2):
                if ps == 1 and kq == 3 and h == 1: a('s_waitcnt lgkmcnt(14)')
                a(f'ds_read_b128 {vr(R+32*ps+8*kq+4*h,4)}, v{t+3} offset:{kq*10752+ps*2*336+h*16}')
    for ps in range(2):
        b = R + 32 * ps
        a(f's_waitcnt lgkmcnt({8 if ps == 0 else 0})')
        for i in range(8): a(f'v_add_f32 v{b+i}, v{b+i}, v{b+8+i}\nv_add_f32 v{b+16+i}, v{b+16+i}, v{b+24+i}')
        for i in range(8): a(f'v_add_f32 v{b+i}, v{b+i}, v{b+16+i}')
        for k in range(4): a(f'v_cvt_pk_bf16_f32 v{b+8+k}, v{b+2*k}, v{b+2*k+1}')
        a(f'buffer_store_dwordx4 {vr(b+8,4)}, v{t+1}, {sr(SRD_O,4)}, s{Q_HO if ps == 0 else Q3} offen' + (' sc1' if 'osc' in OPT else ' nt' if 'ont' in OPT else ''))
    a('s_mov_b64 exec, -1')
    stamp(a, 10, prof)
    stamp_flush(a, prof, 0)
    if 'fix' in OPT: a('k_fix:\ns_memrealtime s[98:99]\ns_waitcnt lgkmcnt(0)\ns_sub_u32 s98, s98, s100\ns_cmp_lt_u32 s98, 6000\ns_cbranch_scc1 k_fix')
    a('k_end:\ns_endpgm')
    ref = open('gated_mix__sliding_block__swiglu_ffn__prompt.s.ref').read()
    hdr = ref.split('; Override')[0]
    s = hdr + '; @launch grid=(256,1,1) block=(512,1,1) lds=163840\n.amdgcn_target "amdgcn-amd-amdhsa--gfx950"\n.text\n'
    s += f'.globl {NAME}\n.p2align 8\n.type {NAME},@function\n{NAME}:\n' + a.text()
    s += ref[ref.index('.section .rodata'):]
    return s
if __name__ == '__main__':
    open('gated_mix__sliding_block__swiglu_ffn__prompt.s', 'w').write(build())
    open('prof.s', 'w').write(build(True))
    for o in sys.argv[1:]:
        OPT.clear(); OPT.update(o.split('+'))
        open(f'prof_{o}.s', 'w').write(build(True))
        open(f'v_{o}.s', 'w').write(build(False))
```

```python
import sys, struct
from base import *
import st1, st3
from st1 import *
NAME = 'gated_mix__sliding_block__swiglu_ffn__prompt_kernel'
SC = 'sc1'
WS_F1, WS_F2, WS_F3, WS_F0 = 0x1510000, 0x1512000, 0x1514000, 0x1515000
S_P = 27
V_L16, V_FLG, V_ONE, V_PL, V_L4, V_RA, V_RA2, V_RA3, V_G1 = 244, 245, 246, 247, 248, 249, 250, 251, 242
V_H = 210
Q_MT, Q_N, Q0, Q1, Q2, Q3, Q_A0, Q_A1, Q_WO, Q_WL, Q_RH, Q_RO, Q_R, Q_PR, Q_HO, Q_J, Q_G, Q_O, Q_WA, Q_WM = range(32, 52)
SRD_O = 28
SLOT = 20480; NS = 8
WSR = sr(SRD_WS, 4)
uid = [0]

def spin(a, vaddr, srd_, soff, expect, first_issued=False):
    uid[0] += 1; L = f'spin{uid[0]}'
    a('s_mov_b32 s98, 0')
    if first_issued: a(f's_branch {L}c')
    a(f'''{L}:
    buffer_load_dword v{V_PL}, v{vaddr}, {srd_}, {soff} offen {SC}
    s_waitcnt vmcnt(0)
    {L}c:
    v_cmp_ne_u32 vcc, {expect}, v{V_PL}
    s_add_u32 s98, s98, 1
    s_cbranch_vccz {L}d
    s_cmp_lt_u32 s98, 0x40000
    s_cbranch_scc1 {L}
    {L}d:''')
def flag(a, lane):
    a(f's_mov_b64 exec, {1 << lane}\nbuffer_store_dword v{V_ONE}, v{V_FLG}, {WSR}, 0 offen {SC}\ns_mov_b64 exec, -1')

def s4_setup(a):
    a(f'''
    s_and_b32 s{Q0}, s2, 7
    s_lshr_b32 s{Q1}, s2, 3
    s_lshr_b32 s{Q_MT}, s{Q0}, 1
    s_lshl_b32 s{Q_MT}, s{Q_MT}, 3
    s_and_b32 s{Q2}, s{Q1}, 7
    s_add_u32 s{Q_MT}, s{Q_MT}, s{Q2}
    s_and_b32 s{Q_N}, s{Q0}, 1
    s_lshl_b32 s{Q_N}, s{Q_N}, 2
    s_lshr_b32 s{Q1}, s{Q1}, 3
    s_add_u32 s{Q_N}, s{Q_N}, s{Q1}
    s_and_b32 s{Q0}, s{S_W}, 3
    s_lshl_b32 s{Q2}, s{Q_MT}, 1
    s_add_u32 s{Q2}, s{Q2}, s{S_P}
    s_lshl_b32 s{Q_G}, s{Q2}, 7
    s_mul_i32 s{Q_A0}, s{Q2}, {2*68}
    s_add_u32 s{Q_A0}, s{Q_A0}, s{Q0}
    s_lshl_b32 s{Q_A0}, s{Q_A0}, 10
    s_add_u32 s{Q_A0}, s{Q_A0}, {WS_A2}
    s_lshl_b32 s{Q2}, s{Q0}, 3
    s_add_u32 s{Q2}, s{Q2}, s{Q_N}
    s_mul_i32 s{Q_WO}, s{Q2}, 5120
    s_add_u32 s{Q_WO}, s{Q_WO}, {WS_W2}
    s_mul_i32 s{Q_WL}, s{Q0}, 5120
    s_xor_b32 s{Q_PR}, s{S_P}, 1
    s_mov_b32 s{Q_J}, s{S_J}
    v_add_u32 v{V_RA}, s{Q_WL}, v{V_L16}
    v_add_u32 v{V_RA2}, {3*SLOT}, v{V_RA}
    v_add_u32 v{V_RA3}, {6*SLOT}, v{V_RA}
    ''')
def rot(r):
    if r < 12: return f's_add_u32 s{Q_R}, s{Q_RH}, {r}\ns_cmp_ge_u32 s{Q_R}, 12\ns_cselect_b32 s{Q2}, 12, 0\ns_sub_u32 s{Q_R}, s{Q_R}, s{Q2}\n'
    return f's_add_u32 s{Q_R}, s{Q_RO}, {r}\ns_cmp_ge_u32 s{Q_R}, 17\ns_cselect_b32 s{Q2}, 5, 0\ns_sub_u32 s{Q_R}, s{Q_R}, s{Q2}\n'
def issue_w(tag):
    g = []
    for f in range(5):
        pre = ''
        if f == 0: pre = f's_mov_b32 m0, s{Q_WM}\ns_add_u32 s{Q_PR}, s{Q_PR}, 2\n'
        if f == 4: pre = f's_add_u32 m0, m0, 4096\ns_add_u32 s{Q_WA}, s{Q_WA}, 4096\n'
        g.append((pre + f'buffer_load_dwordx4 v{V_L16}, {WSR}, s{Q_WA} offen offset:{(f&3)*1024} {SC} lds', tag))
    return g
def w_next():
    return f'''s_mul_i32 s{Q_WA}, s{Q_PR}, {160*1024}
    s_add_u32 s{Q_WA}, s{Q_WA}, s{Q_WO}
    s_and_b32 s{Q_WM}, s{Q_PR}, 7
    s_mul_i32 s{Q_WM}, s{Q_WM}, {SLOT}
    s_add_u32 s{Q_WM}, s{Q_WM}, s{Q_WL}'''
AREG = [210 + 8 * r for r in range(4)] + [26 + 8 * r for r in range(7)] + [14] + [82 + 8 * r for r in range(5)]
V4_ACC = 130; V4_F = 170
def issue_a(r):
    g = []
    for t in range(2):
        if r >= 12: g.append((f's_add_u32 s{Q2}, s{Q_O}, {(32*r+4*t)*PS}\nbuffer_load_dwordx4 {vr(AREG[r]+4*t,4)}, v4, {WSR}, s{Q2} offen {SC}', f'a{r}'))
        else: g.append((f's_add_u32 s{Q2}, s{Q_A0}, {r*4096+t*68*1024}\nbuffer_load_dwordx4 {vr(AREG[r]+4*t,4)}, v{V_L16}, {WSR}, s{Q2} offen {SC}', f'a{r}'))
    return g

def build(prof=False):
    uid[0] = 0
    config(5)
    XB, RB = st1.XBASE, st1.RBASE
    a = Asm(); name = 'k'
    common_entry(a, name)
    stamp(a, 0, prof)
    if 'fix' in OPT: a('s_memrealtime s[100:101]')
    t = V_T
    a(f'''
    s_and_b32 s{S_T0}, s2, 7
    s_lshr_b32 s{S_T1}, s2, 3
    s_and_b32 s{S_MB}, s{S_T0}, 1
    s_lshl_b32 s{S_MB}, s{S_MB}, 3
    s_and_b32 s{S_T2}, s{S_T1}, 7
    s_add_u32 s{S_MB}, s{S_MB}, s{S_T2}
    s_lshr_b32 s{S_J}, s{S_T0}, 1
    s_lshr_b32 s{S_T1}, s{S_T1}, 3
    s_add_u32 s{S_XM}, s{S_T1}, s{S_T2}
    ''')
    if 'rot' in OPT:
        a(f'''s_add_u32 s{S_XM}, s{S_XM}, s{S_T1}
        s_and_b32 s{S_XM}, s{S_XM}, 7
        s_mul_i32 s{S_XM}, s{S_XM}, 5
        s_lshr_b32 s{S_XM}, s{S_XM}, 2
        s_mov_b32 s{S_CW}, s{S_XM}
        s_mov_b32 s{S_CX}, s{S_XM}''')
    else:
        a(f'''s_and_b32 s{S_XM}, s{S_XM}, {0 if 'x0' in OPT else 3 if 'x3' in OPT else 1}
        s_mov_b32 s{S_CW}, 0
        s_mov_b32 s{S_CX}, 0''')
    a(f'''
    s_lshl_b32 s{S_J if 'map2' in OPT else S_T1}, s{S_J if 'map2' in OPT else S_T1}, 2
    s_add_u32 s{S_J}, s{S_J}, s{S_T1}
    s_mul_i32 s{S_T0}, s{S_J}, 5
    s_sub_u32 s{S_T0}, s{S_T0}, 50
    s_add_u32 s{S_LC0}, s{S_J}, 6
    s_lshr_b32 s{S_LC0}, s{S_LC0}, 3
    s_sub_u32 s{S_LC0}, s{S_J}, s{S_LC0}
    s_cmp_lt_u32 s{S_J}, 12
    s_cselect_b32 s{S_LC0}, s{S_LC0}, s{S_T0}
    s_mov_b32 s{S_STW0}, 3840
    s_cselect_b32 s{S_STW1}, 3072, s{S_STW0}
    s_and_b32 s{S_T0}, s{S_W}, 3
    s_lshr_b32 s{S_P}, s{S_W}, 2
    v_lshrrev_b32 v{t}, 3, v0
    v_and_b32 v{t+1}, 7, v0
    v_bfe_u32 v{t+2}, v0, 4, 1
    s_and_b32 s{S_T3}, s{S_W}, 1
    s_lshl_b32 s{S_T2}, s{S_T3}, 1
    v_or_b32 v{t+2}, s{S_T2}, v{t+2}
    v_lshlrev_b32 v{t+2}, 1, v{t+2}
    v_xor_b32 v{t+2}, v{t+2}, v{t+1}
    v_lshlrev_b32 v{t+2}, 4, v{t+2}
    s_lshl_b32 s{S_T2}, s{S_T0}, 3
    v_add_u32 v{t+3}, s{S_T2}, v{t}
    v_mad_u32_u24 v{V_OW0}, v{t+3}, s{S_STW0}, v{t+2}
    v_mad_u32_u24 v{V_OW1}, v{t+3}, s{S_STW1}, v{t+2}
    s_lshr_b32 s{S_T2}, s{S_W}, 1
    s_lshl_b32 s{S_T2}, s{S_T2}, 5
    s_add_u32 s{S_T2}, s{S_T2}, s{S_T3}
    v_lshl_add_u32 v{t+3}, v{t}, 1, s{S_T2}
    v_mul_u32_u24 v{t+3}, 1280, v{t+3}
    v_lshrrev_b32 v{t+4}, 4, v0
    v_xor_b32 v{t+4}, v{t+4}, v{t+1}
    v_lshl_add_u32 v{V_OX0}, v{t+4}, 4, v{t+3}
    v_xor_b32 v{V_OX1}, 64, v{V_OX0}
    v_add_u32 v{V_OX1}, {16*1280}, v{V_OX1}
    s_xor_b32 s{S_T2}, s{S_P}, 1
    s_mul_i32 s{S_WDS}, s{S_T2}, {WSLOT}
    s_lshl_b32 s{S_T3}, s{S_T0}, 10
    s_add_u32 s{S_WDS}, s{S_WDS}, s{S_T3}
    s_lshl_b32 s{S_T2}, s{S_T2}, 5
    s_mul_i32 s{S_WEND0}, s{S_T2}, s{S_STW0}
    s_mul_i32 s{S_WEND1}, s{S_T2}, s{S_STW1}
    s_lshl_b32 s{S_STW0}, s{S_STW0}, 6
    s_lshl_b32 s{S_STW1}, s{S_STW1}, 6
    s_mul_i32 s{S_SW0}, s{S_XM}, s{S_STW0}
    s_mul_i32 s{S_SW1}, s{S_XM}, s{S_STW1}
    s_add_u32 s{S_SW0}, s{S_SW0}, s{S_WEND0}
    s_add_u32 s{S_SW1}, s{S_SW1}, s{S_WEND1}
    s_lshl_b32 s{S_SX}, s{S_XM}, 7
    s_lshl_b32 s{S_XDS}, s{S_W}, 11
    s_add_u32 s{S_XDS}, s{S_XDS}, {XB}
    s_mul_i32 s{S_T2}, s{S_MB}, {128*1280}
    s_lshl_b32 s{S_T3}, s{S_LC0}, 7
    s_waitcnt lgkmcnt(0)
    ''')
    srd(a, SRD_X, S_X, 128 * 1280, f's{S_T2}')
    nq = 639 * 3840 + 128; ng = 639 * 3072 + 128
    srd(a, SRD_W, S_WQKV, nq, f's{S_T3}')
    a(f's_cmp_lt_u32 s{S_J}, 12\ns_cbranch_scc1 k_s1g')
    for c in range(1, 5):
        srd(a, SRD_W + 4 * c, SRD_W, nq, 128 * c)
    sp = 'split' in OPT
    a(f's_branch k_s1h\nk_s1g:\ns_lshl_b32 s{S_T3}, s{S_J}, {7 if sp else 8}')
    srd(a, SRD_W + 4, S_WG, ng, f's{S_T3}')
    srd(a, SRD_W + 8, SRD_W + 4, ng, 1536 if sp else 128)
    srd(a, SRD_W + 12, S_WU, ng, f's{S_T3}')
    srd(a, SRD_W + 16, SRD_W + 12, ng, 1536 if sp else 128)
    a(f's_and_b32 s{S_T3}, s{S_J}, 7\ns_cmp_eq_u32 s{S_T3}, 1\ns_cselect_b32 s{SRD_W+2}, 0, s{SRD_W+2}')
    a('k_s1h:')
    stamp(a, 1, prof)
    def groups(lbl, g1, g0):
        a(f's_cmp_eq_u32 s{S_P}, 0\ns_cbranch_scc1 {lbl}0')
        for grp in g1:
            for g in grp(a): a(g)
        a(f's_branch {lbl}e\n{lbl}0:')
        for grp in g0:
            for g in grp(a): a(g)
        a(f'{lbl}e:')
    PF = 'pf' in OPT
    PFN = int(PF and 'pf0' not in OPT)
    V_PF, V_PD, S_PO, S_PS = 252, 253, 93, 94
    def pf_setup():
        a(f'''
        s_mov_b64 s[96:97], s[{SRD_X}:{SRD_X+1}]
        s_mov_b32 s98, s{SRD_X+2}
        s_mov_b32 s99, 0x20000''')
        for c in range(5):
            b = SRD_W + 4 * c
            a(f's_cmp_eq_u32 s{S_W}, {c}\ns_cselect_b64 s[96:97], s[{b}:{b+1}], s[96:97]\ns_cselect_b32 s98, s{b+2}, s98')
        a(f'''
        s_cmp_eq_u32 s{S_W}, 0
        s_cselect_b32 s{S_PO}, s{S_STW0}, s{S_STW1}
        s_lshr_b32 s78, s{S_PO}, 6
        s_and_b32 s79, s{S_MB}, 7
        s_lshl_b32 s79, s79, 3
        v_lshl_add_u32 v{t+5}, v{t}, 6, v{t+1}
        v_add_u32 v{t+5}, s79, v{t+5}
        v_mul_u32_u24 v{V_PF}, s78, v{t+5}
        v_cmp_le_u32 vcc, 24, v0
        v_mov_b32 v{t+5}, 0x40000000
        s_cmp_lt_u32 s{S_W}, 5
        v_cndmask_b32 v{V_PF}, v{V_PF}, v{t+5}, vcc
        s_cbranch_scc1 k_pfw
        s_lshr_b32 s79, s2, 6
        s_lshl_b32 s79, s79, 5
        v_add_u32 v{t+5}, s79, v0
        s_sub_u32 s79, s{S_W}, 5
        s_lshl_b32 s79, s79, 7
        v_mov_b32 v{V_PF}, s79
        v_mov_b32 v{t+6}, 1280
        v_mad_u32_u24 v{V_PF}, v{t+5}, v{t+6}, v{V_PF}
        s_mov_b32 s{S_PO}, 128
        k_pfw:
        s_mul_i32 s{S_PS}, s{S_PO}, 3''')
    def pf():
        if PF: a(f's_mov_b32 exec_hi, 0\nbuffer_load_dword v{V_PD}, v{V_PF}, s[96:99], s{S_PO} offen\ns_mov_b32 exec_hi, -1\ns_add_u32 s{S_PO}, s{S_PO}, s{S_PS}')
    def slowpf():
        a(f'''
        s_mov_b64 s[96:97], s[{S_X}:{S_X+1}]
        s_mov_b32 s98, {2048*1280}
        s_mov_b32 s99, 0x20000
        s_and_b32 s78, s{S_W}, 3
        s_cmp_eq_u32 s78, 1
        s_cselect_b64 s[96:97], s[{S_WQKV}:{S_WQKV+1}], s[96:97]
        s_cselect_b32 s98, {640*3840}, s98
        s_cmp_eq_u32 s78, 2
        s_cselect_b64 s[96:97], s[{S_WG}:{S_WG+1}], s[96:97]
        s_cselect_b32 s98, {640*3072}, s98
        s_cmp_eq_u32 s78, 3
        s_cselect_b64 s[96:97], s[{S_WU}:{S_WU+1}], s[96:97]
        s_cselect_b32 s98, {640*3072}, s98
        s_lshl_b32 s78, s{S_P}, 8
        s_add_u32 s78, s78, s2
        s_lshl_b32 s78, s78, 10
        v_lshlrev_b32 v{V_PF}, 19, v0
        s_mov_b64 exec, 31
        buffer_load_dword v{V_PD}, v{V_PF}, s[96:99], s78 offen offset:384
        s_mov_b64 exec, -1''')
    def gupf():
        R0 = 0 if 'gr0' in OPT else 128
        nl = (640 - R0) * 24 // 1024
        a(f'''
        s_cmp_eq_u32 s{S_P}, 0
        s_cselect_b64 s[96:97], s[{S_WG}:{S_WG+1}], s[{S_WU}:{S_WU+1}]
        s_mov_b32 s98, {640*3072}
        s_mov_b32 s99, 0x20000
        s_and_b32 s78, s{S_W}, 3
        s_lshl_b32 s78, s78, 8
        s_add_u32 s78, s78, s2
        s_mul_i32 s78, s78, {nl*128}
        s_add_u32 s78, s78, {R0*3072}
        v_lshlrev_b32 v{V_PF}, 7, v0
        s_mov_b64 exec, {hex((1 << nl) - 1)}
        buffer_load_dword v{V_PD}, v{V_PF}, s[96:99], s78 offen
        s_mov_b64 exec, -1''')
    def codepf():
        a(f'''
        s_lshr_b32 s78, s2, 3
        s_cmp_eq_u32 s{S_W}, 7
        s_cselect_b32 s78, s78, 8
        s_cmp_lt_u32 s78, 3
        s_cbranch_scc0 k_nocpf
        s_getpc_b64 s[96:97]
        k_pcref:
        s_lshl_b32 s78, s78, 6
        v_add_u32 v{V_PF}, s78, v0
        v_lshlrev_b32 v{V_PF}, 7, v{V_PF}
        v_min_u32 v{V_PF}, k_end-k_pcref, v{V_PF}
        v_mov_b32 v{V_PF+1}, s97
        v_add_co_u32 v{V_PF}, vcc, s96, v{V_PF}
        s_nop 1
        v_addc_co_u32 v{V_PF+1}, vcc, 0, v{V_PF+1}, vcc
        global_load_dword v{V_PL}, v[{V_PF}:{V_PF+1}], off
        k_nocpf:''')
    if 'cp0' in OPT: codepf()
    if 'gp0' in OPT: gupf()
    if 'sp0' in OPT: slowpf()
    if 'pf0' in OPT: pf_setup(); pf()
    groups('k_pa', (dma_w, dma_x), (dma_x, dma_w))
    if PFN: pf_setup(); pf()
    if 'sp1' in OPT: slowpf(); PFN += 1
    if 'gp1' in OPT: gupf(); PFN += 1
    if 'cp1' in OPT: codepf()
    srd(a, SRD_WS, S_WS, WS_SIZE)
    srd(a, SRD_M, S_GW, 1280)
    a(f'''
    v_lshlrev_b32 v{V_L16}, 4, v0
    v_lshlrev_b32 v{V_L4}, 2, v0
    s_mul_i32 s{S_RU}, s2, 3
    s_add_u32 s{S_RU}, s{S_RU}, s{S_W}
    s_cmp_lt_u32 s{S_W}, 3
    s_cselect_b32 s{S_RU}, s{S_RU}, 1000
    s_cmp_ge_u32 s{S_RU}, 680
    s_cbranch_scc1 k_s1r
    s_mul_i32 s78, s{S_RU}, 6554
    s_lshr_b32 s78, s78, 16
    s_mul_i32 s79, s78, 10
    s_sub_u32 s79, s{S_RU}, s79
    s_lshl_b32 s79, s79, 7
    s_lshr_b32 s80, s78, 2
    s_lshl_b32 s80, s80, {6 if sp else 7}
    s_and_b32 s81, s78, 3
    s_lshl_b32 s81, s81, 4
    s_add_u32 s80, s80, s81
    s_sub_u32 s81, s78, 48
    s_lshl_b32 s81, s81, 5
    s_cmp_lt_u32 s78, 48
    s_cselect_b32 s80, s80, s81
    s_mov_b32 s81, {16*1280}
    s_mov_b32 s86, {640*1280}
    s_cselect_b32 s81, {(768 if sp else 64)*1280}, s81
    s_cselect_b32 s84, s{S_WD}, s{S_WO}
    s_cselect_b32 s85, s{S_WD+1}, s{S_WO+1}
    s_cselect_b32 s86, {1536*1280}, s86
    s_mov_b32 s87, 0x20000
    s_mul_i32 s80, s80, 1280
    s_add_u32 s80, s80, s79
    v_mul_u32_u24 v{t+12}, 1280, v{t}
    v_lshl_add_u32 v{t+12}, v{t+1}, 4, v{t+12}
    s_lshl_b32 s79, s{S_W}, 12
    s_add_u32 s79, s79, {RB}
    ''')
    for i in range(4):
        a(f's_add_u32 m0, s79, {i*1024}')
        a([f's_nop 0', f's_add_u32 s82, s80, {8*1280}', 's_add_u32 s80, s80, s81', f's_add_u32 s82, s80, {8*1280}'][i])
        a(f'buffer_load_dwordx4 v{t+12}, s[84:87], s{82 if i & 1 else 80} offen' + (' nt' if 'ntw' in OPT else '') + ' lds')
    gx, gw = t + 16, t + 22
    a(f'''k_s1r:
    s_lshl_b32 s{S_T2}, s{S_J}, 3
    s_add_u32 s{S_T2}, s{S_T2}, s{S_W}
    s_mul_i32 s{S_T3}, s{S_T2}, 1280
    buffer_load_dwordx4 {vr(gx,4)}, v{V_L16}, {sr(SRD_X,4)}, s{S_T3} offen
    buffer_load_dword v{gx+4}, v{V_L4}, {sr(SRD_X,4)}, s{S_T3} offen offset:1024
    buffer_load_dwordx4 {vr(gw,4)}, v{V_L16}, {sr(SRD_M,4)}, 0 offen
    buffer_load_dword v{gw+4}, v{V_L4}, {sr(SRD_M,4)}, 0 offen offset:1024
    ''')
    WF = False
    FS = 2 if 'fs2' in OPT else 5
    FM = 5 if 'fs2' in OPT else 4
    if True: a(f'''
    s_lshl_b32 s78, s{S_MB}, {FM}
    s_add_u32 s78, s78, s{S_J}
    s_lshl_b32 s78, s78, {FS}
    s_add_u32 s79, s78, {WS_F2}
    v_mov_b32 v{V_FLG}, s79
    s_add_u32 s78, s78, {WS_F1}
    v_writelane_b32 v{V_FLG}, s78, 2
    s_lshr_b32 s78, s2, 3
    s_lshl_b32 s78, s78, 5
    s_and_b32 s79, s2, 7
    s_add_u32 s78, s78, s79
    s_lshl_b32 s78, s78, 2
    s_add_u32 s78, s78, {WS_F3}
    v_writelane_b32 v{V_FLG}, s78, 1
    s_add_u32 s78, s78, {WS_F0 - WS_F3}
    v_writelane_b32 v{V_FLG}, s78, 3
    s_cmp_eq_u32 s2, 0
    s_cbranch_scc0 k_noclr
    s_mul_i32 s78, s{S_W}, 3072
    s_add_u32 s78, s78, {WS_F1}
    v_mov_b32 v{V_ACC}, 0
    v_mov_b32 v{V_ACC+1}, 0
    v_mov_b32 v{V_ACC+2}, 0
    v_mov_b32 v{V_ACC+3}, 0
    buffer_store_dwordx4 {vr(V_ACC,4)}, v{V_L16}, {WSR}, s78 offen {SC}
    buffer_store_dwordx4 {vr(V_ACC,4)}, v{V_L16}, {WSR}, s78 offen offset:1024 {SC}
    buffer_store_dwordx4 {vr(V_ACC,4)}, v{V_L16}, {WSR}, s78 offen offset:2048 {SC}
    k_noclr:''')
    a(f'''
    v_mov_b32 v{V_ONE}, 1
    v_mov_b32 v{t+40}, 0
    v_mov_b32 v{t+41}, 0
    ''')
    RAMP = 'noramp' not in OPT
    if not RAMP: groups('k_pb', (dma_w, dma_x, dma_w), (dma_x, dma_w, dma_x))
    srd(a, SRD_M, S_DBG, 256)
    a(f'''
    v_lshrrev_b32 v{t+12}, 4, v0
    v_bfe_u32 v{t+13}, v0, 2, 2
    v_and_b32 v{t+14}, 3, v0
    v_lshlrev_b32 v{V_WB}, 10, v{t+12}
    v_lshl_add_u32 v{V_WB}, v{t+13}, 7, v{V_WB}
    v_lshl_add_u32 v{V_WB}, v{t+14}, 3, v{V_WB}
    v_bfe_u32 v{t+14}, v0, 3, 2
    s_and_b32 s{S_T0}, s{S_W}, 3
    v_xor_b32 v{t+14}, s{S_T0}, v{t+14}
    v_lshl_add_u32 v{V_WB}, v{t+14}, 5, v{V_WB}
    v_and_b32 v{t+13}, 15, v0
    v_bfe_u32 v{t+14}, v0, 1, 3
    v_xor_b32 v{t+14}, v{t+14}, v{t+12}
    v_lshlrev_b32 v{t+14}, 4, v{t+14}
    v_lshl_add_u32 v{t+14}, v{t+13}, 7, v{t+14}
    s_lshl_b32 s{S_T0}, s{S_P}, 13
    v_add_u32 v{V_XB0}, s{S_T0}, v{t+14}
    v_xor_b32 v{V_XB1}, 64, v{V_XB0}
    s_mov_b32 s{S_WRS}, 0
    s_mov_b32 s{S_XRS}, {XB}
    v_mov_b32 v{V_WA}, v{V_WB}
    v_add_u32 v{V_XA}, s{S_XRS}, v{V_XB0}
    s_mov_b32 s{S_CNT}, 0
    ''')
    for i in range(80): a(f'v_mov_b32 v{V_ACC+i}, 0')
    if 'p1' in OPT: a(f's_cmp_eq_u32 s{S_P}, 0\ns_cbranch_scc1 k_pr1\ns_setprio 1\nk_pr1:')
    def lines(x): return [l.strip() for l in x.split('\n') if l.strip()]
    def step(par, n, dma, salu='', per=None):
        a(f's_waitcnt lgkmcnt(0)' + (f' vmcnt({n})' if n is not None else '') + '\ns_barrier')
        mf = [f'v_mfma_f32_16x16x32_bf16 {vr(acc(c,tt),4)}, {vr(wfr(par,c),4)}, {vr(xfr(par,tt),4)}, {vr(acc(c,tt),4)}' for c in range(5) for tt in range(4)]
        rd = reads(1 - par)
        slots = [[] for _ in range(20)]
        for i in range(14): slots[i + 1].append(rd[i])
        na = lines(next_addr(par))
        slots[15].append(na[-2]); slots[16].append(na[-1])
        units = []
        for l in na[:-2] + lines(salu):
            if l.startswith('s_cselect'): units[-1].append(l)
            else: units.append([l])
        pos = {5: [1, 5, 9, 13, 17] if 'dl' in OPT else [1, 4, 7, 10, 13] if 'de' in OPT else [2, 5, 9, 12, 16], 2: [3, 11] if 'dl' in OPT else [7, 14], 0: [],
               8: [1, 3, 5, 7, 10, 12, 15, 17], 9: [1, 3, 5, 7, 9, 11, 13, 16, 17]}[len(dma)]
        for p_, d_ in zip(pos, dma):
            ls = [l for l in lines(d_) if l != 's_nop 0']
            if ls[-1].startswith('buffer'):
                slots[p_ - 1] += ls[:-1]; slots[p_].insert(0, ls[-1])
            else: slots[p_] += ls
        for i, u_ in enumerate(units): slots[(i * 14) // len(units)] += u_
        if per:
            for i in range(20): slots[i] += per[i]
        for m_, sl in zip(mf, slots):
            a(m_)
            for l in sl: a(l)
    g = t + 11
    gu = [[f'v_mov_b32 v{g}, 0']]
    for i in range(5):
        gu.append([f'v_lshlrev_b32 v{t+12}, 16, v{gx+i}', f'v_lshlrev_b32 v{t+13}, 16, v{gw+i}', f'v_fmac_f32 v{g}, v{t+12}, v{t+13}'])
        gu.append([f'v_and_b32 v{t+14}, 0xffff0000, v{gx+i}', f'v_and_b32 v{t+15}, 0xffff0000, v{gw+i}', f'v_fmac_f32 v{g}, v{t+14}, v{t+15}'])
    gu[0] += gu.pop(1)
    for dpp in ('row_shr:1', 'row_shr:2', 'row_shr:4', 'row_shr:8', 'row_bcast:15 row_mask:0xa', 'row_bcast:31 row_mask:0xc'):
        gu.append(['s_nop 0', f'v_add_f32_dpp v{g}, v{g}, v{g} {dpp}' + (' bound_ctrl:0' if 'shr' in dpp else '')])
    gu.append([f'v_mul_f32 v{g}, {hex(f2u(-LOG2E))}, v{g}', f'v_exp_f32 v{g}, v{g}', f's_lshl_b32 s78, s{S_MB}, 4', f's_add_u32 s78, s78, s{S_J}'])
    gu.append([f'v_add_f32 v{g}, 1.0, v{g}', f'v_rcp_f32 v{g}, v{g}', 's_lshl_b32 s78, s78, 5', f's_add_u32 s78, s78, s{S_W}'])
    gu.append(['s_lshl_b32 s78, s78, 2', f's_add_u32 s78, s78, {WS_G - 252}'])
    gu.append(['s_mov_b32 exec_lo, 0', 's_brev_b32 exec_hi, 1', f'buffer_store_dword v{g}, v{V_L4}, {WSR}, s78 offen {SC}', 's_mov_b64 exec, -1'])
    assert len(gu) == 20
    w2dyn = [s for s, _ in issue_w('')]
    for P in (1, 0):
        if P == 1: a(f's_cmp_eq_u32 s{S_P}, 0\ns_cbranch_scc1 k_l0pre')
        else: a('k_l0pre:')
        a(f's_waitcnt vmcnt({(9 if P == 0 else 4) if RAMP else (14 if P == 0 else 12) + 4 + PFN})\ns_barrier')
        stamp(a, 2, prof)
        for g in reads(0): a(g)
        a(next_addr(1))
        if RAMP:
            for g in (dma_w(a) if P == 1 else dma_x(a)): a(g)
            two = (lambda: dma_x(a) + dma_w(a)) if P == 1 else (lambda: dma_w(a) + dma_x(a))
            step(0, 6 if P == 0 else None, two())
            step(1, 7 if P == 0 else 5, two()[:-1], '', gu)
            a(f's_mov_b32 s{S_CNT}, 1\ns_branch k_side')
        a(f'k_l{P}:')
        for par in range(2):
            n = {(0, 0): 9, (0, 1): 12, (1, 1): 7, (1, 0): None}[(P, par)]
            step(par, n, dma_w(a)[:-1] if par == P else dma_x(a)[:-1], dma_x(a)[-1] if par == P else dma_w(a)[-1])
            if par == 0: a(f's_cmp_eq_u32 s{S_CNT}, 7\ns_cbranch_scc1 k_tail')
        a(f's_add_u32 s{S_CNT}, s{S_CNT}, 1\ns_bitcmp1_b32 {0b1011010}, s{S_CNT}\ns_cbranch_scc0 k_l{P}')
        if P == 1: a('s_branch k_side')
    a(f'k_side:\ns_cmp_eq_u32 s{S_CNT}, 1\ns_cbranch_scc0 k_side2')
    e = t + 16
    a(f'''
    s_cmp_eq_u32 s{S_W}, 3
    s_cselect_b32 s78, s2, 1
    s_cmp_eq_u32 s78, 0
    s_cbranch_scc0 k_nosig
    s_mov_b64 exec, 1
    buffer_store_dword v{V_ONE}, v{V_L4}, {sr(SRD_M,4)}, 0 offen {SC}
    s_mov_b64 exec, -1
    k_nosig:
    s_cmp_ge_u32 s{S_RU}, 680
    s_cbranch_scc1 k_back
    v_lshrrev_b32 v{e}, 2, v0
    v_lshlrev_b32 v{e}, 7, v{e}
    v_and_b32 v{e+1}, 3, v0
    v_lshl_add_u32 v{e}, v{e+1}, 3, v{e}
    s_lshl_b32 s79, s{S_W}, 12
    s_add_u32 s79, s79, {RB}
    v_add_u32 v{e}, s79, v{e}
    s_lshl_b32 s79, s{S_RU}, 12
    s_add_u32 s79, s79, {WS_W2}
    ''')
    for uu in range(4):
        for h in range(2):
            a(f'ds_read_b64_tr_b16 {vr(e+4+4*uu+2*h,2)}, v{e} offset:{h*2048+uu*32}')
    a('s_waitcnt lgkmcnt(0)')
    for uu in range(4):
        a(f'buffer_store_dwordx4 {vr(e+4+4*uu,4)}, v{V_L16}, {WSR}, s79 offen offset:{1024*uu} {SC}')
    z = t + 40
    a(f'''s_branch k_back
    k_side2:''')
    if prof:
        a(f's_cmp_eq_u32 s{S_CNT}, 4\ns_cbranch_scc0 k_nst')
        stamp(a, 14, prof)
        a('k_nst:')
    a(f'''
    s_cmp_eq_u32 s{S_W}, 3
    s_cbranch_scc0 k_back
    s_cmp_eq_u32 s{S_CNT}, 4
    s_cbranch_scc1 k_side4
    s_cmp_eq_u32 s{S_CNT}, 6
    s_cbranch_scc1 k_side6
    v_mov_b32 v{z}, 0
    v_lshrrev_b32 v{z+1}, 1, v0
    v_lshlrev_b32 v{z+1}, 3, v{z+1}
    v_and_or_b32 v{z+1}, v0, 1, v{z+1}
    v_lshlrev_b32 v{z+1}, 4, v{z+1}
    buffer_load_dword v{V_PL}, v{z}, {sr(SRD_M,4)}, 0 offen {SC}
    s_branch k_back
    k_side4:
    s_waitcnt vmcnt(7)''')
    spin(a, z, sr(SRD_M, 4), 0, 1, True)
    flag(a, 3)
    a(f'''s_branch k_back
    k_side6:
    s_mov_b32 s99, {WS_F0}
    buffer_load_dwordx4 {vr(z+2,4)}, v{z+1}, {WSR}, s99 offen {SC}
    k_back:
    s_cmp_eq_u32 s{S_P}, 0
    s_cbranch_scc1 k_l0
    s_branch k_l1
    k_tail:''')
    stamp(a, 15, prof)
    s4_setup(a)
    u = V_T + 16
    a(f'''
    s_and_b32 s{S_T0}, s{S_W}, 3
    s_lshl_b32 s{S_T2}, s{S_LC0}, 2
    s_add_u32 s{S_T2}, s{S_T2}, s{S_T0}
    s_mul_i32 s{S_T2}, s{S_T2}, {4*PS}
    s_lshl_b32 s{S_T3}, s{S_MB}, 10
    s_add_u32 s{S_T2}, s{S_T2}, s{S_T3}
    s_lshl_b32 s{S_T3}, s{S_P}, 9
    s_add_u32 s{S_T2}, s{S_T2}, s{S_T3}
    v_lshrrev_b32 v{u}, 4, v0
    v_mul_u32_u24 v{u}, {PS}, v{u}
    v_and_b32 v{u+1}, 15, v0
    v_lshl_add_u32 v{u}, v{u+1}, 4, v{u}
    s_cmp_lt_u32 s{S_LC0}, 10
    s_cselect_b32 s{S_T3}, {hex(f2u(20 ** -0.5 * LOG2E))}, 1.0
    ''')
    a(f's_and_b32 s98, s{S_J}, 7\ns_cmp_eq_u32 s98, 1\ns_cselect_b32 s{S_T2}, 0x40000000, s{S_T2}')
    a(w_next())
    a(f'''s_cmp_eq_u32 s{S_W}, 3
    s_cbranch_scc0 k_rdy
    s_waitcnt vmcnt(12)
    s_mov_b32 s98, 0
    s_mov_b32 s99, {WS_F0}
    k_rdl:
    v_and_b32 v{z+2}, v{z+2}, v{z+3}
    v_and_b32 v{z+4}, v{z+4}, v{z+5}
    v_and_b32 v{z+2}, v{z+2}, v{z+4}
    v_cmp_ne_u32 vcc, 1, v{z+2}
    s_add_u32 s98, s98, 1
    s_cbranch_vccz k_rdy
    buffer_load_dwordx4 {vr(z+2,4)}, v{z+1}, {WSR}, s99 offen {SC}
    s_waitcnt vmcnt(0)
    s_cmp_lt_u32 s98, 0x40000
    s_cbranch_scc1 k_rdl
    k_rdy:''')
    a(f's_cmp_eq_u32 s{S_P}, 0\ns_cbranch_scc1 k_todd0\ns_branch k_todd1')
    def w2touch(L='k_not'):
        a(f'''
        s_and_b32 s62, s{Q_MT}, 7
        s_lshl_b32 s62, s62, 3
        s_add_u32 s62, s62, s{S_W}
        s_cmp_lt_u32 s62, 48
        s_cbranch_scc0 {L}
        s_lshl_b32 s62, s62, 3
        s_add_u32 s62, s62, s{Q_N}
        s_mul_i32 s62, s62, 5120
        s_add_u32 s62, s62, {WS_W2 + 20*40*1024}
        v_lshlrev_b32 v{V_PF}, 7, v0
        s_mov_b32 exec_hi, 0xff
        buffer_load_dword v{V_PD}, v{V_PF}, {WSR}, s62 offen {SC}
        s_mov_b32 exec_hi, -1
        {L}:''')
    for P in (1, 0):
        a(f'k_teven{P}:')
        step(0, 5 if P == 0 else None, w2dyn if P == 0 else [], '' if P == 0 else w_next())
        a(f's_cmp_eq_u32 s{S_CNT}, 9\ns_cbranch_scc1 k_s1e\nk_todd{P}:')
        step(1, 10 if P == 0 else 5, w2dyn if P == 1 else [], '' if P == 1 else w_next())
        if OPT & {'wt7', 'wt8'}:
            a(f's_cmp_eq_u32 s{S_CNT}, {7 if "wt7" in OPT else 8}\ns_cbranch_scc0 k_not{P}')
            w2touch(f'k_not{P}')
        a(f's_add_u32 s{S_CNT}, s{S_CNT}, 1\ns_branch k_teven{P}')
    HP = 'sc1 nt' if 'hnt' in OPT else 'sc0 sc1' if 'h01' in OPT else SC
    QP = 'sc1 nt' if 'qnt' in OPT else 'sc0 sc1' if 'q01' in OPT else SC
    def qkv_tile(c, scale):
        o = [f's_add_u32 s{S_T2}, s{S_T2}, {16*PS}'] if c else []
        for tp in range(2):
            d = u + 4 + 4 * tp + 8 * (c & 1)
            for tt in range(2):
                b = acc(c, 2 * tp + tt)
                if scale: o += [f'v_mul_f32 v{b+r}, s{S_T3}, v{b+r}' for r in range(4)]
                o += [f'v_cvt_pk_bf16_f32 v{d+2*tt}, v{b}, v{b+1}', f'v_cvt_pk_bf16_f32 v{d+2*tt+1}, v{b+2}, v{b+3}']
            o.append(f'buffer_store_dwordx4 {vr(d,4)}, v{u}, {WSR}, s{S_T2} offen offset:{256*tp} {QP}')
        return o
    def last(order, fill):
        slots = [[] for _ in range(20)]
        for s0, n, ls in fill:
            for i, l in enumerate(ls): slots[s0 + (i * n) // len(ls)].append(l)
        for (c, tt), sl in zip(order, slots):
            a(f'v_mfma_f32_16x16x32_bf16 {vr(acc(c,tt),4)}, {vr(wfr(1,c),4)}, {vr(xfr(1,tt),4)}, {vr(acc(c,tt),4)}')
            for l in sl: a(l)
        stamp(a, 3, prof)
    a(f'k_s1e:\ns_waitcnt lgkmcnt(0)\ns_barrier\ns_cmp_eq_u32 s{S_P}, 0\ns_cbranch_scc1 k_ls0')
    for l in w2dyn: a(l)
    a(f'k_ls0:\ns_cmp_lt_u32 s{S_J}, 12\ns_cbranch_scc1 k_eg')
    last([(c, tt) for c in range(5) for tt in range(4)], [(8 + 4 * c, 4, qkv_tile(c, False)) for c in range(3)])
    for l in qkv_tile(3, False) + qkv_tile(4, False): a(l)
    a('s_branch k_ef\nk_eg:')
    last([(0, tt) for tt in range(4)] + [(c, tt) for tt in range(4) for c in range(1, 5)], [(8, 8, qkv_tile(0, True))])
    a(f'''
    s_mov_b32 s{S_T3}, {hex(f2u(-LOG2E))}
    ''')
    a(f'''
    s_lshl_b32 s{Q_HO}, s{S_MB}, 1
    s_add_u32 s{Q_HO}, s{Q_HO}, s{S_P}
    s_mul_i32 s{Q_HO}, s{Q_HO}, {4*68}
    s_lshl_b32 s{S_T2}, s{S_J}, 2
    s_add_u32 s{Q_HO}, s{Q_HO}, s{S_T2}
    s_add_u32 s{Q_HO}, s{Q_HO}, s{S_T0}
    s_lshl_b32 s{Q_HO}, s{Q_HO}, 10
    s_add_u32 s{Q_HO}, s{Q_HO}, {WS_A2}
    ''')
    e = 104
    def hst(tt): a(f'buffer_store_dwordx4 {vr(V_H+4*tt,4)}, v{V_L16}, {WSR}, s{Q_HO} offen {HP}\ns_add_u32 s{Q_HO}, s{Q_HO}, {68*1024}')
    def htile(tt, st=True):
        idx = [(c, r) for c in range(2) for r in range(4)]
        for k, (c, r) in enumerate(idx): a(f'v_mul_f32 v{e+k}, s{S_T3}, v{acc(1+c,tt)+r}')
        for k in range(8): a(f'v_exp_f32 v{e+k}, v{e+k}')
        for k, (c, r) in enumerate(idx):
            a(f'v_mul_f32 v{acc(1+c,tt)+r}, v{acc(1+c,tt)+r}, v{acc(3+c,tt)+r}\nv_add_f32 v{e+k}, 1.0, v{e+k}')
        for k in range(8): a(f'v_rcp_f32 v{e+k}, v{e+k}')
        a('s_nop 0')
        for k, (c, r) in enumerate(idx): a(f'v_mul_f32 v{e+k}, v{e+k}, v{acc(1+c,tt)+r}')
        for k in range(4): a(f'v_cvt_pk_bf16_f32 v{V_H+4*tt+k}, v{e+2*k}, v{e+2*k+1}')
        if st: hst(tt)
    HS = ([int(o[2]) for o in OPT if o[:2] == 'hs'] + [1])[0]
    for tt in range(HS): htile(tt, False)
    st3.LB = 5 * SLOT
    p = 130
    a('k_ef:')
    st3.ids(a)
    a(f'''
    s_mov_b32 s99, {WS_F1}
    s_waitcnt vmcnt(0)
    s_barrier
    s_cmp_eq_u32 s{S_W}, 0
    s_cbranch_scc0 k_f1''')
    flag(a, 2)
    a('k_f1:')
    stamp(a, 4, prof)
    a(w_next())
    st3.loads_pre(a)
    def hstores():
        for tt in range(4):
            a(f'buffer_store_dwordx4 {vr(V_H+4*tt,4)}, v{V_L16}, {WSR}, s{Q_HO} offen {SC}')
            if tt < 3: a(f's_add_u32 s{Q_HO}, s{Q_HO}, {68*1024}')
    a(f's_cmp_lt_u32 s{Q_J}, 12\ns_cbranch_scc0 k_nh0')
    for tt in range(HS): hst(tt)
    for tt in range(HS, 4): htile(tt)
    HL = 'hl' in OPT
    if 'hend' in OPT: hstores()
    a('k_nh0:')
    H_, QB_ = st3.S_H, st3.S_QB
    a(f'''
    s_and_b32 s62, s{S_W}, 3
    s_lshl_b32 s63, s{QB_}, 1
    s_add_u32 s64, s63, s62
    s_sub_u32 s64, s64, 2
    s_cselect_b32 s64, s62, s64
    s_lshl_b32 s64, s64, 4
    s_lshr_b32 s62, s{H_}, 4
    s_add_u32 s64, s64, s62
    s_add_u32 s64, s64, 12
    v_mov_b32 v{p}, s64
    s_add_u32 s64, s64, 2
    v_writelane_b32 v{p}, s64, 1
    s_add_u32 s63, s63, s{S_P}
    s_lshl_b32 s63, s63, 4
    s_mul_i32 s62, s{H_}, 20''')
    for k in range(2):
        a(f'''
        s_lshr_b32 s64, s62, 6
        s_min_u32 s65, s64, 1
        s_add_u32 s65, s65, s64
        s_lshr_b32 s64, s64, 3
        s_add_u32 s65, s65, s64
        s_add_u32 s65, s65, s63
        v_writelane_b32 v{p}, s65, {2+k}
        s_add_u32 s62, s62, 19''')
    a(f'v_lshlrev_b32 v{p}, {FS}, v{p}')
    if 'wt1' in OPT: w2touch()
    a(f'buffer_load_dword v{V_PL}, v{p}, {WSR}, s99 offen {SC}')
    st3.setup(a)
    F2L = 'f2l' in OPT or 'hkv' in OPT
    def f2():
        a(f's_cmp_eq_u32 s{S_W}, 2\ns_cbranch_scc0 k_f2')
        flag(a, 0)
        a('k_f2:')
    a('s_waitcnt vmcnt(0)')
    if not F2L: a('s_barrier'); f2()
    if 'hkv' in OPT:
        a(f'v_cmp_ne_u32 vcc, 1, v{V_PL}\ns_cbranch_vccz k_hk1\ns_cmp_lt_u32 s{Q_J}, 12\ns_cbranch_scc0 k_hk0\ns_mov_b32 s{Q_J}, 12')
        hstores()
        a('k_hk0:')
        spin(a, p, WSR, 's99', 1)
        a('k_hk1:')
    else: spin(a, p, WSR, 's99', 1, True)
    stamp(a, 5, prof)
    st3.loads(a, SC)
    if 'hkv' in OPT:
        a(f's_cmp_lt_u32 s{Q_J}, 12\ns_cbranch_scc0 k_hk2')
        hstores()
        a('k_hk2:')
    a(f's_lshr_b32 s99, s{Q_MT}, 1\ns_lshl_b32 s99, s99, {FS+FM}\ns_add_u32 s99, s99, {WS_F2}\nv_and_b32 v{V_L4}, 15, v0\nv_lshlrev_b32 v{V_L4}, {FS}, v{V_L4}')
    pre = {0: [0, 1], 1: [2, 3], 2: [4, 10], 3: [5, 6], 4: [7, 11], 5: [8, 9]}
    if 'pb' in OPT: pre = {-1: [0, 1], 0: [2, 3], 1: [4, 10], 2: [5, 11], 3: [6], 4: [7], 5: [8, 9]}
    if 'pc' in OPT: pre = {1: [0, 1], 2: [2, 3], 3: [4, 5], 4: [6, 7], 5: [8, 9], 6: [10, 11]}
    if 'pd' in OPT: pre = {2: [0, 1, 2], 3: [3, 4, 5], 4: [6, 7], 5: [8, 9], 6: [10, 11]}
    if 'pe' in OPT: pre = {3: [0, 1, 2], 4: [3, 4, 5], 5: [6, 7, 8], 6: [9, 10, 11]}
    if 'pg' in OPT: pre = {4: [0, 1, 2], 5: [3, 4, 5], 6: [6, 7]}
    if 'pm' in OPT: pre = {-1.5: [0, 1], -1: [2, 3], 0: [10], 1: [4, 11], 2: [5], 3: [6], 4: [7], 5: [8], 6: [9]}
    if not OPT & {'pa', 'pb', 'pc', 'pm'}: pre = {-1.5: [0, 1], -1: [2, 3], 0: [10, 4], 1: [11], 2: [5], 3: [6], 4: [7], 5: [8, 9]}
    TC = min(pre)
    NPRE = sum(len(v) for v in pre.values())
    def hook(x):
        if 'wt2' in OPT and x == -2: w2touch()
        if 'wt3' in OPT and x == 6: w2touch(); a.vm.append(None); a.vm.pop()
        if HL and x == -2:
            a(f's_cmp_lt_u32 s{Q_J}, 12\ns_cbranch_scc0 k_hl0')
            hstores()
            a('k_hl0:')
        if HL and x == -3:
            a(f's_cmp_lt_u32 s{Q_J}, 12\ns_cbranch_scc1 k_hl1\ns_waitcnt vmcnt(0)\nk_hl1:\ns_waitcnt vmcnt(4)')
            return True
        if HL and x == (1 if 'hf1' in OPT else 0):
            a('s_waitcnt vmcnt(0)'); flag(a, 0)
        if 'noprio' not in OPT:
            if x == -2: a(f's_cmp_eq_u32 s{S_P}, 0\ns_cbranch_scc1 k_pr0\ns_setprio 1\nk_pr0:')
            if x == (2 if 'pr2' in OPT else 3 if 'pr3' in OPT else 1): a('s_setprio 0')
        if x == max(-2, TC - 1):
            a(f'buffer_load_dword v{V_PL}, v{V_L4}, {WSR}, s99 offen {SC}')
        if x == TC:
            a('s_waitcnt vmcnt(0)')
            spin(a, V_L4, WSR, 's99', 1, True)
        g_ = []
        for r in pre.get(x, []): g_ += issue_a(r)
        for s_, tag in g_: a.vm.append(tag)
        return [s_ for s_, tag in g_]
    st3.compute(a, prof, SC, hook)
    srd(a, SRD_O, S_OUT, 2048 * 1280)
    a4 = lambda f, t_: V4_ACC + (f * 2 + t_) * 4
    a(f'''v_and_b32 v2, 15, v0
    v_lshrrev_b32 v3, 4, v0
    v_mul_u32_u24 v3, {PS}, v3
    v_lshl_add_u32 v4, v2, 4, v3
    v_and_b32 v3, 3, v0
    v_lshlrev_b32 v3, 3, v3
    v_lshrrev_b32 v2, 2, v2
    v_lshl_add_u32 v2, v2, 7, v3
    ''')
    if WF: a(f'v_and_b32 v3, 31, v0\nv_lshlrev_b32 v3, 2, v3\ns_add_u32 s99, s{Q_G}, {WS_F3}')
    else: a(f'v_bfe_u32 v3, v0, 3, 2\nv_lshlrev_b32 v3, 5, v3\nv_and_or_b32 v3, v0, 7, v3\nv_lshlrev_b32 v3, 2, v3\ns_lshr_b32 s99, s{Q_MT}, 2\ns_lshl_b32 s99, s99, 9\ns_add_u32 s99, s99, {WS_F3}')
    a(f'''
    s_mul_i32 s{Q_O}, s{Q0}, {4*PS}
    s_add_u32 s{Q_O}, s{Q_O}, s{Q_G}
    s_lshl_b32 s{Q_O}, s{Q_O}, 1
    s_add_u32 s{Q_O}, s{Q_O}, {WS_O - 12*32*PS}
    s_lshl_b32 s{Q_G}, s{Q_G}, 2
    s_add_u32 s{Q_G}, s{Q_G}, {WS_G}''')
    a.vmem(f'buffer_load_dwordx2 {vr(V_G1,2)}, v2, {WSR}, s{Q_G} offen {SC}', 'g')
    def rds(r):
        sl = r % NS
        return [f'ds_read_b128 {vr(V4_F+20*(r&1)+4*f,4)}, v{[V_RA,V_RA2,V_RA3][sl//3]} offset:{(sl%3)*SLOT+f*1024}' for f in range(5)]
    for l in rds(0): a(l)
    t = 5
    RED = SLOT
    a(f'''
    v_and_b32 v{t}, 15, v0
    v_mul_u32_u24 v{t}, 336, v{t}
    v_lshrrev_b32 v{t+1}, 4, v0
    v_lshl_add_u32 v{t}, v{t+1}, 4, v{t}
    s_mul_i32 s{Q2}, s{S_W}, 10752
    s_add_u32 s{Q2}, s{Q2}, {RED}
    v_add_u32 v{t}, s{Q2}, v{t}
    v_mul_u32_u24 v{t+1}, 26, v0
    v_lshrrev_b32 v{t+1}, 8, v{t+1}
    v_mul_u32_u24 v{t+2}, 10, v{t+1}
    v_sub_u32 v{t+2}, v0, v{t+2}
    v_and_b32 v{t+3}, 1, v{t+1}
    v_lshlrev_b32 v{t+3}, 4, v{t+3}
    v_bfe_u32 v{t+4}, v{t+1}, 1, 1
    s_lshl_b32 s{Q2}, s{Q0}, 2
    v_add3_u32 v{t+3}, v{t+3}, v{t+4}, s{Q2}
    v_mul_u32_u24 v{t+3}, 336, v{t+3}
    v_lshl_add_u32 v{t+3}, v{t+2}, 5, v{t+3}
    s_mul_i32 s{Q2}, s{S_P}, {4*10752}
    s_add_u32 s{Q2}, s{Q2}, {RED}
    v_add_u32 v{t+3}, s{Q2}, v{t+3}
    v_mul_u32_u24 v{t+1}, 1280, v{t+1}
    v_lshl_add_u32 v{t+1}, v{t+2}, 4, v{t+1}
    s_lshl_b32 s{Q_HO}, s{Q_MT}, 3
    s_add_u32 s{Q_HO}, s{Q_HO}, s{S_W}
    s_mul_i32 s{Q_HO}, s{Q_HO}, {8*1280}
    s_mul_i32 s{Q3}, s{Q_N}, 160
    s_add_u32 s{Q_HO}, s{Q_HO}, s{Q3}
    s_add_u32 s{Q3}, s{Q_HO}, {4*1280}
    ''')
    RF = 2 if 'rf2' in OPT else 0 if 'rf0' in OPT else 1
    RP = 7 if 'rp7' in OPT else 8 if 'rp8' in OPT else 9
    assert NPRE == 12
    Wg = lambda g: issue_w(f'w{4+2*g}') + [(w_next(), None)]
    stream = Wg(0) + Wg(1) + Wg(2) + Wg(3) + Wg(4) + issue_a(12) + issue_a(13) + issue_a(14) + Wg(5) + issue_a(15) + issue_a(16)
    quota = {'qa': [4, 3, 3, 3, 3, 3, 3, 3, 4, 4, 4, 3], 'qb': [3, 3, 3, 3, 3, 3, 3, 2, 2, 4, 4, 3, 4], 'qc': [4, 4, 4, 4, 3, 3, 3, 4, 4, 4, 3],
             'qd': [4, 3, 3, 3, 3, 3, 3, 3, 3, 3, 3, 3, 3], 'qe': [3, 3, 3, 3, 3, 3, 3, 2, 2, 3, 3, 3, 3, 3]}[([o for o in OPT if o in ('qd', 'qa', 'qe')] + ['qb'])[0]] + [0] * 8
    RP = [r for r in range(17) if sum(quota[:r + 1]) > 25][0]
    assert sum(quota[:RP]) == 25 and sum(quota) == 40
    for r in range(17):
        need = [f'a{r}'] + (['f3'] if r == RP else []) + (['ost'] if r == RF else [])
        if r % 2 == 0: need.append(f'w{r}')
        a.vmwait(need, 'lgkmcnt(0)')
        if r == RF and WF: flag(a, 1); a.vm.append('fl')
        if (r % 2 == 0 and r < 16) or r == RF: a('s_barrier')
        if r == RF and not WF:
            a(f's_cmp_eq_u32 s{S_W}, 0\ns_cbranch_scc0 k_f3')
            flag(a, 1)
            a('k_f3:')
        if r in (0, 4, 9, 12): stamp(a, {0: 8, 4: 11, 9: 12, 12: 13}[r], prof)
        if r == RP: spin(a, 3, WSR, 's99', 1, True)
        if r == 12:
            a(f'v_sub_f32 v{V_G1}, 1.0, v{V_G1}\nv_sub_f32 v{V_G1+1}, 1.0, v{V_G1+1}\ns_nop 4')
            for f in range(5):
                for t_ in range(2):
                    for i in range(4): a(f'v_mul_f32 v{a4(f,t_)+i}, v{V_G1+t_}, v{a4(f,t_)+i}')
        if r >= 12: a(f'v_swap_b32 v{AREG[r]+2}, v{AREG[r]+4}\nv_swap_b32 v{AREG[r]+3}, v{AREG[r]+5}\ns_nop 1')
        mf = [f'v_mfma_f32_16x16x32_bf16 {vr(a4(f,t_),4)}, {vr(V4_F+20*(r&1)+4*f,4)}, {vr(AREG[r]+4*t_,4)}, ' + ('0' if r == 0 else vr(a4(f, t_), 4)) for f in range(5) for t_ in range(2)]
        iss = []
        if r == RP - (1 if 'pd1' in OPT else 2): iss.append((f'buffer_load_dword v{V_PL}, v3, {WSR}, s99 offen {SC}', 'f3'))
        n_ = quota[r]
        while n_ > 0 and stream:
            it = stream.pop(0); iss.append(it)
            if it[1]: n_ -= 1
        if stream and stream[0][1] is None: iss.append(stream.pop(0))
        for s_, tag in iss:
            if tag: a.vm.append(tag)
        slots = [[] for _ in range(10)]
        if r < 16:
            for i, l in enumerate(rds(r + 1)): slots[i].append(l)
        n = len(iss)
        for i, (s_, tag) in enumerate(iss): slots[(i * 10) // n if n > 4 else 1 + 2 * i].append(s_)
        if r == 16:
            wr = [f'ds_write_b128 v{t}, {vr(a4(f,tt),4)} offset:{tt*16*336+f*64}' for f in range(5) for tt in range(2)]
            slots[8].append(wr[0]); slots[9] += wr[1:3] + ['s_nop 1'] + wr[3:]
        for m_, sl in zip(mf, slots):
            a(m_)
            for l in sl: a(l)
    stamp(a, 9, prof)
    a('s_waitcnt lgkmcnt(0)\ns_barrier\ns_mov_b32 exec_hi, 0xff')
    R = 26
    for ps in range(2):
        for kq in range(4):
            for h in range(2):
                if ps == 1 and kq == 3 and h == 1: a('s_waitcnt lgkmcnt(14)')
                a(f'ds_read_b128 {vr(R+32*ps+8*kq+4*h,4)}, v{t+3} offset:{kq*10752+ps*2*336+h*16}')
    for ps in range(2):
        b = R + 32 * ps
        a(f's_waitcnt lgkmcnt({8 if ps == 0 else 0})')
        for i in range(8): a(f'v_add_f32 v{b+i}, v{b+i}, v{b+8+i}\nv_add_f32 v{b+16+i}, v{b+16+i}, v{b+24+i}')
        for i in range(8): a(f'v_add_f32 v{b+i}, v{b+i}, v{b+16+i}')
        for k in range(4): a(f'v_cvt_pk_bf16_f32 v{b+8+k}, v{b+2*k}, v{b+2*k+1}')
        a(f'buffer_store_dwordx4 {vr(b+8,4)}, v{t+1}, {sr(SRD_O,4)}, s{Q_HO if ps == 0 else Q3} offen' + (' sc1' if 'osc' in OPT else ' nt' if 'ont' in OPT else ''))
    a('s_mov_b64 exec, -1')
    stamp(a, 10, prof)
    stamp_flush(a, prof, 0)
    if 'fix' in OPT: a('k_fix:\ns_memrealtime s[98:99]\ns_waitcnt lgkmcnt(0)\ns_sub_u32 s98, s98, s100\ns_cmp_lt_u32 s98, 6000\ns_cbranch_scc1 k_fix')
    a('k_end:\ns_endpgm')
    ref = open('gated_mix__sliding_block__swiglu_ffn__prompt.s.ref').read()
    hdr = ref.split('; Override')[0]
    s = hdr + '; @launch grid=(256,1,1) block=(512,1,1) lds=163840\n.amdgcn_target "amdgcn-amd-amdhsa--gfx950"\n.text\n'
    s += f'.globl {NAME}\n.p2align 8\n.type {NAME},@function\n{NAME}:\n' + a.text()
    s += ref[ref.index('.section .rodata'):]
    return s
if __name__ == '__main__':
    open('gated_mix__sliding_block__swiglu_ffn__prompt.s', 'w').write(build())
    open('prof.s', 'w').write(build(True))
    for o in sys.argv[1:]:
        OPT.clear(); OPT.update(o.split('+'))
        open(f'prof_{o}.s', 'w').write(build(True))
        open(f'v_{o}.s', 'w').write(build(False))
```

```python
OPT = set()
class Asm:
    def __init__(self):
        self.lines = []
        self.vm = []
    def __call__(self, s):
        for l in s.strip('\n').split('\n'):
            l = l.strip()
            if l: self.lines.append(('' if l.endswith(':') else '  ') + l)
    def label(self, n): self.lines.append(n + ':')
    def text(self): return '\n'.join(self.lines) + '\n'
    def vmem(self, s, tag=None):
        self(s); self.vm.append(tag)
    def vmwait_n(self, tags):
        last = -1
        for i, t in enumerate(self.vm):
            if t in tags: last = i
        if last < 0: return None
        n = len(self.vm) - 1 - last
        self.vm = self.vm[last + 1:]
        assert n <= 63
        return n
    def vmwait(self, tags, extra=''):
        n = self.vmwait_n(tags)
        if n is None:
            if extra: self('s_waitcnt ' + extra)
        else:
            self(f's_waitcnt vmcnt({n}) {extra}')

def vr(b, n=1): return f'v{b}' if n == 1 else f'v[{b}:{b+n-1}]'
def sr(b, n=1): return f's{b}' if n == 1 else f's[{b}:{b+n-1}]'

def interleave(main, fill, start=0, per=1):
    out = []; fi = 0
    for i, m in enumerate(main):
        out.append(m)
        if i >= start:
            for _ in range(per):
                if fi < len(fill):
                    out.append(fill[fi]); fi += 1
    out += fill[fi:]
    return out

PS = 16640
WS_QKV = 0
WS_A2 = 0x800000
WS_W2 = 0x1200000
WS_G = 0x1500000
WS_PROF = 0x1600000
WS_O = 0x1700000
WS_SIZE = 0x1A00000

def srd(a, d, base, nrec, add=None):
    if add is None:
        a(f's_mov_b32 s{d}, s{base}\ns_mov_b32 s{d+1}, s{base+1}')
    else:
        a(f's_add_u32 s{d}, s{base}, {add}\ns_addc_u32 s{d+1}, s{base+1}, 0')
    a(f's_mov_b32 s{d+2}, {nrec}\ns_mov_b32 s{d+3}, 0x20000')

S_X, S_WQKV, S_WO, S_WG, S_WU, S_WD, S_GW, S_OUT, S_DBG, S_WS = 4, 6, 8, 12, 14, 16, 18, 20, 22, 24
S_W = 26
SRD_WS = 52

def common_entry(a, name):
    a(f'''
    s_cmp_ge_u32 s2, 256
    s_cbranch_scc1 {name}_end
    s_load_dwordx16 s[4:19], s[0:1], 0
    s_load_dwordx4 s[20:23], s[0:1], 64
    s_load_dwordx2 s[24:25], s[0:1], 80
    ''')
    if 'nocp' not in OPT and 'cp1' not in OPT:
        n = 4 if 'cpw' in OPT else 3
        a(f'''
        s_getpc_b64 s[96:97]
        k_cp0:
        s_lshr_b32 s98, s2, 3
        s_and_b32 s98, s98, {(256 >> n) - 1}
        s_lshl_b32 s98, s98, {n + 7}
        v_lshl_add_u32 v252, v0, 7, s98
        v_min_u32 v252, k_end-k_cp0, v252
        v_mov_b32 v253, s97
        v_add_co_u32 v252, vcc, s96, v252
        v_cmp_gt_u32 s[98:99], {1 << n}, v0
        s_nop 0
        v_addc_co_u32 v253, vcc, 0, v253, vcc
        s_and_b64 exec, exec, s[98:99]
        s_cbranch_execz k_cp1
        global_load_dword v247, v[252:253], off
        k_cp1:
        s_mov_b64 exec, -1''')
    a(f'''
    v_lshrrev_b32 v1, 6, v0
    v_and_b32 v0, 63, v0
    v_readfirstlane_b32 s26, v1
    ''')

def stamp(a, idx, on):
    if f'fix{idx}' in OPT: a('s_memrealtime s[100:101]\ns_waitcnt lgkmcnt(0)')
    if not on: return
    a(f'''
    {'s_memtime' if 'cyc' in OPT else 's_memrealtime'} s[100:101]
    s_waitcnt lgkmcnt(0)
    v_writelane_b32 v255, s100, {idx}
    ''')
def stamp_flush(a, on, kidx):
    if not on: return
    a(f'''
    s_lshl_b32 s100, s2, 3
    s_add_u32 s100, s100, s26
    s_lshl_b32 s100, s100, 6
    s_add_u32 s100, s100, {WS_PROF + kidx*0x20000}
    v_mbcnt_lo_u32_b32 v254, -1, 0
    v_mbcnt_hi_u32_b32 v254, -1, v254
    v_cmp_gt_u32 vcc, 16, v254
    v_lshlrev_b32 v254, 2, v254
    s_and_saveexec_b64 s[98:99], vcc
    buffer_store_dword v255, v254, s[52:55], s100 offen
    s_mov_b64 exec, s[98:99]
    ''')
```

```python
import sys, struct
from base import *
import st1, st3
from st1 import *
NAME = 'gated_mix__sliding_block__swiglu_ffn__prompt_kernel'
SC = 'sc1'
WS_F1, WS_F2, WS_F3, WS_F0 = 0x1510000, 0x1512000, 0x1514000, 0x1515000
S_P = 27
V_L16, V_FLG, V_ONE, V_PL, V_L4, V_RA, V_RA2, V_RA3, V_G1 = 244, 245, 246, 247, 248, 249, 250, 251, 242
V_H = 210
Q_MT, Q_N, Q0, Q1, Q2, Q3, Q_A0, Q_A1, Q_WO, Q_WL, Q_RH, Q_RO, Q_R, Q_PR, Q_HO, Q_J, Q_G, Q_O, Q_WA, Q_WM = range(32, 52)
SRD_O = 28
SLOT = 20480; NS = 8
WSR = sr(SRD_WS, 4)
uid = [0]

def spin(a, vaddr, srd_, soff, expect, first_issued=False):
    uid[0] += 1; L = f'spin{uid[0]}'
    a('s_mov_b32 s98, 0')
    if first_issued: a(f's_branch {L}c')
    a(f'''{L}:
    buffer_load_dword v{V_PL}, v{vaddr}, {srd_}, {soff} offen {SC}
    s_waitcnt vmcnt(0)
    {L}c:
    v_cmp_ne_u32 vcc, {expect}, v{V_PL}
    s_add_u32 s98, s98, 1
    s_cbranch_vccz {L}d
    s_cmp_lt_u32 s98, 0x40000
    s_cbranch_scc1 {L}
    {L}d:''')
def flag(a, lane):
    a(f's_mov_b64 exec, {1 << lane}\nbuffer_store_dword v{V_ONE}, v{V_FLG}, {WSR}, 0 offen {SC}\ns_mov_b64 exec, -1')

def s4_setup(a):
    a(f'''
    s_and_b32 s{Q0}, s2, 7
    s_lshr_b32 s{Q1}, s2, 3
    s_lshr_b32 s{Q_MT}, s{Q0}, 1
    s_lshl_b32 s{Q_MT}, s{Q_MT}, 3
    s_and_b32 s{Q2}, s{Q1}, 7
    s_add_u32 s{Q_MT}, s{Q_MT}, s{Q2}
    s_and_b32 s{Q_N}, s{Q0}, 1
    s_lshl_b32 s{Q_N}, s{Q_N}, 2
    s_lshr_b32 s{Q1}, s{Q1}, 3
    s_add_u32 s{Q_N}, s{Q_N}, s{Q1}
    s_and_b32 s{Q0}, s{S_W}, 3
    s_lshl_b32 s{Q2}, s{Q_MT}, 1
    s_add_u32 s{Q2}, s{Q2}, s{S_P}
    s_lshl_b32 s{Q_G}, s{Q2}, 7
    s_mul_i32 s{Q_A0}, s{Q2}, {2*68}
    s_add_u32 s{Q_A0}, s{Q_A0}, s{Q0}
    s_lshl_b32 s{Q_A0}, s{Q_A0}, 10
    s_add_u32 s{Q_A0}, s{Q_A0}, {WS_A2}
    s_lshl_b32 s{Q2}, s{Q0}, 3
    s_add_u32 s{Q2}, s{Q2}, s{Q_N}
    s_mul_i32 s{Q_WO}, s{Q2}, 5120
    s_add_u32 s{Q_WO}, s{Q_WO}, {WS_W2}
    s_mul_i32 s{Q_WL}, s{Q0}, 5120
    s_xor_b32 s{Q_PR}, s{S_P}, 1
    s_mov_b32 s{Q_J}, s{S_J}
    v_add_u32 v{V_RA}, s{Q_WL}, v{V_L16}
    v_add_u32 v{V_RA2}, {3*SLOT}, v{V_RA}
    v_add_u32 v{V_RA3}, {6*SLOT}, v{V_RA}
    ''')
def rot(r):
    if r < 12: return f's_add_u32 s{Q_R}, s{Q_RH}, {r}\ns_cmp_ge_u32 s{Q_R}, 12\ns_cselect_b32 s{Q2}, 12, 0\ns_sub_u32 s{Q_R}, s{Q_R}, s{Q2}\n'
    return f's_add_u32 s{Q_R}, s{Q_RO}, {r}\ns_cmp_ge_u32 s{Q_R}, 17\ns_cselect_b32 s{Q2}, 5, 0\ns_sub_u32 s{Q_R}, s{Q_R}, s{Q2}\n'
def issue_w(tag):
    g = []
    for f in range(5):
        pre = ''
        if f == 0: pre = f's_mov_b32 m0, s{Q_WM}\ns_add_u32 s{Q_PR}, s{Q_PR}, 2\n'
        if f == 4: pre = f's_add_u32 m0, m0, 4096\ns_add_u32 s{Q_WA}, s{Q_WA}, 4096\n'
        g.append((pre + f'buffer_load_dwordx4 v{V_L16}, {WSR}, s{Q_WA} offen offset:{(f&3)*1024} {SC} lds', tag))
    return g
def w_next():
    return f'''s_mul_i32 s{Q_WA}, s{Q_PR}, {160*1024}
    s_add_u32 s{Q_WA}, s{Q_WA}, s{Q_WO}
    s_and_b32 s{Q_WM}, s{Q_PR}, 7
    s_mul_i32 s{Q_WM}, s{Q_WM}, {SLOT}
    s_add_u32 s{Q_WM}, s{Q_WM}, s{Q_WL}'''
AREG = [210 + 8 * r for r in range(4)] + [26 + 8 * r for r in range(7)] + [14] + [82 + 8 * r for r in range(5)]
V4_ACC = 130; V4_F = 170
def issue_a(r):
    g = []
    for t in range(2):
        if r >= 12: g.append((f's_add_u32 s{Q2}, s{Q_O}, {(32*r+4*t)*PS}\nbuffer_load_dwordx4 {vr(AREG[r]+4*t,4)}, v4, {WSR}, s{Q2} offen {SC}', f'a{r}'))
        else: g.append((f's_add_u32 s{Q2}, s{Q_A0}, {r*4096+t*68*1024}\nbuffer_load_dwordx4 {vr(AREG[r]+4*t,4)}, v{V_L16}, {WSR}, s{Q2} offen {SC}', f'a{r}'))
    return g

def build(prof=False):
    uid[0] = 0
    config(5)
    XB, RB = st1.XBASE, st1.RBASE
    a = Asm(); name = 'k'
    common_entry(a, name)
    stamp(a, 0, prof)
    if 'fix' in OPT: a('s_memrealtime s[100:101]')
    t = V_T
    a(f'''
    s_and_b32 s{S_T0}, s2, 7
    s_lshr_b32 s{S_T1}, s2, 3
    s_and_b32 s{S_MB}, s{S_T0}, 1
    s_lshl_b32 s{S_MB}, s{S_MB}, 3
    s_and_b32 s{S_T2}, s{S_T1}, 7
    s_add_u32 s{S_MB}, s{S_MB}, s{S_T2}
    s_lshr_b32 s{S_J}, s{S_T0}, 1
    s_lshr_b32 s{S_T1}, s{S_T1}, 3
    s_add_u32 s{S_XM}, s{S_T1}, s{S_T2}
    ''')
    if 'rot' in OPT:
        a(f'''s_add_u32 s{S_XM}, s{S_XM}, s{S_T1}
        s_and_b32 s{S_XM}, s{S_XM}, 7
        s_mul_i32 s{S_XM}, s{S_XM}, 5
        s_lshr_b32 s{S_XM}, s{S_XM}, 2
        s_mov_b32 s{S_CW}, s{S_XM}
        s_mov_b32 s{S_CX}, s{S_XM}''')
    else:
        a(f'''s_and_b32 s{S_XM}, s{S_XM}, {0 if 'x0' in OPT else 3 if 'x3' in OPT else 1}
        s_mov_b32 s{S_CW}, 0
        s_mov_b32 s{S_CX}, 0''')
    a(f'''
    s_lshl_b32 s{S_J if 'map2' in OPT else S_T1}, s{S_J if 'map2' in OPT else S_T1}, 2
    s_add_u32 s{S_J}, s{S_J}, s{S_T1}
    s_mul_i32 s{S_T0}, s{S_J}, 5
    s_sub_u32 s{S_T0}, s{S_T0}, 50
    s_add_u32 s{S_LC0}, s{S_J}, 6
    s_lshr_b32 s{S_LC0}, s{S_LC0}, 3
    s_sub_u32 s{S_LC0}, s{S_J}, s{S_LC0}
    s_cmp_lt_u32 s{S_J}, 12
    s_cselect_b32 s{S_LC0}, s{S_LC0}, s{S_T0}
    s_mov_b32 s{S_STW0}, 3840
    s_cselect_b32 s{S_STW1}, 3072, s{S_STW0}
    s_and_b32 s{S_T0}, s{S_W}, 3
    s_lshr_b32 s{S_P}, s{S_W}, 2
    v_lshrrev_b32 v{t}, 3, v0
    v_and_b32 v{t+1}, 7, v0
    v_bfe_u32 v{t+2}, v0, 4, 1
    s_and_b32 s{S_T3}, s{S_W}, 1
    s_lshl_b32 s{S_T2}, s{S_T3}, 1
    v_or_b32 v{t+2}, s{S_T2}, v{t+2}
    v_lshlrev_b32 v{t+2}, 1, v{t+2}
    v_xor_b32 v{t+2}, v{t+2}, v{t+1}
    v_lshlrev_b32 v{t+2}, 4, v{t+2}
    s_lshl_b32 s{S_T2}, s{S_T0}, 3
    v_add_u32 v{t+3}, s{S_T2}, v{t}
    v_mad_u32_u24 v{V_OW0}, v{t+3}, s{S_STW0}, v{t+2}
    v_mad_u32_u24 v{V_OW1}, v{t+3}, s{S_STW1}, v{t+2}
    s_lshr_b32 s{S_T2}, s{S_W}, 1
    s_lshl_b32 s{S_T2}, s{S_T2}, 5
    s_add_u32 s{S_T2}, s{S_T2}, s{S_T3}
    v_lshl_add_u32 v{t+3}, v{t}, 1, s{S_T2}
    v_mul_u32_u24 v{t+3}, 1280, v{t+3}
    v_lshrrev_b32 v{t+4}, 4, v0
    v_xor_b32 v{t+4}, v{t+4}, v{t+1}
    v_lshl_add_u32 v{V_OX0}, v{t+4}, 4, v{t+3}
    v_xor_b32 v{V_OX1}, 64, v{V_OX0}
    v_add_u32 v{V_OX1}, {16*1280}, v{V_OX1}
    s_xor_b32 s{S_T2}, s{S_P}, 1
    s_mul_i32 s{S_WDS}, s{S_T2}, {WSLOT}
    s_lshl_b32 s{S_T3}, s{S_T0}, 10
    s_add_u32 s{S_WDS}, s{S_WDS}, s{S_T3}
    s_lshl_b32 s{S_T2}, s{S_T2}, 5
    s_mul_i32 s{S_WEND0}, s{S_T2}, s{S_STW0}
    s_mul_i32 s{S_WEND1}, s{S_T2}, s{S_STW1}
    s_lshl_b32 s{S_STW0}, s{S_STW0}, 6
    s_lshl_b32 s{S_STW1}, s{S_STW1}, 6
    s_mul_i32 s{S_SW0}, s{S_XM}, s{S_STW0}
    s_mul_i32 s{S_SW1}, s{S_XM}, s{S_STW1}
    s_add_u32 s{S_SW0}, s{S_SW0}, s{S_WEND0}
    s_add_u32 s{S_SW1}, s{S_SW1}, s{S_WEND1}
    s_lshl_b32 s{S_SX}, s{S_XM}, 7
    s_lshl_b32 s{S_XDS}, s{S_W}, 11
    s_add_u32 s{S_XDS}, s{S_XDS}, {XB}
    s_mul_i32 s{S_T2}, s{S_MB}, {128*1280}
    s_lshl_b32 s{S_T3}, s{S_LC0}, 7
    s_waitcnt lgkmcnt(0)
    ''')
    srd(a, SRD_X, S_X, 128 * 1280, f's{S_T2}')
    nq = 639 * 3840 + 128; ng = 639 * 3072 + 128
    srd(a, SRD_W, S_WQKV, nq, f's{S_T3}')
    a(f's_cmp_lt_u32 s{S_J}, 12\ns_cbranch_scc1 k_s1g')
    for c in range(1, 5):
        srd(a, SRD_W + 4 * c, SRD_W, nq, 128 * c)
    sp = 'split' in OPT
    a(f's_branch k_s1h\nk_s1g:\ns_lshl_b32 s{S_T3}, s{S_J}, {7 if sp else 8}')
    srd(a, SRD_W + 4, S_WG, ng, f's{S_T3}')
    srd(a, SRD_W + 8, SRD_W + 4, ng, 1536 if sp else 128)
    srd(a, SRD_W + 12, S_WU, ng, f's{S_T3}')
    srd(a, SRD_W + 16, SRD_W + 12, ng, 1536 if sp else 128)
    a(f's_and_b32 s{S_T3}, s{S_J}, 7\ns_cmp_eq_u32 s{S_T3}, 1\ns_cselect_b32 s{SRD_W+2}, 0, s{SRD_W+2}')
    a('k_s1h:')
    stamp(a, 1, prof)
    def groups(lbl, g1, g0):
        a(f's_cmp_eq_u32 s{S_P}, 0\ns_cbranch_scc1 {lbl}0')
        for grp in g1:
            for g in grp(a): a(g)
        a(f's_branch {lbl}e\n{lbl}0:')
        for grp in g0:
            for g in grp(a): a(g)
        a(f'{lbl}e:')
    PF = 'pf' in OPT
    PFN = int(PF and 'pf0' not in OPT)
    V_PF, V_PD, S_PO, S_PS = 252, 253, 93, 94
    def pf_setup():
        a(f'''
        s_mov_b64 s[96:97], s[{SRD_X}:{SRD_X+1}]
        s_mov_b32 s98, s{SRD_X+2}
        s_mov_b32 s99, 0x20000''')
        for c in range(5):
            b = SRD_W + 4 * c
            a(f's_cmp_eq_u32 s{S_W}, {c}\ns_cselect_b64 s[96:97], s[{b}:{b+1}], s[96:97]\ns_cselect_b32 s98, s{b+2}, s98')
        a(f'''
        s_cmp_eq_u32 s{S_W}, 0
        s_cselect_b32 s{S_PO}, s{S_STW0}, s{S_STW1}
        s_lshr_b32 s78, s{S_PO}, 6
        s_and_b32 s79, s{S_MB}, 7
        s_lshl_b32 s79, s79, 3
        v_lshl_add_u32 v{t+5}, v{t}, 6, v{t+1}
        v_add_u32 v{t+5}, s79, v{t+5}
        v_mul_u32_u24 v{V_PF}, s78, v{t+5}
        v_cmp_le_u32 vcc, 24, v0
        v_mov_b32 v{t+5}, 0x40000000
        s_cmp_lt_u32 s{S_W}, 5
        v_cndmask_b32 v{V_PF}, v{V_PF}, v{t+5}, vcc
        s_cbranch_scc1 k_pfw
        s_lshr_b32 s79, s2, 6
        s_lshl_b32 s79, s79, 5
        v_add_u32 v{t+5}, s79, v0
        s_sub_u32 s79, s{S_W}, 5
        s_lshl_b32 s79, s79, 7
        v_mov_b32 v{V_PF}, s79
        v_mov_b32 v{t+6}, 1280
        v_mad_u32_u24 v{V_PF}, v{t+5}, v{t+6}, v{V_PF}
        s_mov_b32 s{S_PO}, 128
        k_pfw:
        s_mul_i32 s{S_PS}, s{S_PO}, 3''')
    def pf():
        if PF: a(f's_mov_b32 exec_hi, 0\nbuffer_load_dword v{V_PD}, v{V_PF}, s[96:99], s{S_PO} offen\ns_mov_b32 exec_hi, -1\ns_add_u32 s{S_PO}, s{S_PO}, s{S_PS}')
    def slowpf():
        a(f'''
        s_mov_b64 s[96:97], s[{S_X}:{S_X+1}]
        s_mov_b32 s98, {2048*1280}
        s_mov_b32 s99, 0x20000
        s_and_b32 s78, s{S_W}, 3
        s_cmp_eq_u32 s78, 1
        s_cselect_b64 s[96:97], s[{S_WQKV}:{S_WQKV+1}], s[96:97]
        s_cselect_b32 s98, {640*3840}, s98
        s_cmp_eq_u32 s78, 2
        s_cselect_b64 s[96:97], s[{S_WG}:{S_WG+1}], s[96:97]
        s_cselect_b32 s98, {640*3072}, s98
        s_cmp_eq_u32 s78, 3
        s_cselect_b64 s[96:97], s[{S_WU}:{S_WU+1}], s[96:97]
        s_cselect_b32 s98, {640*3072}, s98
        s_lshl_b32 s78, s{S_P}, 8
        s_add_u32 s78, s78, s2
        s_lshl_b32 s78, s78, 10
        v_lshlrev_b32 v{V_PF}, 19, v0
        s_mov_b64 exec, 31
        buffer_load_dword v{V_PD}, v{V_PF}, s[96:99], s78 offen offset:384
        s_mov_b64 exec, -1''')
    def gupf():
        R0 = 0 if 'gr0' in OPT else 128
        nl = (640 - R0) * 24 // 1024
        a(f'''
        s_cmp_eq_u32 s{S_P}, 0
        s_cselect_b64 s[96:97], s[{S_WG}:{S_WG+1}], s[{S_WU}:{S_WU+1}]
        s_mov_b32 s98, {640*3072}
        s_mov_b32 s99, 0x20000
        s_and_b32 s78, s{S_W}, 3
        s_lshl_b32 s78, s78, 8
        s_add_u32 s78, s78, s2
        s_mul_i32 s78, s78, {nl*128}
        s_add_u32 s78, s78, {R0*3072}
        v_lshlrev_b32 v{V_PF}, 7, v0
        s_mov_b64 exec, {hex((1 << nl) - 1)}
        buffer_load_dword v{V_PD}, v{V_PF}, s[96:99], s78 offen
        s_mov_b64 exec, -1''')
    def codepf():
        a(f'''
        s_lshr_b32 s78, s2, 3
        s_cmp_eq_u32 s{S_W}, 7
        s_cselect_b32 s78, s78, 8
        s_cmp_lt_u32 s78, 3
        s_cbranch_scc0 k_nocpf
        s_getpc_b64 s[96:97]
        k_pcref:
        s_lshl_b32 s78, s78, 6
        v_add_u32 v{V_PF}, s78, v0
        v_lshlrev_b32 v{V_PF}, 7, v{V_PF}
        v_min_u32 v{V_PF}, k_end-k_pcref, v{V_PF}
        v_mov_b32 v{V_PF+1}, s97
        v_add_co_u32 v{V_PF}, vcc, s96, v{V_PF}
        s_nop 1
        v_addc_co_u32 v{V_PF+1}, vcc, 0, v{V_PF+1}, vcc
        global_load_dword v{V_PL}, v[{V_PF}:{V_PF+1}], off
        k_nocpf:''')
    if 'cp0' in OPT: codepf()
    if 'gp0' in OPT: gupf()
    if 'sp0' in OPT: slowpf()
    if 'pf0' in OPT: pf_setup(); pf()
    groups('k_pa', (dma_w, dma_x), (dma_x, dma_w))
    if PFN: pf_setup(); pf()
    if 'sp1' in OPT: slowpf(); PFN += 1
    if 'gp1' in OPT: gupf(); PFN += 1
    if 'cp1' in OPT: codepf()
    srd(a, SRD_WS, S_WS, WS_SIZE)
    srd(a, SRD_M, S_GW, 1280)
    a(f'''
    v_lshlrev_b32 v{V_L16}, 4, v0
    v_lshlrev_b32 v{V_L4}, 2, v0
    ''')
    gx, gw = t + 16, t + 22
    a(f'''
    s_lshl_b32 s{S_T2}, s{S_J}, 3
    s_add_u32 s{S_T2}, s{S_T2}, s{S_W}
    s_mul_i32 s{S_T3}, s{S_T2}, 1280
    buffer_load_dwordx4 {vr(gx,4)}, v{V_L16}, {sr(SRD_X,4)}, s{S_T3} offen
    buffer_load_dword v{gx+4}, v{V_L4}, {sr(SRD_X,4)}, s{S_T3} offen offset:1024
    buffer_load_dwordx4 {vr(gw,4)}, v{V_L16}, {sr(SRD_M,4)}, 0 offen
    buffer_load_dword v{gw+4}, v{V_L4}, {sr(SRD_M,4)}, 0 offen offset:1024
    ''')
    WF = False
    FS = 2 if 'fs2' in OPT else 5
    FM = 5 if 'fs2' in OPT else 4
    LATE = f'''
    s_lshl_b32 s78, s{S_MB}, {FM}
    s_add_u32 s78, s78, s{S_J}
    s_lshl_b32 s78, s78, {FS}
    s_add_u32 s79, s78, {WS_F2}
    v_mov_b32 v{V_FLG}, s79
    s_add_u32 s78, s78, {WS_F1}
    v_writelane_b32 v{V_FLG}, s78, 2
    s_lshr_b32 s78, s2, 3
    s_lshl_b32 s78, s78, 5
    s_and_b32 s79, s2, 7
    s_add_u32 s78, s78, s79
    s_lshl_b32 s78, s78, 2
    s_add_u32 s78, s78, {WS_F3}
    v_writelane_b32 v{V_FLG}, s78, 1
    s_add_u32 s78, s78, {WS_F0 - WS_F3}
    v_writelane_b32 v{V_FLG}, s78, 3
'''
    a(f'''
    s_cmp_eq_u32 s2, 0
    s_cbranch_scc0 k_noclr
    s_mul_i32 s78, s{S_W}, 3072
    s_add_u32 s78, s78, {WS_F1}
    v_mov_b32 v{V_ACC}, 0
    v_mov_b32 v{V_ACC+1}, 0
    v_mov_b32 v{V_ACC+2}, 0
    v_mov_b32 v{V_ACC+3}, 0
    buffer_store_dwordx4 {vr(V_ACC,4)}, v{V_L16}, {WSR}, s78 offen {SC}
    buffer_store_dwordx4 {vr(V_ACC,4)}, v{V_L16}, {WSR}, s78 offen offset:1024 {SC}
    buffer_store_dwordx4 {vr(V_ACC,4)}, v{V_L16}, {WSR}, s78 offen offset:2048 {SC}
    k_noclr:''')
    a(f'''
    v_mov_b32 v{V_ONE}, 1
    v_mov_b32 v{t+40}, 0
    v_mov_b32 v{t+41}, 0
    ''')
    RAMP = 'noramp' not in OPT
    if not RAMP: groups('k_pb', (dma_w, dma_x, dma_w), (dma_x, dma_w, dma_x))
    if 'ng3' not in OPT: groups('k_pc', (dma_w,), (dma_x,))
    srd(a, SRD_M, S_DBG, 256)
    a(f'''
    v_lshrrev_b32 v{t+12}, 4, v0
    v_bfe_u32 v{t+13}, v0, 2, 2
    v_and_b32 v{t+14}, 3, v0
    v_lshlrev_b32 v{V_WB}, 10, v{t+12}
    v_lshl_add_u32 v{V_WB}, v{t+13}, 7, v{V_WB}
    v_lshl_add_u32 v{V_WB}, v{t+14}, 3, v{V_WB}
    v_bfe_u32 v{t+14}, v0, 3, 2
    s_and_b32 s{S_T0}, s{S_W}, 3
    v_xor_b32 v{t+14}, s{S_T0}, v{t+14}
    v_lshl_add_u32 v{V_WB}, v{t+14}, 5, v{V_WB}
    v_and_b32 v{t+13}, 15, v0
    v_bfe_u32 v{t+14}, v0, 1, 3
    v_xor_b32 v{t+14}, v{t+14}, v{t+12}
    v_lshlrev_b32 v{t+14}, 4, v{t+14}
    v_lshl_add_u32 v{t+14}, v{t+13}, 7, v{t+14}
    s_lshl_b32 s{S_T0}, s{S_P}, 13
    v_add_u32 v{V_XB0}, s{S_T0}, v{t+14}
    v_xor_b32 v{V_XB1}, 64, v{V_XB0}
    s_mov_b32 s{S_WRS}, 0
    s_mov_b32 s{S_XRS}, {XB}
    v_mov_b32 v{V_WA}, v{V_WB}
    v_add_u32 v{V_XA}, s{S_XRS}, v{V_XB0}
    s_mov_b32 s{S_CNT}, 0
    ''')
    RW = 4
    LATE += f'''
    s_mul_i32 s{S_RU}, s2, 3
    s_sub_u32 s83, s{S_W}, {RW}
    s_add_u32 s{S_RU}, s{S_RU}, s83
    s_cmp_lt_u32 s83, 3
    s_cselect_b32 s{S_RU}, {1000 if 'norep' in OPT else 's'+str(S_RU)}, 1000
    s_mul_i32 s78, s{S_RU}, 6554
    s_lshr_b32 s78, s78, 16
    s_mul_i32 s79, s78, 10
    s_sub_u32 s79, s{S_RU}, s79
    s_lshl_b32 s79, s79, 7
    s_lshr_b32 s80, s78, 2
    s_lshl_b32 s80, s80, {6 if sp else 7}
    s_and_b32 s81, s78, 3
    s_lshl_b32 s81, s81, 4
    s_add_u32 s80, s80, s81
    s_sub_u32 s81, s78, 48
    s_lshl_b32 s81, s81, 5
    s_cmp_lt_u32 s78, 48
    s_cselect_b32 s80, s80, s81
    s_mov_b32 s81, {16*1280}
    s_mov_b32 s86, {640*1280}
    s_cselect_b32 s81, {(768 if sp else 64)*1280}, s81
    s_cselect_b32 s84, s{S_WD}, s{S_WO}
    s_cselect_b32 s85, s{S_WD+1}, s{S_WO+1}
    s_cselect_b32 s86, {1536*1280}, s86
    s_mov_b32 s87, 0x20000
    s_mul_i32 s80, s80, 1280
    s_add_u32 s80, s80, s79
    v_mul_u32_u24 v{t+10}, 1280, v{t}
    v_lshl_add_u32 v{t+10}, v{t+1}, 4, v{t+10}
    s_lshl_b32 s79, s83, 12
    s_add_u32 s79, s79, {RB}
    v_lshrrev_b32 v{t+9}, 2, v0
    v_lshlrev_b32 v{t+9}, 7, v{t+9}
    v_and_b32 v{t+8}, 3, v0
    v_lshl_add_u32 v{t+9}, v{t+8}, 3, v{t+9}
    v_add_u32 v{t+9}, s79, v{t+9}
    s_lshl_b32 s95, s{S_RU}, 12
    s_add_u32 s95, s95, {WS_W2}
    '''
    ll = [l.strip() for l in LATE.split('\n') if l.strip()]
    un = []
    for i, l in enumerate(ll):
        k = i
        while ll[k].startswith('s_mov') and k + 1 < len(ll): k += 1
        if ll[k].startswith('s_cselect'): un[-1].append(l)
        else: un.append([l])
    late = [[] for _ in range(20)]
    for i, u_ in enumerate(un): late[(i * 20) // len(un)] += u_

    if 'p1' in OPT: a(f's_cmp_eq_u32 s{S_P}, 0\ns_cbranch_scc1 k_pr1\ns_setprio 1\nk_pr1:')
    def lines(x): return [l.strip() for l in x.split('\n') if l.strip()]
    def step(par, n, dma, salu='', per=None, first=False):
        a(f's_waitcnt lgkmcnt(0)' + (f' vmcnt({n})' if n is not None else '') + '\ns_barrier')
        mf = [f'v_mfma_f32_16x16x32_bf16 {vr(acc(c,tt),4)}, {vr(wfr(par,c),4)}, {vr(xfr(par,tt),4)}, {0 if first else vr(acc(c,tt),4)}' for c in range(5) for tt in range(4)]
        rd = reads(1 - par)
        slots = [[] for _ in range(20)]
        for i in range(14): slots[i + 1].append(rd[i])
        na = lines(next_addr(par))
        slots[15].append(na[-2]); slots[16].append(na[-1])
        units = []
        for l in na[:-2] + lines(salu):
            if l.startswith('s_cselect'): units[-1].append(l)
            else: units.append([l])
        pos = {5: [1, 5, 9, 13, 17] if 'dl' in OPT else [1, 4, 7, 10, 13] if 'de' in OPT else [2, 5, 9, 12, 16], 2: [3, 11] if 'dl' in OPT else [7, 14], 0: [],
               8: [1, 3, 5, 7, 10, 12, 15, 17], 9: [1, 3, 5, 7, 9, 11, 13, 16, 17] if 'l9' not in OPT else [1, 3, 5, 8, 11, 13, 15, 18, 19]}[len(dma)]
        for p_, d_ in zip(pos, dma):
            ls = [l for l in lines(d_) if l != 's_nop 0']
            if ls[-1].startswith('buffer'):
                slots[p_ - 1] += ls[:-1]; slots[p_].insert(0, ls[-1])
            else: slots[p_] += ls
        for i, u_ in enumerate(units): slots[(i * 14) // len(units)] += u_
        if per:
            for i in range(20): slots[i] += per[i]
        for m_, sl in zip(mf, slots):
            a(m_)
            for l in sl: a(l)
    g = t + 11
    gu = [[f'v_mov_b32 v{g}, 0']]
    for i in range(5):
        gu.append([f'v_lshlrev_b32 v{t+12}, 16, v{gx+i}', f'v_lshlrev_b32 v{t+13}, 16, v{gw+i}', f'v_fmac_f32 v{g}, v{t+12}, v{t+13}'])
        gu.append([f'v_and_b32 v{t+14}, 0xffff0000, v{gx+i}', f'v_and_b32 v{t+15}, 0xffff0000, v{gw+i}', f'v_fmac_f32 v{g}, v{t+14}, v{t+15}'])
    gu[0] += gu.pop(1)
    for dpp in ('row_shr:1', 'row_shr:2', 'row_shr:4', 'row_shr:8', 'row_bcast:15 row_mask:0xa', 'row_bcast:31 row_mask:0xc'):
        gu.append(['s_nop 0', f'v_add_f32_dpp v{g}, v{g}, v{g} {dpp}' + (' bound_ctrl:0' if 'shr' in dpp else '')])
    gu.append([f'v_mul_f32 v{g}, {hex(f2u(-LOG2E))}, v{g}', f'v_exp_f32 v{g}, v{g}', f's_lshl_b32 s78, s{S_MB}, 4', f's_add_u32 s78, s78, s{S_J}'])
    gu.append([f'v_add_f32 v{g}, 1.0, v{g}', f'v_rcp_f32 v{g}, v{g}', 's_lshl_b32 s78, s78, 5', f's_add_u32 s78, s78, s{S_W}'])
    gu.append(['s_lshl_b32 s78, s78, 2', f's_add_u32 s78, s78, {WS_G - 252}'])
    gu.append(['s_mov_b32 exec_lo, 0', 's_brev_b32 exec_hi, 1', f'buffer_store_dword v{g}, v{V_L4}, {WSR}, s78 offen {SC}', 's_mov_b64 exec, -1'])
    assert len(gu) == 20
    w2dyn = [s for s, _ in issue_w('')]
    for P in (1, 0):
        if P == 1: a(f's_cmp_eq_u32 s{S_P}, 0\ns_cbranch_scc1 k_l0pre')
        else: a('k_l0pre:')
        a(f's_waitcnt vmcnt({(9 if P == 0 else 4) + ((2 if P == 0 else 5) if "ng3" not in OPT else 0)})\ns_barrier')
        stamp(a, 2, prof)
        for g in reads(0): a(g)
        a(next_addr(1))
        if RAMP:
            if 'ng3' in OPT:
                for g_ in (dma_w(a) if P == 1 else dma_x(a)): a(g_)
            two = (lambda: dma_x(a) + dma_w(a)) if P == 1 else (lambda: dma_w(a) + dma_x(a))
            step(0, 6 if P == 0 else None, two(), '', late, True)
            step(1, 7 if P == 0 else 5, two()[:-1], '', gu)
            a(f's_mov_b32 s{S_CNT}, 1\ns_branch k_side')
        a(f'k_l{P}:')
        for par in range(2):
            n = {(0, 0): 9, (0, 1): 12, (1, 1): 7, (1, 0): None}[(P, par)]
            step(par, n, dma_w(a)[:-1] if par == P else dma_x(a)[:-1], dma_x(a)[-1] if par == P else dma_w(a)[-1])
            if par == 0: a(f's_cmp_eq_u32 s{S_CNT}, 7\ns_cbranch_scc1 k_tail')
        a(f's_add_u32 s{S_CNT}, s{S_CNT}, 1\ns_bitcmp1_b32 {0b1011110}, s{S_CNT}\ns_cbranch_scc0 k_l{P}')
        if P == 1: a('s_branch k_side')
    a(f'k_side:\ns_cmp_eq_u32 s{S_CNT}, 1\ns_cbranch_scc0 k_side1')
    RW = 0 if 'rw0' in OPT else 4
    e = t + 16
    a(f'''
    s_cmp_eq_u32 s{S_W}, 3
    s_cselect_b32 s78, s2, 1
    s_cmp_eq_u32 s78, 0
    s_cbranch_scc0 k_nosig
    s_mov_b64 exec, 1
    buffer_store_dword v{V_ONE}, v{V_L4}, {sr(SRD_M,4)}, 0 offen {SC}
    s_mov_b64 exec, -1
    k_nosig:
    s_cmp_ge_u32 s{S_RU}, 680
    s_cbranch_scc1 k_back
    ''')
    for i in range(4):
        a(f's_add_u32 m0, s79, {i*1024}')
        a([f's_nop 0', f's_add_u32 s82, s80, {8*1280}', 's_add_u32 s80, s80, s81', f's_add_u32 s82, s80, {8*1280}'][i])
        a(f'buffer_load_dwordx4 v{t+10}, s[84:87], s{82 if i & 1 else 80} offen' + (' nt' if 'ntw' in OPT else '') + ' lds')
    a(f'''s_branch k_back
    k_side1:
    s_cmp_eq_u32 s{S_CNT}, 2
    s_cbranch_scc0 k_side2
    s_cmp_ge_u32 s{S_RU}, 680
    s_cbranch_scc1 k_back
    s_waitcnt vmcnt(7)
    ''')
    for uu in range(4):
        for h in range(2):
            a(f'ds_read_b64_tr_b16 {vr(e+4+4*uu+2*h,2)}, v{t+9} offset:{h*2048+uu*32}')
    a('s_waitcnt lgkmcnt(0)')
    for uu in range(4):
        a(f'buffer_store_dwordx4 {vr(e+4+4*uu,4)}, v{V_L16}, {WSR}, s95 offen offset:{1024*uu} {SC}')
    z = t + 40
    a(f'''s_branch k_back
    k_side2:''')
    if prof:
        a(f's_cmp_eq_u32 s{S_CNT}, 4\ns_cbranch_scc0 k_nst')
        stamp(a, 14, prof)
        a('k_nst:')
    a(f'''
    s_cmp_eq_u32 s{S_W}, 3
    s_cbranch_scc0 k_back
    s_cmp_eq_u32 s{S_CNT}, 4
    s_cbranch_scc1 k_side4
    s_cmp_eq_u32 s{S_CNT}, 6
    s_cbranch_scc1 k_side6
    v_mov_b32 v{z}, 0
    v_lshrrev_b32 v{z+1}, 1, v0
    v_lshlrev_b32 v{z+1}, 3, v{z+1}
    v_and_or_b32 v{z+1}, v0, 1, v{z+1}
    v_lshlrev_b32 v{z+1}, 4, v{z+1}
    buffer_load_dword v{V_PL}, v{z}, {sr(SRD_M,4)}, 0 offen {SC}
    s_branch k_back
    k_side4:
    s_waitcnt vmcnt(7)''')
    spin(a, z, sr(SRD_M, 4), 0, 1, True)
    flag(a, 3)
    a(f'''s_branch k_back
    k_side6:
    s_mov_b32 s99, {WS_F0}
    buffer_load_dwordx4 {vr(z+2,4)}, v{z+1}, {WSR}, s99 offen {SC}
    k_back:
    s_cmp_eq_u32 s{S_P}, 0
    s_cbranch_scc1 k_l0
    s_branch k_l1
    k_tail:''')
    stamp(a, 15, prof)
    s4_setup(a)
    u = V_T + 16
    a(f'''
    s_and_b32 s{S_T0}, s{S_W}, 3
    s_lshl_b32 s{S_T2}, s{S_LC0}, 2
    s_add_u32 s{S_T2}, s{S_T2}, s{S_T0}
    s_mul_i32 s{S_T2}, s{S_T2}, {4*PS}
    s_lshl_b32 s{S_T3}, s{S_MB}, 10
    s_add_u32 s{S_T2}, s{S_T2}, s{S_T3}
    s_lshl_b32 s{S_T3}, s{S_P}, 9
    s_add_u32 s{S_T2}, s{S_T2}, s{S_T3}
    v_lshrrev_b32 v{u}, 4, v0
    v_mul_u32_u24 v{u}, {PS}, v{u}
    v_and_b32 v{u+1}, 15, v0
    v_lshl_add_u32 v{u}, v{u+1}, 4, v{u}
    s_cmp_lt_u32 s{S_LC0}, 10
    s_cselect_b32 s{S_T3}, {hex(f2u(20 ** -0.5 * LOG2E))}, 1.0
    ''')
    a(f's_and_b32 s98, s{S_J}, 7\ns_cmp_eq_u32 s98, 1\ns_cselect_b32 s{S_T2}, 0x40000000, s{S_T2}')
    a(w_next())
    a(f'''s_cmp_eq_u32 s{S_W}, 3
    s_cbranch_scc0 k_rdy
    s_waitcnt vmcnt(12)
    s_mov_b32 s98, 0
    s_mov_b32 s99, {WS_F0}
    k_rdl:
    v_and_b32 v{z+2}, v{z+2}, v{z+3}
    v_and_b32 v{z+4}, v{z+4}, v{z+5}
    v_and_b32 v{z+2}, v{z+2}, v{z+4}
    v_cmp_ne_u32 vcc, 1, v{z+2}
    s_add_u32 s98, s98, 1
    s_cbranch_vccz k_rdy
    buffer_load_dwordx4 {vr(z+2,4)}, v{z+1}, {WSR}, s99 offen {SC}
    s_waitcnt vmcnt(0)
    s_cmp_lt_u32 s98, 0x40000
    s_cbranch_scc1 k_rdl
    k_rdy:''')
    a(f's_cmp_eq_u32 s{S_P}, 0\ns_cbranch_scc1 k_todd0\ns_branch k_todd1')
    def w2touch(L='k_not'):
        a(f'''
        s_and_b32 s62, s{Q_MT}, 7
        s_lshl_b32 s62, s62, 3
        s_add_u32 s62, s62, s{S_W}
        s_cmp_lt_u32 s62, 48
        s_cbranch_scc0 {L}
        s_lshl_b32 s62, s62, 3
        s_add_u32 s62, s62, s{Q_N}
        s_mul_i32 s62, s62, 5120
        s_add_u32 s62, s62, {WS_W2 + 20*40*1024}
        v_lshlrev_b32 v{V_PF}, 7, v0
        s_mov_b32 exec_hi, 0xff
        buffer_load_dword v{V_PD}, v{V_PF}, {WSR}, s62 offen {SC}
        s_mov_b32 exec_hi, -1
        {L}:''')
    for P in (1, 0):
        a(f'k_teven{P}:')
        step(0, 5 if P == 0 else None, w2dyn if P == 0 else [], '' if P == 0 else w_next())
        a(f's_cmp_eq_u32 s{S_CNT}, 9\ns_cbranch_scc1 k_s1e\nk_todd{P}:')
        step(1, 10 if P == 0 else 5, w2dyn if P == 1 else [], '' if P == 1 else w_next())
        if OPT & {'wt7', 'wt8'}:
            a(f's_cmp_eq_u32 s{S_CNT}, {7 if "wt7" in OPT else 8}\ns_cbranch_scc0 k_not{P}')
            w2touch(f'k_not{P}')
        a(f's_add_u32 s{S_CNT}, s{S_CNT}, 1\ns_branch k_teven{P}')
    HP = 'sc1 nt' if 'hnt' in OPT else 'sc0 sc1' if 'h01' in OPT else SC
    QP = 'sc1 nt' if 'qnt' in OPT else 'sc0 sc1' if 'q01' in OPT else SC
    def qkv_tile(c, scale):
        o = [f's_add_u32 s{S_T2}, s{S_T2}, {16*PS}'] if c else []
        for tp in range(2):
            d = u + 4 + 4 * tp + 8 * (c & 1)
            for tt in range(2):
                b = acc(c, 2 * tp + tt)
                if scale: o += [f'v_mul_f32 v{b+r}, s{S_T3}, v{b+r}' for r in range(4)]
                o += [f'v_cvt_pk_bf16_f32 v{d+2*tt}, v{b}, v{b+1}', f'v_cvt_pk_bf16_f32 v{d+2*tt+1}, v{b+2}, v{b+3}']
            o.append(f'buffer_store_dwordx4 {vr(d,4)}, v{u}, {WSR}, s{S_T2} offen offset:{256*tp} {QP}')
        return o
    def last(order, fill):
        slots = [[] for _ in range(20)]
        for s0, n, ls in fill:
            for i, l in enumerate(ls): slots[s0 + (i * n) // len(ls)].append(l)
        for (c, tt), sl in zip(order, slots):
            a(f'v_mfma_f32_16x16x32_bf16 {vr(acc(c,tt),4)}, {vr(wfr(1,c),4)}, {vr(xfr(1,tt),4)}, {vr(acc(c,tt),4)}')
            for l in sl: a(l)
        stamp(a, 3, prof)
    a(f'k_s1e:\ns_waitcnt lgkmcnt(0)\ns_barrier\ns_cmp_eq_u32 s{S_P}, 0\ns_cbranch_scc1 k_ls0')
    for l in w2dyn: a(l)
    a(f'k_ls0:\ns_cmp_lt_u32 s{S_J}, 12\ns_cbranch_scc1 k_eg')
    last([(c, tt) for c in range(5) for tt in range(4)], [(8 + 4 * c, 4, qkv_tile(c, False)) for c in range(3)])
    for l in qkv_tile(3, False) + qkv_tile(4, False): a(l)
    a('s_branch k_ef\nk_eg:')
    last([(0, tt) for tt in range(4)] + [(c, tt) for tt in range(4) for c in range(1, 5)], [(8, 8, qkv_tile(0, True))])
    a(f'''
    s_mov_b32 s{S_T3}, {hex(f2u(-LOG2E))}
    ''')
    a(f'''
    s_lshl_b32 s{Q_HO}, s{S_MB}, 1
    s_add_u32 s{Q_HO}, s{Q_HO}, s{S_P}
    s_mul_i32 s{Q_HO}, s{Q_HO}, {4*68}
    s_lshl_b32 s{S_T2}, s{S_J}, 2
    s_add_u32 s{Q_HO}, s{Q_HO}, s{S_T2}
    s_add_u32 s{Q_HO}, s{Q_HO}, s{S_T0}
    s_lshl_b32 s{Q_HO}, s{Q_HO}, 10
    s_add_u32 s{Q_HO}, s{Q_HO}, {WS_A2}
    ''')
    e = 104
    def hst(tt): a(f'buffer_store_dwordx4 {vr(V_H+4*tt,4)}, v{V_L16}, {WSR}, s{Q_HO} offen {HP}\ns_add_u32 s{Q_HO}, s{Q_HO}, {68*1024}')
    def htile(tt, st=True):
        idx = [(c, r) for c in range(2) for r in range(4)]
        for k, (c, r) in enumerate(idx): a(f'v_mul_f32 v{e+k}, s{S_T3}, v{acc(1+c,tt)+r}')
        for k in range(8): a(f'v_exp_f32 v{e+k}, v{e+k}')
        for k, (c, r) in enumerate(idx):
            a(f'v_mul_f32 v{acc(1+c,tt)+r}, v{acc(1+c,tt)+r}, v{acc(3+c,tt)+r}\nv_add_f32 v{e+k}, 1.0, v{e+k}')
        for k in range(8): a(f'v_rcp_f32 v{e+k}, v{e+k}')
        a('s_nop 0')
        for k, (c, r) in enumerate(idx): a(f'v_mul_f32 v{e+k}, v{e+k}, v{acc(1+c,tt)+r}')
        for k in range(4): a(f'v_cvt_pk_bf16_f32 v{V_H+4*tt+k}, v{e+2*k}, v{e+2*k+1}')
        if st: hst(tt)
    HS = ([int(o[2]) for o in OPT if o[:2] == 'hs'] + [1])[0]
    for tt in range(HS): htile(tt, False)
    st3.LB = 5 * SLOT
    p = 130
    a('k_ef:')
    st3.ids(a)
    a(f'''
    s_mov_b32 s99, {WS_F1}
    s_waitcnt vmcnt(0)
    s_barrier
    s_cmp_eq_u32 s{S_W}, 0
    s_cbranch_scc0 k_f1''')
    flag(a, 2)
    a('k_f1:')
    stamp(a, 4, prof)
    a(w_next())
    st3.loads_pre(a)
    def hstores():
        for tt in range(4):
            a(f'buffer_store_dwordx4 {vr(V_H+4*tt,4)}, v{V_L16}, {WSR}, s{Q_HO} offen {SC}')
            if tt < 3: a(f's_add_u32 s{Q_HO}, s{Q_HO}, {68*1024}')
    a(f's_cmp_lt_u32 s{Q_J}, 12\ns_cbranch_scc0 k_nh0')
    for tt in range(HS): hst(tt)
    for tt in range(HS, 4): htile(tt)
    HL = 'hl' in OPT
    if 'hend' in OPT: hstores()
    a('k_nh0:')
    H_, QB_ = st3.S_H, st3.S_QB
    a(f'''
    s_and_b32 s62, s{S_W}, 3
    s_lshl_b32 s63, s{QB_}, 1
    s_add_u32 s64, s63, s62
    s_sub_u32 s64, s64, 2
    s_cselect_b32 s64, s62, s64
    s_lshl_b32 s64, s64, 4
    s_lshr_b32 s62, s{H_}, 4
    s_add_u32 s64, s64, s62
    s_add_u32 s64, s64, 12
    v_mov_b32 v{p}, s64
    s_add_u32 s64, s64, 2
    v_writelane_b32 v{p}, s64, 1
    s_add_u32 s63, s63, s{S_P}
    s_lshl_b32 s63, s63, 4
    s_mul_i32 s62, s{H_}, 20''')
    for k in range(2):
        a(f'''
        s_lshr_b32 s64, s62, 6
        s_min_u32 s65, s64, 1
        s_add_u32 s65, s65, s64
        s_lshr_b32 s64, s64, 3
        s_add_u32 s65, s65, s64
        s_add_u32 s65, s65, s63
        v_writelane_b32 v{p}, s65, {2+k}
        s_add_u32 s62, s62, 19''')
    a(f'v_lshlrev_b32 v{p}, {FS}, v{p}')
    if 'wt1' in OPT: w2touch()
    a(f'buffer_load_dword v{V_PL}, v{p}, {WSR}, s99 offen {SC}')
    st3.setup(a)
    F2L = 'f2l' in OPT or 'hkv' in OPT
    def f2():
        a(f's_cmp_eq_u32 s{S_W}, 2\ns_cbranch_scc0 k_f2')
        flag(a, 0)
        a('k_f2:')
    a('s_waitcnt vmcnt(0)')
    if not F2L: a('s_barrier'); f2()
    if 'hkv' in OPT:
        a(f'v_cmp_ne_u32 vcc, 1, v{V_PL}\ns_cbranch_vccz k_hk1\ns_cmp_lt_u32 s{Q_J}, 12\ns_cbranch_scc0 k_hk0\ns_mov_b32 s{Q_J}, 12')
        hstores()
        a('k_hk0:')
        spin(a, p, WSR, 's99', 1)
        a('k_hk1:')
    else: spin(a, p, WSR, 's99', 1, True)
    stamp(a, 5, prof)
    st3.loads(a, SC)
    if 'hkv' in OPT:
        a(f's_cmp_lt_u32 s{Q_J}, 12\ns_cbranch_scc0 k_hk2')
        hstores()
        a('k_hk2:')
    a(f's_lshr_b32 s99, s{Q_MT}, 1\ns_lshl_b32 s99, s99, {FS+FM}\ns_add_u32 s99, s99, {WS_F2}\nv_and_b32 v{V_L4}, 15, v0\nv_lshlrev_b32 v{V_L4}, {FS}, v{V_L4}')
    pre = {0: [0, 1], 1: [2, 3], 2: [4, 10], 3: [5, 6], 4: [7, 11], 5: [8, 9]}
    if 'pb' in OPT: pre = {-1: [0, 1], 0: [2, 3], 1: [4, 10], 2: [5, 11], 3: [6], 4: [7], 5: [8, 9]}
    if 'pc' in OPT: pre = {1: [0, 1], 2: [2, 3], 3: [4, 5], 4: [6, 7], 5: [8, 9], 6: [10, 11]}
    if 'pd' in OPT: pre = {2: [0, 1, 2], 3: [3, 4, 5], 4: [6, 7], 5: [8, 9], 6: [10, 11]}
    if 'pe' in OPT: pre = {3: [0, 1, 2], 4: [3, 4, 5], 5: [6, 7, 8], 6: [9, 10, 11]}
    if 'pg' in OPT: pre = {4: [0, 1, 2], 5: [3, 4, 5], 6: [6, 7]}
    if 'pm' in OPT: pre = {-1.5: [0, 1], -1: [2, 3], 0: [10], 1: [4, 11], 2: [5], 3: [6], 4: [7], 5: [8], 6: [9]}
    if not OPT & {'pa', 'pb', 'pc', 'pm'}: pre = {-1.5: [0, 1], -1: [2, 3], 0: [10, 4], 1: [11], 2: [5], 3: [6], 4: [7], 5: [8, 9]}
    TC = min(pre)
    NPRE = sum(len(v) for v in pre.values())
    def hook(x):
        if 'wt2' in OPT and x == -2: w2touch()
        if 'wt3' in OPT and x == 6: w2touch(); a.vm.append(None); a.vm.pop()
        if HL and x == -2:
            a(f's_cmp_lt_u32 s{Q_J}, 12\ns_cbranch_scc0 k_hl0')
            hstores()
            a('k_hl0:')
        if HL and x == -3:
            a(f's_cmp_lt_u32 s{Q_J}, 12\ns_cbranch_scc1 k_hl1\ns_waitcnt vmcnt(0)\nk_hl1:\ns_waitcnt vmcnt(4)')
            return True
        if HL and x == (1 if 'hf1' in OPT else 0):
            a('s_waitcnt vmcnt(0)'); flag(a, 0)
        if 'noprio' not in OPT:
            if x == -2: a(f's_cmp_eq_u32 s{S_P}, 0\ns_cbranch_scc1 k_pr0\ns_setprio 1\nk_pr0:')
            if x == (2 if 'pr2' in OPT else 3 if 'pr3' in OPT else 1): a('s_setprio 0')
        if x == max(-2, TC - 1):
            a(f'buffer_load_dword v{V_PL}, v{V_L4}, {WSR}, s99 offen {SC}')
        if x == TC:
            a('s_waitcnt vmcnt(0)')
            spin(a, V_L4, WSR, 's99', 1, True)
        g_ = []
        for r in pre.get(x, []): g_ += issue_a(r)
        for s_, tag in g_: a.vm.append(tag)
        return [s_ for s_, tag in g_]
    st3.compute(a, prof, SC, hook)
    srd(a, SRD_O, S_OUT, 2048 * 1280)
    a4 = lambda f, t_: V4_ACC + (f * 2 + t_) * 4
    a(f'''v_and_b32 v2, 15, v0
    v_lshrrev_b32 v3, 4, v0
    v_mul_u32_u24 v3, {PS}, v3
    v_lshl_add_u32 v4, v2, 4, v3
    v_lshrrev_b32 v2, 4, v0
    v_lshlrev_b32 v2, 7, v2
    ''')
    if WF: a(f'v_and_b32 v3, 31, v0\nv_lshlrev_b32 v3, 2, v3\ns_add_u32 s99, s{Q_G}, {WS_F3}')
    else: a(f'v_bfe_u32 v3, v0, 3, 2\nv_lshlrev_b32 v3, 5, v3\nv_and_or_b32 v3, v0, 7, v3\nv_lshlrev_b32 v3, 2, v3\ns_lshr_b32 s99, s{Q_MT}, 2\ns_lshl_b32 s99, s99, 9\ns_add_u32 s99, s99, {WS_F3}')
    a(f'''
    s_mul_i32 s{Q_O}, s{Q0}, {4*PS}
    s_add_u32 s{Q_O}, s{Q_O}, s{Q_G}
    s_lshl_b32 s{Q_O}, s{Q_O}, 1
    s_add_u32 s{Q_O}, s{Q_O}, {WS_O - 12*32*PS}
    s_lshl_b32 s{Q_G}, s{Q_G}, 2
    s_add_u32 s{Q_G}, s{Q_G}, {WS_G}''')
    G8 = 122

    def rds(r):
        sl = r % NS
        return [f'ds_read_b128 {vr(V4_F+20*(r&1)+4*f,4)}, v{[V_RA,V_RA2,V_RA3][sl//3]} offset:{(sl%3)*SLOT+f*1024}' for f in range(5)]
    for l in rds(0): a(l)
    t = 5
    RED = SLOT; SE = 272; SF = 2368; SW = 5 * SF
    a(f'''
    v_mul_u32_u24 v{t+1}, 26, v0
    v_lshrrev_b32 v{t+1}, 8, v{t+1}
    v_mul_u32_u24 v{t+2}, 10, v{t+1}
    v_sub_u32 v{t+2}, v0, v{t+2}
    v_mul_u32_u24 v{t+3}, {SE}, v{t+1}
    v_lshrrev_b32 v{t+4}, 1, v{t+2}
    v_mul_u32_u24 v{t+4}, {SF-64}, v{t+4}
    v_lshl_add_u32 v{t+3}, v{t+2}, 5, v{t+3}
    s_mul_i32 s{Q2}, s{S_P}, {4*SW}
    s_lshl_b32 s{Q3}, s{Q0}, 6
    s_add_u32 s{Q2}, s{Q2}, s{Q3}
    s_add_u32 s{Q2}, s{Q2}, {RED}
    v_add3_u32 v{t+3}, v{t+3}, v{t+4}, s{Q2}
    v_mul_u32_u24 v{t+1}, 1280, v{t+1}
    v_lshl_add_u32 v{t+1}, v{t+2}, 4, v{t+1}
    s_lshl_b32 s{Q_HO}, s{Q_MT}, 3
    s_add_u32 s{Q_HO}, s{Q_HO}, s{S_W}
    s_mul_i32 s{Q_HO}, s{Q_HO}, {8*1280}
    s_mul_i32 s{Q3}, s{Q_N}, 160
    s_add_u32 s{Q_HO}, s{Q_HO}, s{Q3}
    s_add_u32 s{Q3}, s{Q_HO}, {4*1280}
    ''')
    RF = 2 if 'rf2' in OPT else 0 if 'rf0' in OPT else 1
    RP = 7 if 'rp7' in OPT else 8 if 'rp8' in OPT else 9
    assert NPRE == 12
    Wg = lambda g: issue_w(f'w{4+2*g}') + [(w_next(), None)]
    stream = Wg(0) + Wg(1) + Wg(2) + Wg(3) + Wg(4) + issue_a(12) + issue_a(13) + issue_a(14) + Wg(5) + issue_a(15) + issue_a(16)
    quota = {'qa': [4, 3, 3, 3, 3, 3, 3, 3, 4, 4, 4, 3], 'qb': [3, 3, 3, 3, 3, 3, 3, 2, 2, 4, 4, 3, 4], 'qc': [4, 4, 4, 4, 3, 3, 3, 4, 4, 4, 3],
             'qd': [4, 3, 3, 3, 3, 3, 3, 3, 3, 3, 3, 3, 3], 'qe': [3, 3, 3, 3, 3, 3, 3, 2, 2, 3, 3, 3, 3, 3]}[([o for o in OPT if o in ('qd', 'qa', 'qe')] + ['qb'])[0]] + [0] * 8
    RP = [r for r in range(17) if sum(quota[:r + 1]) > 25][0]
    assert sum(quota[:RP]) == 25 and sum(quota) == 40
    for r in range(17):
        need = [f'a{r}'] + (['g'] if r == 12 else []) + (['f3'] if r == RP else []) + (['ost'] if r == RF else [])
        if r % 2 == 0: need.append(f'w{r}')
        a.vmwait(need, 'lgkmcnt(0)')
        if r == RF and WF: flag(a, 1); a.vm.append('fl')
        if (r % 2 == 0 and r < 16) or r == RF: a('s_barrier')
        if r == RF and not WF:
            a(f's_cmp_eq_u32 s{S_W}, 0\ns_cbranch_scc0 k_f3')
            flag(a, 1)
            a('k_f3:')
        if r in (0, 4, 9, 12): stamp(a, {0: 8, 4: 11, 9: 12, 12: 13}[r], prof)
        if r == RP: spin(a, 3, WSR, 's99', 1, True)
        if r == 12:
            for i in range(8): a(f'v_sub_f32 v{G8+i}, 1.0, v{G8+i}')
            for f in range(5):
                for t_ in range(2):
                    for i in range(4): a(f'v_mul_f32 v{a4(f,t_)+i}, v{G8+2*i+t_}, v{a4(f,t_)+i}')
        if r >= 12: a(f'v_swap_b32 v{AREG[r]+2}, v{AREG[r]+4}\nv_swap_b32 v{AREG[r]+3}, v{AREG[r]+5}\ns_nop 1')
        mf = [f'v_mfma_f32_16x16x32_bf16 {vr(a4(f,t_),4)}, {vr(AREG[r]+4*t_,4)}, {vr(V4_F+20*(r&1)+4*f,4)}, ' + ('0' if r == 0 else vr(a4(f, t_), 4)) for f in range(5) for t_ in range(2)]
        iss = []
        if r == RP - (1 if 'pd1' in OPT else 2): iss.append((f'buffer_load_dword v{V_PL}, v3, {WSR}, s99 offen {SC}', 'f3'))
        if r in (7, 8): iss.append((f'buffer_load_dwordx4 {vr(G8+4*(r-7),4)}, v2, {WSR}, s{Q_G} offen offset:{16*(r-7)} {SC}', 'g'))
        n_ = quota[r]
        while n_ > 0 and stream:
            it = stream.pop(0); iss.append(it)
            if it[1]: n_ -= 1
        if stream and stream[0][1] is None: iss.append(stream.pop(0))
        for s_, tag in iss:
            if tag: a.vm.append(tag)
        slots = [[] for _ in range(10)]
        if r < 16:
            for i, l in enumerate(rds(r + 1)): slots[i].append(l)
        n = len(iss)
        for i, (s_, tag) in enumerate(iss): slots[(i * 10) // n if n > 4 else 1 + 2 * i].append(s_)
        if r == 16: slots[0].append(f's_mul_i32 s{Q2}, s{Q0}, {SW}\ns_add_u32 m0, s{Q2}, {RED}\ns_cmp_eq_u32 s{S_P}, 0')
        for m_, sl in zip(mf, slots):
            a(m_)
            for l in sl: a(l)
    a('s_cbranch_scc1 k_rw0')
    for P in (1, 0):
        if P == 0: a('k_rw0:')
        for f in range(5):
            for tt in range(2):
                for i in range(4): a(f'ds_write_addtid_b32 v{a4(f,tt)+i} offset:{P*4*SW+f*SF+(2*i+tt)*SE}')
        if P == 1: a('s_branch k_rw1')
    a('k_rw1:')
    stamp(a, 9, prof)
    a('s_waitcnt lgkmcnt(0)\ns_barrier\ns_mov_b32 exec_hi, 0xff')
    R = 26
    for ps in range(2):
        for kq in range(4):
            for h in range(2):
                if ps == 1 and kq == 3 and h == 1: a('s_waitcnt lgkmcnt(14)')
                a(f'ds_read_b128 {vr(R+32*ps+8*kq+4*h,4)}, v{t+3} offset:{kq*SW+ps*4*SE+h*16}')
    for ps in range(2):
        b = R + 32 * ps
        a(f's_waitcnt lgkmcnt({8 if ps == 0 else 0})')
        for i in range(8): a(f'v_add_f32 v{b+i}, v{b+i}, v{b+8+i}\nv_add_f32 v{b+16+i}, v{b+16+i}, v{b+24+i}')
        for i in range(8): a(f'v_add_f32 v{b+i}, v{b+i}, v{b+16+i}')
        for k in range(4): a(f'v_cvt_pk_bf16_f32 v{b+8+k}, v{b+2*k}, v{b+2*k+1}')
        a(f'buffer_store_dwordx4 {vr(b+8,4)}, v{t+1}, {sr(SRD_O,4)}, s{Q_HO if ps == 0 else Q3} offen' + (' sc1' if 'osc' in OPT else ' nt' if 'ont' in OPT else ''))
    a('s_mov_b64 exec, -1')
    stamp(a, 10, prof)
    stamp_flush(a, prof, 0)
    if 'fix' in OPT: a('k_fix:\ns_memrealtime s[98:99]\ns_waitcnt lgkmcnt(0)\ns_sub_u32 s98, s98, s100\ns_cmp_lt_u32 s98, 6000\ns_cbranch_scc1 k_fix')
    a('k_end:\ns_endpgm')
    ref = open('gated_mix__sliding_block__swiglu_ffn__prompt.s.ref').read()
    hdr = ref.split('; Override')[0]
    s = hdr + '; @launch grid=(256,1,1) block=(512,1,1) lds=163840\n.amdgcn_target "amdgcn-amd-amdhsa--gfx950"\n.text\n'
    s += f'.globl {NAME}\n.p2align 8\n.type {NAME},@function\n{NAME}:\n' + a.text()
    s += ref[ref.index('.section .rodata'):]
    return s
if __name__ == '__main__':
    open('gated_mix__sliding_block__swiglu_ffn__prompt.s', 'w').write(build())
    open('prof.s', 'w').write(build(True))
    for o in sys.argv[1:]:
        OPT.clear(); OPT.update(o.split('+'))
        open(f'prof_{o}.s', 'w').write(build(True))
        open(f'v_{o}.s', 'w').write(build(False))
```

```python
import sys, struct
from base import *
import st1, st3
from st1 import *
NAME = 'gated_mix__sliding_block__swiglu_ffn__prompt_kernel'
SC = 'sc1'
WS_F1, WS_F2, WS_F3, WS_F0 = 0x1510000, 0x1512000, 0x1514000, 0x1515000
S_P = 27
V_L16, V_FLG, V_ONE, V_PL, V_L4, V_RA, V_RA2, V_RA3, V_G1 = 244, 245, 246, 247, 248, 249, 250, 251, 242
V_H = 210
Q_MT, Q_N, Q0, Q1, Q2, Q3, Q_A0, Q_A1, Q_WO, Q_WL, Q_RH, Q_RO, Q_R, Q_PR, Q_HO, Q_J, Q_G, Q_O, Q_WA, Q_WM = range(32, 52)
SRD_O = 28
SLOT = 20480; NS = 8
WSR = sr(SRD_WS, 4)
uid = [0]

def spin(a, vaddr, srd_, soff, expect, first_issued=False):
    uid[0] += 1; L = f'spin{uid[0]}'
    a('s_mov_b32 s98, 0')
    if first_issued: a(f's_branch {L}c')
    a(f'''{L}:
    buffer_load_dword v{V_PL}, v{vaddr}, {srd_}, {soff} offen {SC}
    s_waitcnt vmcnt(0)
    {L}c:
    v_cmp_ne_u32 vcc, {expect}, v{V_PL}
    s_add_u32 s98, s98, 1
    s_cbranch_vccz {L}d
    s_cmp_lt_u32 s98, 0x40000
    s_cbranch_scc1 {L}
    {L}d:''')
def flag(a, lane):
    a(f's_mov_b64 exec, {1 << lane}\nbuffer_store_dword v{V_ONE}, v{V_FLG}, {WSR}, 0 offen {SC}\ns_mov_b64 exec, -1')

def s4_setup(a):
    a(f'''
    s_and_b32 s{Q0}, s2, 7
    s_lshr_b32 s{Q1}, s2, 3
    s_lshr_b32 s{Q_MT}, s{Q0}, 1
    s_lshl_b32 s{Q_MT}, s{Q_MT}, 3
    s_and_b32 s{Q2}, s{Q1}, 7
    s_add_u32 s{Q_MT}, s{Q_MT}, s{Q2}
    s_and_b32 s{Q_N}, s{Q0}, 1
    s_lshl_b32 s{Q_N}, s{Q_N}, 2
    s_lshr_b32 s{Q1}, s{Q1}, 3
    s_add_u32 s{Q_N}, s{Q_N}, s{Q1}
    s_and_b32 s{Q0}, s{S_W}, 3
    s_lshl_b32 s{Q2}, s{Q_MT}, 1
    s_add_u32 s{Q2}, s{Q2}, s{S_P}
    s_lshl_b32 s{Q_G}, s{Q2}, 7
    s_mul_i32 s{Q_A0}, s{Q2}, {2*68}
    s_add_u32 s{Q_A0}, s{Q_A0}, s{Q0}
    s_lshl_b32 s{Q_A0}, s{Q_A0}, 10
    s_add_u32 s{Q_A0}, s{Q_A0}, {WS_A2}
    s_lshl_b32 s{Q2}, s{Q0}, 3
    s_add_u32 s{Q2}, s{Q2}, s{Q_N}
    s_mul_i32 s{Q_WO}, s{Q2}, 5120
    s_add_u32 s{Q_WO}, s{Q_WO}, {WS_W2}
    s_mul_i32 s{Q_WL}, s{Q0}, 5120
    s_xor_b32 s{Q_PR}, s{S_P}, 1
    s_mov_b32 s{Q_J}, s{S_J}
    v_add_u32 v{V_RA}, s{Q_WL}, v{V_L16}
    v_add_u32 v{V_RA2}, {3*SLOT}, v{V_RA}
    v_add_u32 v{V_RA3}, {6*SLOT}, v{V_RA}
    ''')
def rot(r):
    if r < 12: return f's_add_u32 s{Q_R}, s{Q_RH}, {r}\ns_cmp_ge_u32 s{Q_R}, 12\ns_cselect_b32 s{Q2}, 12, 0\ns_sub_u32 s{Q_R}, s{Q_R}, s{Q2}\n'
    return f's_add_u32 s{Q_R}, s{Q_RO}, {r}\ns_cmp_ge_u32 s{Q_R}, 17\ns_cselect_b32 s{Q2}, 5, 0\ns_sub_u32 s{Q_R}, s{Q_R}, s{Q2}\n'
def issue_w(tag):
    g = []
    for f in range(5):
        pre = ''
        if f == 0: pre = f's_mov_b32 m0, s{Q_WM}\ns_add_u32 s{Q_PR}, s{Q_PR}, 2\n'
        if f == 4: pre = f's_add_u32 m0, m0, 4096\ns_add_u32 s{Q_WA}, s{Q_WA}, 4096\n'
        g.append((pre + f'buffer_load_dwordx4 v{V_L16}, {WSR}, s{Q_WA} offen offset:{(f&3)*1024} {SC} lds', tag))
    return g
def w_next():
    return f'''s_mul_i32 s{Q_WA}, s{Q_PR}, {160*1024}
    s_add_u32 s{Q_WA}, s{Q_WA}, s{Q_WO}
    s_and_b32 s{Q_WM}, s{Q_PR}, 7
    s_mul_i32 s{Q_WM}, s{Q_WM}, {SLOT}
    s_add_u32 s{Q_WM}, s{Q_WM}, s{Q_WL}'''
AREG = [210 + 8 * r for r in range(4)] + [26 + 8 * r for r in range(7)] + [14] + [82 + 8 * r for r in range(5)]
V4_ACC = 130; V4_F = 170
def issue_a(r):
    g = []
    for t in range(2):
        if r >= 12: g.append((f's_add_u32 s{Q2}, s{Q_O}, {(32*r+4*t)*PS}\nbuffer_load_dwordx4 {vr(AREG[r]+4*t,4)}, v4, {WSR}, s{Q2} offen {SC}', f'a{r}'))
        else: g.append((f's_add_u32 s{Q2}, s{Q_A0}, {r*4096+t*68*1024}\nbuffer_load_dwordx4 {vr(AREG[r]+4*t,4)}, v{V_L16}, {WSR}, s{Q2} offen {SC}', f'a{r}'))
    return g

def build(prof=False):
    uid[0] = 0
    global WS_F2, WS_F3, WS_F0
    FS = 7
    F2S = 5
    WS_F2 = WS_F1 + (256 << FS); WS_F3 = WS_F2 + 0x2000; WS_F0 = WS_F3 + 0x1000
    if 'f2s' in OPT:
        F2S = 7; WS_F3 = WS_F2; WS_F0 = WS_F3 + 0x1000; WS_F2 = WS_F1 + 4
    NCL = (WS_F0 + 0x1000 - WS_F1) // 8192
    F3S = False
    config(5)
    XB, RB = st1.XBASE, st1.RBASE
    a = Asm(); name = 'k'
    common_entry(a, name)
    stamp(a, 0, prof)
    if 'fix' in OPT: a('s_memrealtime s[100:101]')
    t = V_T
    a(f'''
    s_and_b32 s{S_T0}, s2, 7
    s_lshr_b32 s{S_T1}, s2, 3
    s_and_b32 s{S_MB}, s{S_T0}, 1
    s_lshl_b32 s{S_MB}, s{S_MB}, 3
    s_and_b32 s{S_T2}, s{S_T1}, 7
    s_add_u32 s{S_MB}, s{S_MB}, s{S_T2}
    s_lshr_b32 s{S_J}, s{S_T0}, 1
    s_lshr_b32 s{S_T1}, s{S_T1}, 3
    s_add_u32 s{S_XM}, s{S_T1}, s{S_T2}
    ''')
    if 'rot' in OPT:
        a(f'''s_add_u32 s{S_XM}, s{S_XM}, s{S_T1}
        s_and_b32 s{S_XM}, s{S_XM}, 7
        s_mul_i32 s{S_XM}, s{S_XM}, 5
        s_lshr_b32 s{S_XM}, s{S_XM}, 2
        s_mov_b32 s{S_CW}, s{S_XM}
        s_mov_b32 s{S_CX}, s{S_XM}''')
    else:
        a(f'''s_and_b32 s{S_XM}, s{S_XM}, {0 if 'x0' in OPT else 3 if 'x3' in OPT else 1}
        s_mov_b32 s{S_CW}, 0
        s_mov_b32 s{S_CX}, 0''')
    a(f'''
    s_lshl_b32 s{S_J if 'map2' in OPT else S_T1}, s{S_J if 'map2' in OPT else S_T1}, 2
    s_add_u32 s{S_J}, s{S_J}, s{S_T1}
    s_mul_i32 s{S_T0}, s{S_J}, 5
    s_sub_u32 s{S_T0}, s{S_T0}, 50
    s_add_u32 s{S_LC0}, s{S_J}, 6
    s_lshr_b32 s{S_LC0}, s{S_LC0}, 3
    s_sub_u32 s{S_LC0}, s{S_J}, s{S_LC0}
    s_cmp_lt_u32 s{S_J}, 12
    s_cselect_b32 s{S_LC0}, s{S_LC0}, s{S_T0}
    s_mov_b32 s{S_STW0}, 3840
    s_cselect_b32 s{S_STW1}, 3072, s{S_STW0}
    s_and_b32 s{S_T0}, s{S_W}, 3
    s_lshr_b32 s{S_P}, s{S_W}, 2
    v_lshrrev_b32 v{t}, 3, v0
    v_and_b32 v{t+1}, 7, v0
    v_bfe_u32 v{t+2}, v0, 4, 1
    s_and_b32 s{S_T3}, s{S_W}, 1
    s_lshl_b32 s{S_T2}, s{S_T3}, 1
    v_or_b32 v{t+2}, s{S_T2}, v{t+2}
    v_lshlrev_b32 v{t+2}, 1, v{t+2}
    v_xor_b32 v{t+2}, v{t+2}, v{t+1}
    v_lshlrev_b32 v{t+2}, 4, v{t+2}
    s_lshl_b32 s{S_T2}, s{S_T0}, 3
    v_add_u32 v{t+3}, s{S_T2}, v{t}
    v_mad_u32_u24 v{V_OW0}, v{t+3}, s{S_STW0}, v{t+2}
    v_mad_u32_u24 v{V_OW1}, v{t+3}, s{S_STW1}, v{t+2}
    s_lshr_b32 s{S_T2}, s{S_W}, 1
    s_lshl_b32 s{S_T2}, s{S_T2}, 5
    s_add_u32 s{S_T2}, s{S_T2}, s{S_T3}
    v_lshl_add_u32 v{t+3}, v{t}, 1, s{S_T2}
    v_mul_u32_u24 v{t+3}, 1280, v{t+3}
    v_lshrrev_b32 v{t+4}, 4, v0
    v_xor_b32 v{t+4}, v{t+4}, v{t+1}
    v_lshl_add_u32 v{V_OX0}, v{t+4}, 4, v{t+3}
    v_xor_b32 v{V_OX1}, 64, v{V_OX0}
    v_add_u32 v{V_OX1}, {16*1280}, v{V_OX1}
    s_xor_b32 s{S_T2}, s{S_P}, 1
    s_mul_i32 s{S_WDS}, s{S_T2}, {WSLOT}
    s_lshl_b32 s{S_T3}, s{S_T0}, 10
    s_add_u32 s{S_WDS}, s{S_WDS}, s{S_T3}
    s_lshl_b32 s{S_T2}, s{S_T2}, 5
    s_mul_i32 s{S_WEND0}, s{S_T2}, s{S_STW0}
    s_mul_i32 s{S_WEND1}, s{S_T2}, s{S_STW1}
    s_lshl_b32 s{S_STW0}, s{S_STW0}, 6
    s_lshl_b32 s{S_STW1}, s{S_STW1}, 6
    s_mul_i32 s{S_SW0}, s{S_XM}, s{S_STW0}
    s_mul_i32 s{S_SW1}, s{S_XM}, s{S_STW1}
    s_add_u32 s{S_SW0}, s{S_SW0}, s{S_WEND0}
    s_add_u32 s{S_SW1}, s{S_SW1}, s{S_WEND1}
    s_lshl_b32 s{S_SX}, s{S_XM}, 7
    s_lshl_b32 s{S_XDS}, s{S_W}, 11
    s_add_u32 s{S_XDS}, s{S_XDS}, {XB}
    s_mul_i32 s{S_T2}, s{S_MB}, {128*1280}
    s_lshl_b32 s{S_T3}, s{S_LC0}, 7
    s_waitcnt lgkmcnt(0)
    ''')
    srd(a, SRD_X, S_X, 128 * 1280, f's{S_T2}')
    nq = 639 * 3840 + 128; ng = 639 * 3072 + 128
    srd(a, SRD_W, S_WQKV, nq, f's{S_T3}')
    a(f's_cmp_lt_u32 s{S_J}, 12\ns_cbranch_scc1 k_s1g')
    for c in range(1, 5):
        srd(a, SRD_W + 4 * c, SRD_W, nq, 128 * c)
    sp = 'split' in OPT
    a(f's_branch k_s1h\nk_s1g:\ns_lshl_b32 s{S_T3}, s{S_J}, {7 if sp else 8}')
    srd(a, SRD_W + 4, S_WG, ng, f's{S_T3}')
    srd(a, SRD_W + 8, SRD_W + 4, ng, 1536 if sp else 128)
    srd(a, SRD_W + 12, S_WU, ng, f's{S_T3}')
    srd(a, SRD_W + 16, SRD_W + 12, ng, 1536 if sp else 128)
    a(f's_and_b32 s{S_T3}, s{S_J}, 7\ns_cmp_eq_u32 s{S_T3}, 1\ns_cselect_b32 s{SRD_W+2}, 0, s{SRD_W+2}')
    a('k_s1h:')
    stamp(a, 1, prof)
    def groups(lbl, g1, g0):
        a(f's_cmp_eq_u32 s{S_P}, 0\ns_cbranch_scc1 {lbl}0')
        for grp in g1:
            for g in grp(a): a(g)
        a(f's_branch {lbl}e\n{lbl}0:')
        for grp in g0:
            for g in grp(a): a(g)
        a(f'{lbl}e:')
    PF = 'pf' in OPT
    PFN = int(PF and 'pf0' not in OPT)
    V_PF, V_PD, S_PO, S_PS = 252, 253, 93, 94
    def pf_setup():
        a(f'''
        s_mov_b64 s[96:97], s[{SRD_X}:{SRD_X+1}]
        s_mov_b32 s98, s{SRD_X+2}
        s_mov_b32 s99, 0x20000''')
        for c in range(5):
            b = SRD_W + 4 * c
            a(f's_cmp_eq_u32 s{S_W}, {c}\ns_cselect_b64 s[96:97], s[{b}:{b+1}], s[96:97]\ns_cselect_b32 s98, s{b+2}, s98')
        a(f'''
        s_cmp_eq_u32 s{S_W}, 0
        s_cselect_b32 s{S_PO}, s{S_STW0}, s{S_STW1}
        s_lshr_b32 s78, s{S_PO}, 6
        s_and_b32 s79, s{S_MB}, 7
        s_lshl_b32 s79, s79, 3
        v_lshl_add_u32 v{t+5}, v{t}, 6, v{t+1}
        v_add_u32 v{t+5}, s79, v{t+5}
        v_mul_u32_u24 v{V_PF}, s78, v{t+5}
        v_cmp_le_u32 vcc, 24, v0
        v_mov_b32 v{t+5}, 0x40000000
        s_cmp_lt_u32 s{S_W}, 5
        v_cndmask_b32 v{V_PF}, v{V_PF}, v{t+5}, vcc
        s_cbranch_scc1 k_pfw
        s_lshr_b32 s79, s2, 6
        s_lshl_b32 s79, s79, 5
        v_add_u32 v{t+5}, s79, v0
        s_sub_u32 s79, s{S_W}, 5
        s_lshl_b32 s79, s79, 7
        v_mov_b32 v{V_PF}, s79
        v_mov_b32 v{t+6}, 1280
        v_mad_u32_u24 v{V_PF}, v{t+5}, v{t+6}, v{V_PF}
        s_mov_b32 s{S_PO}, 128
        k_pfw:
        s_mul_i32 s{S_PS}, s{S_PO}, 3''')
    def pf():
        if PF: a(f's_mov_b32 exec_hi, 0\nbuffer_load_dword v{V_PD}, v{V_PF}, s[96:99], s{S_PO} offen\ns_mov_b32 exec_hi, -1\ns_add_u32 s{S_PO}, s{S_PO}, s{S_PS}')
    def slowpf():
        a(f'''
        s_mov_b64 s[96:97], s[{S_X}:{S_X+1}]
        s_mov_b32 s98, {2048*1280}
        s_mov_b32 s99, 0x20000
        s_and_b32 s78, s{S_W}, 3
        s_cmp_eq_u32 s78, 1
        s_cselect_b64 s[96:97], s[{S_WQKV}:{S_WQKV+1}], s[96:97]
        s_cselect_b32 s98, {640*3840}, s98
        s_cmp_eq_u32 s78, 2
        s_cselect_b64 s[96:97], s[{S_WG}:{S_WG+1}], s[96:97]
        s_cselect_b32 s98, {640*3072}, s98
        s_cmp_eq_u32 s78, 3
        s_cselect_b64 s[96:97], s[{S_WU}:{S_WU+1}], s[96:97]
        s_cselect_b32 s98, {640*3072}, s98
        s_lshl_b32 s78, s{S_P}, 8
        s_add_u32 s78, s78, s2
        s_lshl_b32 s78, s78, 10
        v_lshlrev_b32 v{V_PF}, 19, v0
        s_mov_b64 exec, 31
        buffer_load_dword v{V_PD}, v{V_PF}, s[96:99], s78 offen offset:384
        s_mov_b64 exec, -1''')
    def gupf():
        R0 = 0 if 'gr0' in OPT else 128
        nl = (640 - R0) * 24 // 1024
        a(f'''
        s_cmp_eq_u32 s{S_P}, 0
        s_cselect_b64 s[96:97], s[{S_WG}:{S_WG+1}], s[{S_WU}:{S_WU+1}]
        s_mov_b32 s98, {640*3072}
        s_mov_b32 s99, 0x20000
        s_and_b32 s78, s{S_W}, 3
        s_lshl_b32 s78, s78, 8
        s_add_u32 s78, s78, s2
        s_mul_i32 s78, s78, {nl*128}
        s_add_u32 s78, s78, {R0*3072}
        v_lshlrev_b32 v{V_PF}, 7, v0
        s_mov_b64 exec, {hex((1 << nl) - 1)}
        buffer_load_dword v{V_PD}, v{V_PF}, s[96:99], s78 offen
        s_mov_b64 exec, -1''')
    def codepf():
        a(f'''
        s_lshr_b32 s78, s2, 3
        s_cmp_eq_u32 s{S_W}, 7
        s_cselect_b32 s78, s78, 8
        s_cmp_lt_u32 s78, 3
        s_cbranch_scc0 k_nocpf
        s_getpc_b64 s[96:97]
        k_pcref:
        s_lshl_b32 s78, s78, 6
        v_add_u32 v{V_PF}, s78, v0
        v_lshlrev_b32 v{V_PF}, 7, v{V_PF}
        v_min_u32 v{V_PF}, k_end-k_pcref, v{V_PF}
        v_mov_b32 v{V_PF+1}, s97
        v_add_co_u32 v{V_PF}, vcc, s96, v{V_PF}
        s_nop 1
        v_addc_co_u32 v{V_PF+1}, vcc, 0, v{V_PF+1}, vcc
        global_load_dword v{V_PL}, v[{V_PF}:{V_PF+1}], off
        k_nocpf:''')
    if 'cp0' in OPT: codepf()
    if 'gp0' in OPT: gupf()
    if 'sp0' in OPT: slowpf()
    if 'pf0' in OPT: pf_setup(); pf()
    groups('k_pa', (dma_w, dma_x), (dma_x, dma_w))
    if PFN: pf_setup(); pf()
    if 'sp1' in OPT: slowpf(); PFN += 1
    if 'gp1' in OPT: gupf(); PFN += 1
    if 'cp1' in OPT: codepf()
    srd(a, SRD_WS, S_WS, WS_SIZE)
    srd(a, SRD_M, S_GW, 1280)
    a(f'''
    v_lshlrev_b32 v{V_L16}, 4, v0
    v_lshlrev_b32 v{V_L4}, 2, v0
    ''')
    gx, gw = t + 16, t + 22
    a(f'''
    s_lshl_b32 s{S_T2}, s{S_J}, 3
    s_add_u32 s{S_T2}, s{S_T2}, s{S_W}
    s_mul_i32 s{S_T3}, s{S_T2}, 1280
    buffer_load_dwordx4 {vr(gx,4)}, v{V_L16}, {sr(SRD_X,4)}, s{S_T3} offen
    buffer_load_dword v{gx+4}, v{V_L4}, {sr(SRD_X,4)}, s{S_T3} offen offset:1024
    buffer_load_dwordx4 {vr(gw,4)}, v{V_L16}, {sr(SRD_M,4)}, 0 offen
    buffer_load_dword v{gw+4}, v{V_L4}, {sr(SRD_M,4)}, 0 offen offset:1024
    ''')
    WF = False
    FM = 5 if 'fs2' in OPT else 4
    LATE = f'''
    s_lshl_b32 s78, s{S_MB}, {FM}
    s_add_u32 s78, s78, s{S_J}
    s_lshl_b32 s79, s78, {F2S}
    s_lshl_b32 s78, s78, {FS}
    s_add_u32 s79, s79, {WS_F2}
    v_mov_b32 v{V_FLG}, s79
    s_add_u32 s78, s78, {WS_F1}
    v_writelane_b32 v{V_FLG}, s78, 2
    s_lshr_b32 s78, s2, 3
    s_lshl_b32 s78, s78, 5
    s_and_b32 s79, s2, 7
    s_add_u32 s78, s78, s79
    s_lshl_b32 s78, s78, 2
    s_add_u32 s78, s78, {WS_F3}
    v_writelane_b32 v{V_FLG}, s78, 1
    s_add_u32 s78, s78, {WS_F0 - WS_F3}
    v_writelane_b32 v{V_FLG}, s78, 3
'''
    a(f'''
    s_cmp_eq_u32 s2, 0
    s_cbranch_scc0 k_noclr
    s_mul_i32 s78, s{S_W}, {1024*NCL}
    s_add_u32 s78, s78, {WS_F1}
    v_mov_b32 v{V_ACC}, 0
    v_mov_b32 v{V_ACC+1}, 0
    v_mov_b32 v{V_ACC+2}, 0
    v_mov_b32 v{V_ACC+3}, 0
    ''')
    for i in range(NCL):
        if i == 4: a('s_add_u32 s78, s78, 4096')
        a(f'buffer_store_dwordx4 {vr(V_ACC,4)}, v{V_L16}, {WSR}, s78 offen offset:{1024*(i&3)} {SC}')
    a('''
    k_noclr:''')
    a(f'''
    v_mov_b32 v{V_ONE}, 1
    v_mov_b32 v{t+40}, 0
    v_mov_b32 v{t+41}, 0
    ''')
    RAMP = 'noramp' not in OPT
    if not RAMP: groups('k_pb', (dma_w, dma_x, dma_w), (dma_x, dma_w, dma_x))
    if 'ng3' not in OPT: groups('k_pc', (dma_w,), (dma_x,))
    srd(a, SRD_M, S_DBG, 256)
    a(f'''
    v_lshrrev_b32 v{t+12}, 4, v0
    v_bfe_u32 v{t+13}, v0, 2, 2
    v_and_b32 v{t+14}, 3, v0
    v_lshlrev_b32 v{V_WB}, 10, v{t+12}
    v_lshl_add_u32 v{V_WB}, v{t+13}, 7, v{V_WB}
    v_lshl_add_u32 v{V_WB}, v{t+14}, 3, v{V_WB}
    v_bfe_u32 v{t+14}, v0, 3, 2
    s_and_b32 s{S_T0}, s{S_W}, 3
    v_xor_b32 v{t+14}, s{S_T0}, v{t+14}
    v_lshl_add_u32 v{V_WB}, v{t+14}, 5, v{V_WB}
    v_and_b32 v{t+13}, 15, v0
    v_bfe_u32 v{t+14}, v0, 1, 3
    v_xor_b32 v{t+14}, v{t+14}, v{t+12}
    v_lshlrev_b32 v{t+14}, 4, v{t+14}
    v_lshl_add_u32 v{t+14}, v{t+13}, 7, v{t+14}
    s_lshl_b32 s{S_T0}, s{S_P}, 13
    v_add_u32 v{V_XB0}, s{S_T0}, v{t+14}
    v_xor_b32 v{V_XB1}, 64, v{V_XB0}
    s_mov_b32 s{S_WRS}, 0
    s_mov_b32 s{S_XRS}, {XB}
    v_mov_b32 v{V_WA}, v{V_WB}
    v_add_u32 v{V_XA}, s{S_XRS}, v{V_XB0}
    s_mov_b32 s{S_CNT}, 0
    ''')
    RW = 4
    LATE += f'''
    s_mul_i32 s{S_RU}, s2, 3
    s_sub_u32 s83, s{S_W}, {RW}
    s_add_u32 s{S_RU}, s{S_RU}, s83
    s_cmp_lt_u32 s83, 3
    s_cselect_b32 s{S_RU}, {1000 if 'norep' in OPT else 's'+str(S_RU)}, 1000
    s_mul_i32 s78, s{S_RU}, 6554
    s_lshr_b32 s78, s78, 16
    s_mul_i32 s79, s78, 10
    s_sub_u32 s79, s{S_RU}, s79
    s_lshl_b32 s79, s79, 7
    s_lshr_b32 s80, s78, 2
    s_lshl_b32 s80, s80, {6 if sp else 7}
    s_and_b32 s81, s78, 3
    s_lshl_b32 s81, s81, 4
    s_add_u32 s80, s80, s81
    s_sub_u32 s81, s78, 48
    s_lshl_b32 s81, s81, 5
    s_cmp_lt_u32 s78, 48
    s_cselect_b32 s80, s80, s81
    s_mov_b32 s81, {16*1280}
    s_mov_b32 s86, {640*1280}
    s_cselect_b32 s81, {(768 if sp else 64)*1280}, s81
    s_cselect_b32 s84, s{S_WD}, s{S_WO}
    s_cselect_b32 s85, s{S_WD+1}, s{S_WO+1}
    s_cselect_b32 s86, {1536*1280}, s86
    s_mov_b32 s87, 0x20000
    s_mul_i32 s80, s80, 1280
    s_add_u32 s80, s80, s79
    v_mul_u32_u24 v{t+10}, 1280, v{t}
    v_lshl_add_u32 v{t+10}, v{t+1}, 4, v{t+10}
    s_lshl_b32 s79, s83, 12
    s_add_u32 s79, s79, {RB}
    v_lshrrev_b32 v{t+9}, 2, v0
    v_lshlrev_b32 v{t+9}, 7, v{t+9}
    v_and_b32 v{t+8}, 3, v0
    v_lshl_add_u32 v{t+9}, v{t+8}, 3, v{t+9}
    v_add_u32 v{t+9}, s79, v{t+9}
    s_lshl_b32 s95, s{S_RU}, 12
    s_add_u32 s95, s95, {WS_W2}
    '''
    ll = [l.strip() for l in LATE.split('\n') if l.strip()]
    un = []
    for i, l in enumerate(ll):
        k = i
        while ll[k].startswith('s_mov') and k + 1 < len(ll): k += 1
        if ll[k].startswith('s_cselect'): un[-1].append(l)
        else: un.append([l])
    late = [[] for _ in range(20)]
    for i, u_ in enumerate(un): late[(i * 20) // len(un)] += u_

    if 'p1' in OPT: a(f's_cmp_eq_u32 s{S_P}, 0\ns_cbranch_scc1 k_pr1\ns_setprio 1\nk_pr1:')
    def lines(x): return [l.strip() for l in x.split('\n') if l.strip()]
    def step(par, n, dma, salu='', per=None, first=False):
        a(f's_waitcnt lgkmcnt(0)' + (f' vmcnt({n})' if n is not None else '') + '\ns_barrier')
        mf = [f'v_mfma_f32_16x16x32_bf16 {vr(acc(c,tt),4)}, {vr(wfr(par,c),4)}, {vr(xfr(par,tt),4)}, {0 if first else vr(acc(c,tt),4)}' for c in range(5) for tt in range(4)]
        rd = reads(1 - par)
        slots = [[] for _ in range(20)]
        for i in range(14): slots[i + 1].append(rd[i])
        na = lines(next_addr(par))
        slots[15].append(na[-2]); slots[16].append(na[-1])
        units = []
        for l in na[:-2] + lines(salu):
            if l.startswith('s_cselect'): units[-1].append(l)
            else: units.append([l])
        pos = {5: [1, 5, 9, 13, 17] if 'dl' in OPT else [1, 4, 7, 10, 13] if 'de' in OPT else [2, 5, 9, 12, 16], 2: [3, 11] if 'dl' in OPT else [7, 14], 0: [],
               8: [1, 3, 5, 7, 10, 12, 15, 17], 9: [1, 3, 5, 7, 9, 11, 13, 16, 17] if 'l9' not in OPT else [1, 3, 5, 8, 11, 13, 15, 18, 19]}[len(dma)]
        for p_, d_ in zip(pos, dma):
            ls = [l for l in lines(d_) if l != 's_nop 0']
            if ls[-1].startswith('buffer'):
                slots[p_ - 1] += ls[:-1]; slots[p_].insert(0, ls[-1])
            else: slots[p_] += ls
        for i, u_ in enumerate(units): slots[(i * 14) // len(units)] += u_
        if per:
            for i in range(20): slots[i] += per[i]
        for m_, sl in zip(mf, slots):
            a(m_)
            for l in sl: a(l)
    g = t + 11
    gu = [[f'v_mov_b32 v{g}, 0']]
    for i in range(5):
        gu.append([f'v_lshlrev_b32 v{t+12}, 16, v{gx+i}', f'v_lshlrev_b32 v{t+13}, 16, v{gw+i}', f'v_fmac_f32 v{g}, v{t+12}, v{t+13}'])
        gu.append([f'v_and_b32 v{t+14}, 0xffff0000, v{gx+i}', f'v_and_b32 v{t+15}, 0xffff0000, v{gw+i}', f'v_fmac_f32 v{g}, v{t+14}, v{t+15}'])
    gu[0] += gu.pop(1)
    for dpp in ('row_shr:1', 'row_shr:2', 'row_shr:4', 'row_shr:8', 'row_bcast:15 row_mask:0xa', 'row_bcast:31 row_mask:0xc'):
        gu.append(['s_nop 0', f'v_add_f32_dpp v{g}, v{g}, v{g} {dpp}' + (' bound_ctrl:0' if 'shr' in dpp else '')])
    gu.append([f'v_mul_f32 v{g}, {hex(f2u(-LOG2E))}, v{g}', f'v_exp_f32 v{g}, v{g}', f's_lshl_b32 s78, s{S_MB}, 4', f's_add_u32 s78, s78, s{S_J}'])
    gu.append([f'v_add_f32 v{g}, 1.0, v{g}', f'v_rcp_f32 v{g}, v{g}', 's_lshl_b32 s78, s78, 5', f's_add_u32 s78, s78, s{S_W}'])
    gu.append(['s_lshl_b32 s78, s78, 2', f's_add_u32 s78, s78, {WS_G - 252}'])
    gu.append(['s_mov_b32 exec_lo, 0', 's_brev_b32 exec_hi, 1', f'buffer_store_dword v{g}, v{V_L4}, {WSR}, s78 offen {SC}', 's_mov_b64 exec, -1'])
    assert len(gu) == 20
    w2dyn = [s for s, _ in issue_w('')]
    for P in (1, 0):
        if P == 1: a(f's_cmp_eq_u32 s{S_P}, 0\ns_cbranch_scc1 k_l0pre')
        else: a('k_l0pre:')
        a(f's_waitcnt vmcnt({(9 if P == 0 else 4) + ((2 if P == 0 else 5) if "ng3" not in OPT else 0)})\ns_barrier')
        stamp(a, 2, prof)
        for g in reads(0): a(g)
        a(next_addr(1))
        if RAMP:
            if 'ng3' in OPT:
                for g_ in (dma_w(a) if P == 1 else dma_x(a)): a(g_)
            two = (lambda: dma_x(a) + dma_w(a)) if P == 1 else (lambda: dma_w(a) + dma_x(a))
            step(0, 6 if P == 0 else None, two(), '', late, True)
            step(1, 7 if P == 0 else 5, two()[:-1], '', gu)
            a(f's_mov_b32 s{S_CNT}, 1\ns_branch k_side')
        a(f'k_l{P}:')
        for par in range(2):
            n = {(0, 0): 9, (0, 1): 12, (1, 1): 7, (1, 0): None}[(P, par)]
            step(par, n, dma_w(a)[:-1] if par == P else dma_x(a)[:-1], dma_x(a)[-1] if par == P else dma_w(a)[-1])
            if par == 0: a(f's_cmp_eq_u32 s{S_CNT}, 7\ns_cbranch_scc1 k_tail')
        a(f's_add_u32 s{S_CNT}, s{S_CNT}, 1\ns_bitcmp1_b32 {0b1011110}, s{S_CNT}\ns_cbranch_scc0 k_l{P}')
        if P == 1: a('s_branch k_side')
    a(f'k_side:\ns_cmp_eq_u32 s{S_CNT}, 1\ns_cbranch_scc0 k_side1')
    RW = 0 if 'rw0' in OPT else 4
    e = t + 16
    a(f'''
    s_cmp_eq_u32 s{S_W}, 3
    s_cselect_b32 s78, s2, 1
    s_cmp_eq_u32 s78, 0
    s_cbranch_scc0 k_nosig
    s_mov_b64 exec, 1
    buffer_store_dword v{V_ONE}, v{V_L4}, {sr(SRD_M,4)}, 0 offen {SC}
    s_mov_b64 exec, -1
    k_nosig:
    s_cmp_ge_u32 s{S_RU}, 680
    s_cbranch_scc1 k_back
    ''')
    for i in range(4):
        a(f's_add_u32 m0, s79, {i*1024}')
        a([f's_nop 0', f's_add_u32 s82, s80, {8*1280}', 's_add_u32 s80, s80, s81', f's_add_u32 s82, s80, {8*1280}'][i])
        a(f'buffer_load_dwordx4 v{t+10}, s[84:87], s{82 if i & 1 else 80} offen' + (' nt' if 'ntw' in OPT else '') + ' lds')
    a(f'''s_branch k_back
    k_side1:
    s_cmp_eq_u32 s{S_CNT}, 2
    s_cbranch_scc0 k_side2
    s_cmp_ge_u32 s{S_RU}, 680
    s_cbranch_scc1 k_back
    s_waitcnt vmcnt(7)
    ''')
    for uu in range(4):
        for h in range(2):
            a(f'ds_read_b64_tr_b16 {vr(e+4+4*uu+2*h,2)}, v{t+9} offset:{h*2048+uu*32}')
    a('s_waitcnt lgkmcnt(0)')
    for uu in range(4):
        a(f'buffer_store_dwordx4 {vr(e+4+4*uu,4)}, v{V_L16}, {WSR}, s95 offen offset:{1024*uu} {SC}')
    z = t + 40
    a(f'''s_branch k_back
    k_side2:''')
    if prof:
        a(f's_cmp_eq_u32 s{S_CNT}, 4\ns_cbranch_scc0 k_nst')
        stamp(a, 14, prof)
        a('k_nst:')
    a(f'''
    s_cmp_eq_u32 s{S_W}, 3
    s_cbranch_scc0 k_back
    s_cmp_eq_u32 s{S_CNT}, 4
    s_cbranch_scc1 k_side4
    s_cmp_eq_u32 s{S_CNT}, 6
    s_cbranch_scc1 k_side6
    v_mov_b32 v{z}, 0
    v_lshrrev_b32 v{z+1}, 1, v0
    v_lshlrev_b32 v{z+1}, 3, v{z+1}
    v_and_or_b32 v{z+1}, v0, 1, v{z+1}
    v_lshlrev_b32 v{z+1}, 4, v{z+1}
    buffer_load_dword v{V_PL}, v{z}, {sr(SRD_M,4)}, 0 offen {SC}
    s_branch k_back
    k_side4:
    s_waitcnt vmcnt(7)''')
    spin(a, z, sr(SRD_M, 4), 0, 1, True)
    flag(a, 3)
    a(f'''s_branch k_back
    k_side6:
    s_mov_b32 s99, {WS_F0}
    buffer_load_dwordx4 {vr(z+2,4)}, v{z+1}, {WSR}, s99 offen {SC}
    k_back:
    s_cmp_eq_u32 s{S_P}, 0
    s_cbranch_scc1 k_l0
    s_branch k_l1
    k_tail:''')
    stamp(a, 15, prof)
    s4_setup(a)
    u = V_T + 16
    a(f'''
    s_and_b32 s{S_T0}, s{S_W}, 3
    s_lshl_b32 s{S_T2}, s{S_LC0}, 2
    s_add_u32 s{S_T2}, s{S_T2}, s{S_T0}
    s_mul_i32 s{S_T2}, s{S_T2}, {4*PS}
    s_lshl_b32 s{S_T3}, s{S_MB}, 10
    s_add_u32 s{S_T2}, s{S_T2}, s{S_T3}
    s_lshl_b32 s{S_T3}, s{S_P}, 9
    s_add_u32 s{S_T2}, s{S_T2}, s{S_T3}
    v_lshrrev_b32 v{u}, 4, v0
    v_mul_u32_u24 v{u}, {PS}, v{u}
    v_and_b32 v{u+1}, 15, v0
    v_lshl_add_u32 v{u}, v{u+1}, 4, v{u}
    s_cmp_lt_u32 s{S_LC0}, 10
    s_cselect_b32 s{S_T3}, {hex(f2u(20 ** -0.5 * LOG2E))}, 1.0
    ''')
    a(f's_and_b32 s98, s{S_J}, 7\ns_cmp_eq_u32 s98, 1\ns_cselect_b32 s{S_T2}, 0x40000000, s{S_T2}')
    a(w_next())
    a(f'''s_cmp_eq_u32 s{S_W}, 3
    s_cbranch_scc0 k_rdy
    s_waitcnt vmcnt(12)
    s_mov_b32 s98, 0
    s_mov_b32 s99, {WS_F0}
    k_rdl:
    v_and_b32 v{z+2}, v{z+2}, v{z+3}
    v_and_b32 v{z+4}, v{z+4}, v{z+5}
    v_and_b32 v{z+2}, v{z+2}, v{z+4}
    v_cmp_ne_u32 vcc, 1, v{z+2}
    s_add_u32 s98, s98, 1
    s_cbranch_vccz k_rdy
    buffer_load_dwordx4 {vr(z+2,4)}, v{z+1}, {WSR}, s99 offen {SC}
    s_waitcnt vmcnt(0)
    s_cmp_lt_u32 s98, 0x40000
    s_cbranch_scc1 k_rdl
    k_rdy:''')
    a(f's_cmp_eq_u32 s{S_P}, 0\ns_cbranch_scc1 k_todd0\ns_branch k_todd1')
    def w2touch(L='k_not'):
        a(f'''
        s_and_b32 s62, s{Q_MT}, 7
        s_lshl_b32 s62, s62, 3
        s_add_u32 s62, s62, s{S_W}
        s_cmp_lt_u32 s62, 48
        s_cbranch_scc0 {L}
        s_lshl_b32 s62, s62, 3
        s_add_u32 s62, s62, s{Q_N}
        s_mul_i32 s62, s62, 5120
        s_add_u32 s62, s62, {WS_W2 + 20*40*1024}
        v_lshlrev_b32 v{V_PF}, 7, v0
        s_mov_b32 exec_hi, 0xff
        buffer_load_dword v{V_PD}, v{V_PF}, {WSR}, s62 offen {SC}
        s_mov_b32 exec_hi, -1
        {L}:''')
    for P in (1, 0):
        a(f'k_teven{P}:')
        step(0, 5 if P == 0 else None, w2dyn if P == 0 else [], '' if P == 0 else w_next())
        a(f's_cmp_eq_u32 s{S_CNT}, 9\ns_cbranch_scc1 k_s1e\nk_todd{P}:')
        step(1, 10 if P == 0 else 5, w2dyn if P == 1 else [], '' if P == 1 else w_next())
        if OPT & {'wt7', 'wt8'}:
            a(f's_cmp_eq_u32 s{S_CNT}, {7 if "wt7" in OPT else 8}\ns_cbranch_scc0 k_not{P}')
            w2touch(f'k_not{P}')
        a(f's_add_u32 s{S_CNT}, s{S_CNT}, 1\ns_branch k_teven{P}')
    HP = 'sc1 nt' if 'hnt' in OPT else 'sc0 sc1' if 'h01' in OPT else SC
    QP = 'sc1 nt' if 'qnt' in OPT else 'sc0 sc1' if 'q01' in OPT else SC
    def qkv_tile(c, scale):
        o = [f's_add_u32 s{S_T2}, s{S_T2}, {16*PS}'] if c else []
        for tp in range(2):
            d = u + 4 + 4 * tp + 8 * (c & 1)
            for tt in range(2):
                b = acc(c, 2 * tp + tt)
                if scale: o += [f'v_mul_f32 v{b+r}, s{S_T3}, v{b+r}' for r in range(4)]
                o += [f'v_cvt_pk_bf16_f32 v{d+2*tt}, v{b}, v{b+1}', f'v_cvt_pk_bf16_f32 v{d+2*tt+1}, v{b+2}, v{b+3}']
            o.append(f'buffer_store_dwordx4 {vr(d,4)}, v{u}, {WSR}, s{S_T2} offen offset:{256*tp} {QP}')
        return o
    def last(order, fill):
        slots = [[] for _ in range(20)]
        for s0, n, ls in fill:
            for i, l in enumerate(ls): slots[s0 + (i * n) // len(ls)].append(l)
        for (c, tt), sl in zip(order, slots):
            a(f'v_mfma_f32_16x16x32_bf16 {vr(acc(c,tt),4)}, {vr(wfr(1,c),4)}, {vr(xfr(1,tt),4)}, {vr(acc(c,tt),4)}')
            for l in sl: a(l)
        stamp(a, 3, prof)
    a(f'k_s1e:\ns_waitcnt lgkmcnt(0)\ns_barrier\ns_cmp_eq_u32 s{S_P}, 0\ns_cbranch_scc1 k_ls0')
    for l in w2dyn: a(l)
    a(f'k_ls0:\ns_cmp_lt_u32 s{S_J}, 12\ns_cbranch_scc1 k_eg')
    last([(c, tt) for c in range(5) for tt in range(4)], [(8 + 4 * c, 4, qkv_tile(c, False)) for c in range(3)])
    for l in qkv_tile(3, False) + qkv_tile(4, False): a(l)
    a('s_branch k_ef\nk_eg:')
    last([(0, tt) for tt in range(4)] + [(c, tt) for tt in range(4) for c in range(1, 5)], [(8, 8, qkv_tile(0, True))])
    a(f'''
    s_mov_b32 s{S_T3}, {hex(f2u(-LOG2E))}
    ''')
    a(f'''
    s_lshl_b32 s{Q_HO}, s{S_MB}, 1
    s_add_u32 s{Q_HO}, s{Q_HO}, s{S_P}
    s_mul_i32 s{Q_HO}, s{Q_HO}, {4*68}
    s_lshl_b32 s{S_T2}, s{S_J}, 2
    s_add_u32 s{Q_HO}, s{Q_HO}, s{S_T2}
    s_add_u32 s{Q_HO}, s{Q_HO}, s{S_T0}
    s_lshl_b32 s{Q_HO}, s{Q_HO}, 10
    s_add_u32 s{Q_HO}, s{Q_HO}, {WS_A2}
    ''')
    e = 104
    def hst(tt): a(f'buffer_store_dwordx4 {vr(V_H+4*tt,4)}, v{V_L16}, {WSR}, s{Q_HO} offen {HP}\ns_add_u32 s{Q_HO}, s{Q_HO}, {68*1024}')
    def htile(tt, st=True):
        idx = [(c, r) for c in range(2) for r in range(4)]
        for k, (c, r) in enumerate(idx): a(f'v_mul_f32 v{e+k}, s{S_T3}, v{acc(1+c,tt)+r}')
        for k in range(8): a(f'v_exp_f32 v{e+k}, v{e+k}')
        for k, (c, r) in enumerate(idx):
            a(f'v_mul_f32 v{acc(1+c,tt)+r}, v{acc(1+c,tt)+r}, v{acc(3+c,tt)+r}\nv_add_f32 v{e+k}, 1.0, v{e+k}')
        for k in range(8): a(f'v_rcp_f32 v{e+k}, v{e+k}')
        a('s_nop 0')
        for k, (c, r) in enumerate(idx): a(f'v_mul_f32 v{e+k}, v{e+k}, v{acc(1+c,tt)+r}')
        for k in range(4): a(f'v_cvt_pk_bf16_f32 v{V_H+4*tt+k}, v{e+2*k}, v{e+2*k+1}')
        if st: hst(tt)
    HS = ([int(o[2]) for o in OPT if o[:2] == 'hs'] + [1])[0]
    for tt in range(HS): htile(tt, False)
    st3.LB = 5 * SLOT
    p = 130
    a('k_ef:')
    st3.ids(a)
    a(f'''
    s_mov_b32 s99, {WS_F1}
    s_waitcnt vmcnt(0)
    s_barrier
    s_cmp_eq_u32 s{S_W}, 0
    s_cbranch_scc0 k_f1''')
    flag(a, 2)
    a('k_f1:')
    stamp(a, 4, prof)
    a(w_next())
    st3.loads_pre(a)
    def hstores():
        for tt in range(4):
            a(f'buffer_store_dwordx4 {vr(V_H+4*tt,4)}, v{V_L16}, {WSR}, s{Q_HO} offen {SC}')
            if tt < 3: a(f's_add_u32 s{Q_HO}, s{Q_HO}, {68*1024}')
    a(f's_cmp_lt_u32 s{Q_J}, 12\ns_cbranch_scc0 k_nh0')
    for tt in range(HS): hst(tt)
    for tt in range(HS, 4): htile(tt)
    HL = 'hl' in OPT
    if 'hend' in OPT: hstores()
    a('k_nh0:')
    H_, QB_ = st3.S_H, st3.S_QB
    a(f'''
    s_and_b32 s62, s{S_W}, 3
    s_lshl_b32 s63, s{QB_}, 1
    s_add_u32 s64, s63, s62
    s_sub_u32 s64, s64, 2
    s_cselect_b32 s64, s62, s64
    s_lshl_b32 s64, s64, 4
    s_lshr_b32 s62, s{H_}, 4
    s_add_u32 s64, s64, s62
    s_add_u32 s64, s64, 12
    v_mov_b32 v{p}, s64
    s_add_u32 s64, s64, 2
    v_writelane_b32 v{p}, s64, 1
    s_add_u32 s63, s63, s{S_P}
    s_lshl_b32 s63, s63, 4
    s_mul_i32 s62, s{H_}, 20''')
    for k in range(2):
        a(f'''
        s_lshr_b32 s64, s62, 6
        s_min_u32 s65, s64, 1
        s_add_u32 s65, s65, s64
        s_lshr_b32 s64, s64, 3
        s_add_u32 s65, s65, s64
        s_add_u32 s65, s65, s63
        v_writelane_b32 v{p}, s65, {2+k}
        s_add_u32 s62, s62, 19''')
    a(f'v_lshlrev_b32 v{p}, {FS}, v{p}')
    if 'wt1' in OPT: w2touch()
    a(f'buffer_load_dword v{V_PL}, v{p}, {WSR}, s99 offen {SC}')
    st3.setup(a)
    F2L = 'f2l' in OPT or 'hkv' in OPT
    def f2():
        a(f's_cmp_eq_u32 s{S_W}, 2\ns_cbranch_scc0 k_f2')
        flag(a, 0)
        a('k_f2:')
    a('s_waitcnt vmcnt(0)')
    if not F2L: a('s_barrier'); f2()
    if 'hkv' in OPT:
        a(f'v_cmp_ne_u32 vcc, 1, v{V_PL}\ns_cbranch_vccz k_hk1\ns_cmp_lt_u32 s{Q_J}, 12\ns_cbranch_scc0 k_hk0\ns_mov_b32 s{Q_J}, 12')
        hstores()
        a('k_hk0:')
        spin(a, p, WSR, 's99', 1)
        a('k_hk1:')
    else: spin(a, p, WSR, 's99', 1, True)
    stamp(a, 5, prof)
    st3.loads(a, SC)
    if 'hkv' in OPT:
        a(f's_cmp_lt_u32 s{Q_J}, 12\ns_cbranch_scc0 k_hk2')
        hstores()
        a('k_hk2:')
    a(f's_lshr_b32 s99, s{Q_MT}, 1\ns_lshl_b32 s99, s99, {F2S+FM}\ns_add_u32 s99, s99, {WS_F2}\nv_and_b32 v{V_L4}, 15, v0\nv_lshlrev_b32 v{V_L4}, {F2S}, v{V_L4}')
    pre = {0: [0, 1], 1: [2, 3], 2: [4, 10], 3: [5, 6], 4: [7, 11], 5: [8, 9]}
    if 'pb' in OPT: pre = {-1: [0, 1], 0: [2, 3], 1: [4, 10], 2: [5, 11], 3: [6], 4: [7], 5: [8, 9]}
    if 'pc' in OPT: pre = {1: [0, 1], 2: [2, 3], 3: [4, 5], 4: [6, 7], 5: [8, 9], 6: [10, 11]}
    if 'pd' in OPT: pre = {2: [0, 1, 2], 3: [3, 4, 5], 4: [6, 7], 5: [8, 9], 6: [10, 11]}
    if 'pe' in OPT: pre = {3: [0, 1, 2], 4: [3, 4, 5], 5: [6, 7, 8], 6: [9, 10, 11]}
    if 'pg' in OPT: pre = {4: [0, 1, 2], 5: [3, 4, 5], 6: [6, 7]}
    if 'pm' in OPT: pre = {-1.5: [0, 1], -1: [2, 3], 0: [10], 1: [4, 11], 2: [5], 3: [6], 4: [7], 5: [8], 6: [9]}
    if not OPT & {'pa', 'pb', 'pc', 'pm'}: pre = {-1.5: [0, 1], -1: [2, 3], 0: [10, 4], 1: [11], 2: [5], 3: [6], 4: [7], 5: [8, 9]}
    TC = min(pre)
    NPRE = sum(len(v) for v in pre.values())
    def hook(x):
        if 'wt2' in OPT and x == -2: w2touch()
        if 'wt3' in OPT and x == 6: w2touch(); a.vm.append(None); a.vm.pop()
        if HL and x == -2:
            a(f's_cmp_lt_u32 s{Q_J}, 12\ns_cbranch_scc0 k_hl0')
            hstores()
            a('k_hl0:')
        if HL and x == -3:
            a(f's_cmp_lt_u32 s{Q_J}, 12\ns_cbranch_scc1 k_hl1\ns_waitcnt vmcnt(0)\nk_hl1:\ns_waitcnt vmcnt(4)')
            return True
        if HL and x == (1 if 'hf1' in OPT else 0):
            a('s_waitcnt vmcnt(0)'); flag(a, 0)
        if 'noprio' not in OPT:
            if x == -2: a(f's_cmp_eq_u32 s{S_P}, 0\ns_cbranch_scc1 k_pr0\ns_setprio 1\nk_pr0:')
            if x == (2 if 'pr2' in OPT else 3 if 'pr3' in OPT else 1): a('s_setprio 0')
        if x == max(-2, TC - 1):
            a(f'buffer_load_dword v{V_PL}, v{V_L4}, {WSR}, s99 offen {SC}')
        if x == TC:
            a('s_waitcnt vmcnt(0)')
            spin(a, V_L4, WSR, 's99', 1, True)
        g_ = []
        for r in pre.get(x, []): g_ += issue_a(r)
        for s_, tag in g_: a.vm.append(tag)
        return [s_ for s_, tag in g_]
    st3.compute(a, prof, SC, hook)
    srd(a, SRD_O, S_OUT, 2048 * 1280)
    a4 = lambda f, t_: V4_ACC + (f * 2 + t_) * 4
    a(f'''v_and_b32 v2, 15, v0
    v_lshrrev_b32 v3, 4, v0
    v_mul_u32_u24 v3, {PS}, v3
    v_lshl_add_u32 v4, v2, 4, v3
    v_lshrrev_b32 v2, 4, v0
    v_lshlrev_b32 v2, 7, v2
    ''')
    if WF: a(f'v_and_b32 v3, 31, v0\nv_lshlrev_b32 v3, 2, v3\ns_add_u32 s99, s{Q_G}, {WS_F3}')
    elif F3S: a(f'v_and_b32 v3, 31, v0\nv_lshlrev_b32 v3, 7, v3\ns_lshr_b32 s99, s{Q_MT}, 2\ns_lshl_b32 s99, s99, 12\ns_add_u32 s99, s99, {WS_F1 + 8}')
    else: a(f'v_bfe_u32 v3, v0, 3, 2\nv_lshlrev_b32 v3, 5, v3\nv_and_or_b32 v3, v0, 7, v3\nv_lshlrev_b32 v3, 2, v3\ns_lshr_b32 s99, s{Q_MT}, 2\ns_lshl_b32 s99, s99, 9\ns_add_u32 s99, s99, {WS_F3}')
    a(f'''
    s_mul_i32 s{Q_O}, s{Q0}, {4*PS}
    s_add_u32 s{Q_O}, s{Q_O}, s{Q_G}
    s_lshl_b32 s{Q_O}, s{Q_O}, 1
    s_add_u32 s{Q_O}, s{Q_O}, {WS_O - 12*32*PS}
    s_lshl_b32 s{Q_G}, s{Q_G}, 2
    s_add_u32 s{Q_G}, s{Q_G}, {WS_G}''')
    G8 = 122

    def rds(r):
        sl = r % NS
        return [f'ds_read_b128 {vr(V4_F+20*(r&1)+4*f,4)}, v{[V_RA,V_RA2,V_RA3][sl//3]} offset:{(sl%3)*SLOT+f*1024}' for f in range(5)]
    for l in rds(0): a(l)
    t = 5
    RED = SLOT; SE = 272; SF = 2368; SW = 5 * SF
    a(f'''
    v_mul_u32_u24 v{t+1}, 26, v0
    v_lshrrev_b32 v{t+1}, 8, v{t+1}
    v_mul_u32_u24 v{t+2}, 10, v{t+1}
    v_sub_u32 v{t+2}, v0, v{t+2}
    v_mul_u32_u24 v{t+3}, {SE}, v{t+1}
    v_lshrrev_b32 v{t+4}, 1, v{t+2}
    v_mul_u32_u24 v{t+4}, {SF-64}, v{t+4}
    v_lshl_add_u32 v{t+3}, v{t+2}, 5, v{t+3}
    s_mul_i32 s{Q2}, s{S_P}, {4*SW}
    s_lshl_b32 s{Q3}, s{Q0}, 6
    s_add_u32 s{Q2}, s{Q2}, s{Q3}
    s_add_u32 s{Q2}, s{Q2}, {RED}
    v_add3_u32 v{t+3}, v{t+3}, v{t+4}, s{Q2}
    v_mul_u32_u24 v{t+1}, 1280, v{t+1}
    v_lshl_add_u32 v{t+1}, v{t+2}, 4, v{t+1}
    s_lshl_b32 s{Q_HO}, s{Q_MT}, 3
    s_add_u32 s{Q_HO}, s{Q_HO}, s{S_W}
    s_mul_i32 s{Q_HO}, s{Q_HO}, {8*1280}
    s_mul_i32 s{Q3}, s{Q_N}, 160
    s_add_u32 s{Q_HO}, s{Q_HO}, s{Q3}
    s_add_u32 s{Q3}, s{Q_HO}, {4*1280}
    ''')
    RF = 2 if 'rf2' in OPT else 0 if 'rf0' in OPT else 1
    RP = 7 if 'rp7' in OPT else 8 if 'rp8' in OPT else 9
    assert NPRE == 12
    Wg = lambda g: issue_w(f'w{4+2*g}') + [(w_next(), None)]
    stream = Wg(0) + Wg(1) + Wg(2) + Wg(3) + Wg(4) + issue_a(12) + issue_a(13) + issue_a(14) + Wg(5) + issue_a(15) + issue_a(16)
    quota = {'qa': [4, 3, 3, 3, 3, 3, 3, 3, 4, 4, 4, 3], 'qb': [3, 3, 3, 3, 3, 3, 3, 2, 2, 4, 4, 3, 4], 'qc': [4, 4, 4, 4, 3, 3, 3, 4, 4, 4, 3],
             'qd': [4, 3, 3, 3, 3, 3, 3, 3, 3, 3, 3, 3, 3], 'qe': [3, 3, 3, 3, 3, 3, 3, 2, 2, 3, 3, 3, 3, 3]}[([o for o in OPT if o in ('qd', 'qa', 'qe')] + ['qb'])[0]] + [0] * 8
    RP = [r for r in range(17) if sum(quota[:r + 1]) > 25][0]
    assert sum(quota[:RP]) == 25 and sum(quota) == 40
    for r in range(17):
        need = [f'a{r}'] + (['g'] if r == 12 else []) + (['f3'] if r == RP else []) + (['ost'] if r == RF else [])
        if r % 2 == 0: need.append(f'w{r}')
        a.vmwait(need, 'lgkmcnt(0)')
        if r == RF and WF: flag(a, 1); a.vm.append('fl')
        if (r % 2 == 0 and r < 16) or r == RF: a('s_barrier')
        if r == RF and not WF:
            a(f's_cmp_eq_u32 s{S_W}, 0\ns_cbranch_scc0 k_f3')
            flag(a, 1)
            a('k_f3:')
        if r in (0, 4, 9, 12): stamp(a, {0: 8, 4: 11, 9: 12, 12: 13}[r], prof)
        if r == RP: spin(a, 3, WSR, 's99', 1, True)
        if r == 12:
            for i in range(8): a(f'v_sub_f32 v{G8+i}, 1.0, v{G8+i}')
            for f in range(5):
                for t_ in range(2):
                    for i in range(4): a(f'v_mul_f32 v{a4(f,t_)+i}, v{G8+2*i+t_}, v{a4(f,t_)+i}')
        if r >= 12: a(f'v_swap_b32 v{AREG[r]+2}, v{AREG[r]+4}\nv_swap_b32 v{AREG[r]+3}, v{AREG[r]+5}\ns_nop 1')
        mf = [f'v_mfma_f32_16x16x32_bf16 {vr(a4(f,t_),4)}, {vr(AREG[r]+4*t_,4)}, {vr(V4_F+20*(r&1)+4*f,4)}, ' + ('0' if r == 0 else vr(a4(f, t_), 4)) for f in range(5) for t_ in range(2)]
        iss = []
        if r == RP - (1 if 'pd1' in OPT else 2): iss.append((f'buffer_load_dword v{V_PL}, v3, {WSR}, s99 offen {SC}', 'f3'))
        if r in (7, 8): iss.append((f'buffer_load_dwordx4 {vr(G8+4*(r-7),4)}, v2, {WSR}, s{Q_G} offen offset:{16*(r-7)} {SC}', 'g'))
        n_ = quota[r]
        while n_ > 0 and stream:
            it = stream.pop(0); iss.append(it)
            if it[1]: n_ -= 1
        if stream and stream[0][1] is None: iss.append(stream.pop(0))
        for s_, tag in iss:
            if tag: a.vm.append(tag)
        slots = [[] for _ in range(10)]
        if r < 16:
            for i, l in enumerate(rds(r + 1)): slots[i].append(l)
        n = len(iss)
        for i, (s_, tag) in enumerate(iss): slots[(i * 10) // n if n > 4 else 1 + 2 * i].append(s_)
        if r == 16: slots[0].append(f's_mul_i32 s{Q2}, s{Q0}, {SW}\ns_add_u32 m0, s{Q2}, {RED}\ns_cmp_eq_u32 s{S_P}, 0')
        for m_, sl in zip(mf, slots):
            a(m_)
            for l in sl: a(l)
    a('s_cbranch_scc1 k_rw0')
    for P in (1, 0):
        if P == 0: a('k_rw0:')
        for f in range(5):
            for tt in range(2):
                for i in range(4): a(f'ds_write_addtid_b32 v{a4(f,tt)+i} offset:{P*4*SW+f*SF+(2*i+tt)*SE}')
        if P == 1: a('s_branch k_rw1')
    a('k_rw1:')
    stamp(a, 9, prof)
    a('s_waitcnt lgkmcnt(0)\ns_barrier\ns_mov_b32 exec_hi, 0xff')
    R = 26
    for ps in range(2):
        for kq in range(4):
            for h in range(2):
                if ps == 1 and kq == 3 and h == 1: a('s_waitcnt lgkmcnt(14)')
                a(f'ds_read_b128 {vr(R+32*ps+8*kq+4*h,4)}, v{t+3} offset:{kq*SW+ps*4*SE+h*16}')
    for ps in range(2):
        b = R + 32 * ps
        a(f's_waitcnt lgkmcnt({8 if ps == 0 else 0})')
        for i in range(8): a(f'v_add_f32 v{b+i}, v{b+i}, v{b+8+i}\nv_add_f32 v{b+16+i}, v{b+16+i}, v{b+24+i}')
        for i in range(8): a(f'v_add_f32 v{b+i}, v{b+i}, v{b+16+i}')
        for k in range(4): a(f'v_cvt_pk_bf16_f32 v{b+8+k}, v{b+2*k}, v{b+2*k+1}')
        a(f'buffer_store_dwordx4 {vr(b+8,4)}, v{t+1}, {sr(SRD_O,4)}, s{Q_HO if ps == 0 else Q3} offen' + (' sc1' if 'osc' in OPT else ' nt' if 'ont' in OPT else ''))
    a('s_mov_b64 exec, -1')
    stamp(a, 10, prof)
    stamp_flush(a, prof, 0)
    if 'fix' in OPT: a('k_fix:\ns_memrealtime s[98:99]\ns_waitcnt lgkmcnt(0)\ns_sub_u32 s98, s98, s100\ns_cmp_lt_u32 s98, 6000\ns_cbranch_scc1 k_fix')
    a('k_end:\ns_endpgm')
    ref = open('gated_mix__sliding_block__swiglu_ffn__prompt.s.ref').read()
    hdr = ref.split('; Override')[0]
    s = hdr + '; @launch grid=(256,1,1) block=(512,1,1) lds=163840\n.amdgcn_target "amdgcn-amd-amdhsa--gfx950"\n.text\n'
    s += f'.globl {NAME}\n.p2align 8\n.type {NAME},@function\n{NAME}:\n' + a.text()
    s += ref[ref.index('.section .rodata'):]
    return s
if __name__ == '__main__':
    open('gated_mix__sliding_block__swiglu_ffn__prompt.s', 'w').write(build())
    open('prof.s', 'w').write(build(True))
    for o in sys.argv[1:]:
        OPT.clear(); OPT.update(o.split('+'))
        open(f'prof_{o}.s', 'w').write(build(True))
        open(f'v_{o}.s', 'w').write(build(False))
```

```python
import sys, struct
from base import *
import st1, st3
from st1 import *
NAME = 'gated_mix__sliding_block__swiglu_ffn__prompt_kernel'
SC = 'sc1'
WS_F1, WS_F2, WS_F3, WS_F0 = 0x1510000, 0x1512000, 0x1514000, 0x1515000
S_P = 27
V_L16, V_FLG, V_ONE, V_PL, V_L4, V_RA, V_RA2, V_RA3, V_G1 = 244, 245, 246, 247, 248, 249, 250, 251, 242
V_H = 210
Q_MT, Q_N, Q0, Q1, Q2, Q3, Q_A0, Q_A1, Q_WO, Q_WL, Q_RH, Q_RO, Q_R, Q_PR, Q_HO, Q_J, Q_G, Q_O, Q_WA, Q_WM = range(32, 52)
SRD_O = 28
SLOT = 20480; NS = 8
WSR = sr(SRD_WS, 4)
uid = [0]
DOC = '''; One persistent launch, 256 workgroups (one per CU, all co-resident) x 8 waves; written by gen/fused.py (hand-written generator).
;  stage 1: [q|k|v|gate|up] = x @ W, 128x320 tile per workgroup, LDS-DMA ring, 16x16x32 MFMA; q/k/v -> d_ws planes, h = silu(gate)*up -> d_ws
;           side jobs: g = sigmoid(x.gate_w), repack of [w_down; wo] into MFMA fragment order
;  stage 2: sliding-window attention per (head, 256 queries): true row max (pass 1), exp2 + PV (pass 2), o * g / l -> d_ws
;  stage 3: out = (1-g) * (h @ w_down) + (g o) @ wo, 64x80 tile, K split over 4 wave pairs, LDS reduction
;  hand-offs: write-through (sc1) stores, vmcnt(0), barrier, one sc1 flag word in d_ws; readers poll and load with sc1.
;  workgroup 0 clears the flag words and announces that through d_debug[0]; no flag is set or read before that word is seen.
'''

def spin(a, vaddr, srd_, soff, expect, first_issued=False):
    uid[0] += 1; L = f'spin{uid[0]}'
    a('s_mov_b32 s98, 0')
    if first_issued: a(f's_branch {L}c')
    a(f'''{L}:
    buffer_load_dword v{V_PL}, v{vaddr}, {srd_}, {soff} offen {SC}
    s_waitcnt vmcnt(0)
    {L}c:
    v_cmp_ne_u32 vcc, {expect}, v{V_PL}
    s_add_u32 s98, s98, 1
    s_cbranch_vccz {L}d
    s_cmp_lt_u32 s98, 0x40000
    s_cbranch_scc1 {L}
    {L}d:''')
def flag(a, lane):
    a(f's_mov_b64 exec, {1 << lane}\nbuffer_store_dword v{V_ONE}, v{V_FLG}, {WSR}, 0 offen {SC}\ns_mov_b64 exec, -1')

def s4_setup(a):
    a(f'''
    s_and_b32 s{Q0}, s2, 7
    s_lshr_b32 s{Q1}, s2, 3
    s_lshr_b32 s{Q_MT}, s{Q0}, 1
    s_lshl_b32 s{Q_MT}, s{Q_MT}, 3
    s_and_b32 s{Q2}, s{Q1}, 7
    s_add_u32 s{Q_MT}, s{Q_MT}, s{Q2}
    s_and_b32 s{Q_N}, s{Q0}, 1
    s_lshl_b32 s{Q_N}, s{Q_N}, 2
    s_lshr_b32 s{Q1}, s{Q1}, 3
    s_add_u32 s{Q_N}, s{Q_N}, s{Q1}
    s_and_b32 s{Q0}, s{S_W}, 3
    s_lshl_b32 s{Q2}, s{Q_MT}, 1
    s_add_u32 s{Q2}, s{Q2}, s{S_P}
    s_lshl_b32 s{Q_G}, s{Q2}, 7
    s_mul_i32 s{Q_A0}, s{Q2}, {2*68}
    s_add_u32 s{Q_A0}, s{Q_A0}, s{Q0}
    s_lshl_b32 s{Q_A0}, s{Q_A0}, 10
    s_add_u32 s{Q_A0}, s{Q_A0}, {WS_A2}
    s_lshl_b32 s{Q2}, s{Q0}, 3
    s_add_u32 s{Q2}, s{Q2}, s{Q_N}
    s_mul_i32 s{Q_WO}, s{Q2}, 5120
    s_add_u32 s{Q_WO}, s{Q_WO}, {WS_W2}
    s_mul_i32 s{Q_WL}, s{Q0}, 5120
    s_xor_b32 s{Q_PR}, s{S_P}, 1
    s_mov_b32 s{Q_J}, s{S_J}
    v_add_u32 v{V_RA}, s{Q_WL}, v{V_L16}
    v_add_u32 v{V_RA2}, {3*SLOT}, v{V_RA}
    v_add_u32 v{V_RA3}, {6*SLOT}, v{V_RA}
    ''')
def rot(r):
    if r < 12: return f's_add_u32 s{Q_R}, s{Q_RH}, {r}\ns_cmp_ge_u32 s{Q_R}, 12\ns_cselect_b32 s{Q2}, 12, 0\ns_sub_u32 s{Q_R}, s{Q_R}, s{Q2}\n'
    return f's_add_u32 s{Q_R}, s{Q_RO}, {r}\ns_cmp_ge_u32 s{Q_R}, 17\ns_cselect_b32 s{Q2}, 5, 0\ns_sub_u32 s{Q_R}, s{Q_R}, s{Q2}\n'
def issue_w(tag):
    g = []
    for f in range(5):
        pre = ''
        if f == 0: pre = f's_mov_b32 m0, s{Q_WM}\ns_add_u32 s{Q_PR}, s{Q_PR}, 2\n'
        if f == 4: pre = f's_add_u32 m0, m0, 4096\ns_add_u32 s{Q_WA}, s{Q_WA}, 4096\n'
        g.append((pre + f'buffer_load_dwordx4 v{V_L16}, {WSR}, s{Q_WA} offen offset:{(f&3)*1024} {SC} lds', tag))
    return g
def w_next():
    return f'''s_mul_i32 s{Q_WA}, s{Q_PR}, {160*1024}
    s_add_u32 s{Q_WA}, s{Q_WA}, s{Q_WO}
    s_and_b32 s{Q_WM}, s{Q_PR}, 7
    s_mul_i32 s{Q_WM}, s{Q_WM}, {SLOT}
    s_add_u32 s{Q_WM}, s{Q_WM}, s{Q_WL}'''
AREG = [210 + 8 * r for r in range(4)] + [26 + 8 * r for r in range(7)] + [14] + [82 + 8 * r for r in range(5)]
V4_ACC = 130; V4_F = 170
def issue_a(r):
    g = []
    for t in range(2):
        if r >= 12: g.append((f's_add_u32 s{Q2}, s{Q_O}, {(32*r+4*t)*PS}\nbuffer_load_dwordx4 {vr(AREG[r]+4*t,4)}, v4, {WSR}, s{Q2} offen {SC}', f'a{r}'))
        else: g.append((f's_add_u32 s{Q2}, s{Q_A0}, {r*4096+t*68*1024}\nbuffer_load_dwordx4 {vr(AREG[r]+4*t,4)}, v{V_L16}, {WSR}, s{Q2} offen {SC}', f'a{r}'))
    return g

def build(prof=False):
    uid[0] = 0
    global WS_F2, WS_F3, WS_F0
    FS = 7
    F2S = 5
    WS_F2 = WS_F1 + (256 << FS); WS_F3 = WS_F2 + 0x2000; WS_F0 = WS_F3 + 0x1000
    if 'f2s' in OPT:
        F2S = 7; WS_F3 = WS_F2; WS_F0 = WS_F3 + 0x1000; WS_F2 = WS_F1 + 4
    NCL = (WS_F0 + 0x1000 - WS_F1) // 8192
    F3S = False
    config(5)
    XB, RB = st1.XBASE, st1.RBASE
    a = Asm(); name = 'k'
    common_entry(a, name)
    stamp(a, 0, prof)
    if 'fix' in OPT: a('s_memrealtime s[100:101]')
    t = V_T
    a(f'''
    s_and_b32 s{S_T0}, s2, 7
    s_lshr_b32 s{S_T1}, s2, 3
    s_and_b32 s{S_MB}, s{S_T0}, 1
    s_lshl_b32 s{S_MB}, s{S_MB}, 3
    s_and_b32 s{S_T2}, s{S_T1}, 7
    s_add_u32 s{S_MB}, s{S_MB}, s{S_T2}
    s_lshr_b32 s{S_J}, s{S_T0}, 1
    s_lshr_b32 s{S_T1}, s{S_T1}, 3
    s_add_u32 s{S_XM}, s{S_T1}, s{S_T2}
    ''')
    if 'rot' in OPT:
        a(f'''s_add_u32 s{S_XM}, s{S_XM}, s{S_T1}
        s_and_b32 s{S_XM}, s{S_XM}, 7
        s_mul_i32 s{S_XM}, s{S_XM}, 5
        s_lshr_b32 s{S_XM}, s{S_XM}, 2
        s_mov_b32 s{S_CW}, s{S_XM}
        s_mov_b32 s{S_CX}, s{S_XM}''')
    else:
        a(f'''s_and_b32 s{S_XM}, s{S_XM}, {0 if 'x0' in OPT else 3 if 'x3' in OPT else 1}
        s_mov_b32 s{S_CW}, 0
        s_mov_b32 s{S_CX}, 0''')
    a(f'''
    s_lshl_b32 s{S_J if 'map2' in OPT else S_T1}, s{S_J if 'map2' in OPT else S_T1}, 2
    s_add_u32 s{S_J}, s{S_J}, s{S_T1}
    s_mul_i32 s{S_T0}, s{S_J}, 5
    s_sub_u32 s{S_T0}, s{S_T0}, 50
    s_add_u32 s{S_LC0}, s{S_J}, 6
    s_lshr_b32 s{S_LC0}, s{S_LC0}, 3
    s_sub_u32 s{S_LC0}, s{S_J}, s{S_LC0}
    s_cmp_lt_u32 s{S_J}, 12
    s_cselect_b32 s{S_LC0}, s{S_LC0}, s{S_T0}
    s_mov_b32 s{S_STW0}, 3840
    s_cselect_b32 s{S_STW1}, 3072, s{S_STW0}
    s_and_b32 s{S_T0}, s{S_W}, 3
    s_lshr_b32 s{S_P}, s{S_W}, 2
    v_lshrrev_b32 v{t}, 3, v0
    v_and_b32 v{t+1}, 7, v0
    v_bfe_u32 v{t+2}, v0, 4, 1
    s_and_b32 s{S_T3}, s{S_W}, 1
    s_lshl_b32 s{S_T2}, s{S_T3}, 1
    v_or_b32 v{t+2}, s{S_T2}, v{t+2}
    v_lshlrev_b32 v{t+2}, 1, v{t+2}
    v_xor_b32 v{t+2}, v{t+2}, v{t+1}
    v_lshlrev_b32 v{t+2}, 4, v{t+2}
    s_lshl_b32 s{S_T2}, s{S_T0}, 3
    v_add_u32 v{t+3}, s{S_T2}, v{t}
    v_mad_u32_u24 v{V_OW0}, v{t+3}, s{S_STW0}, v{t+2}
    v_mad_u32_u24 v{V_OW1}, v{t+3}, s{S_STW1}, v{t+2}
    s_lshr_b32 s{S_T2}, s{S_W}, 1
    s_lshl_b32 s{S_T2}, s{S_T2}, 5
    s_add_u32 s{S_T2}, s{S_T2}, s{S_T3}
    v_lshl_add_u32 v{t+3}, v{t}, 1, s{S_T2}
    v_mul_u32_u24 v{t+3}, 1280, v{t+3}
    v_lshrrev_b32 v{t+4}, 4, v0
    v_xor_b32 v{t+4}, v{t+4}, v{t+1}
    v_lshl_add_u32 v{V_OX0}, v{t+4}, 4, v{t+3}
    v_xor_b32 v{V_OX1}, 64, v{V_OX0}
    v_add_u32 v{V_OX1}, {16*1280}, v{V_OX1}
    s_xor_b32 s{S_T2}, s{S_P}, 1
    s_mul_i32 s{S_WDS}, s{S_T2}, {WSLOT}
    s_lshl_b32 s{S_T3}, s{S_T0}, 10
    s_add_u32 s{S_WDS}, s{S_WDS}, s{S_T3}
    s_lshl_b32 s{S_T2}, s{S_T2}, 5
    s_mul_i32 s{S_WEND0}, s{S_T2}, s{S_STW0}
    s_mul_i32 s{S_WEND1}, s{S_T2}, s{S_STW1}
    s_lshl_b32 s{S_STW0}, s{S_STW0}, 6
    s_lshl_b32 s{S_STW1}, s{S_STW1}, 6
    s_mul_i32 s{S_SW0}, s{S_XM}, s{S_STW0}
    s_mul_i32 s{S_SW1}, s{S_XM}, s{S_STW1}
    s_add_u32 s{S_SW0}, s{S_SW0}, s{S_WEND0}
    s_add_u32 s{S_SW1}, s{S_SW1}, s{S_WEND1}
    s_lshl_b32 s{S_SX}, s{S_XM}, 7
    s_lshl_b32 s{S_XDS}, s{S_W}, 11
    s_add_u32 s{S_XDS}, s{S_XDS}, {XB}
    s_mul_i32 s{S_T2}, s{S_MB}, {128*1280}
    s_lshl_b32 s{S_T3}, s{S_LC0}, 7
    s_waitcnt lgkmcnt(0)
    ''')
    srd(a, SRD_X, S_X, 128 * 1280, f's{S_T2}')
    nq = 639 * 3840 + 128; ng = 639 * 3072 + 128
    srd(a, SRD_W, S_WQKV, nq, f's{S_T3}')
    a(f's_cmp_lt_u32 s{S_J}, 12\ns_cbranch_scc1 k_s1g')
    for c in range(1, 5):
        srd(a, SRD_W + 4 * c, SRD_W, nq, 128 * c)
    sp = 'split' in OPT
    a(f's_branch k_s1h\nk_s1g:\ns_lshl_b32 s{S_T3}, s{S_J}, {7 if sp else 8}')
    srd(a, SRD_W + 4, S_WG, ng, f's{S_T3}')
    srd(a, SRD_W + 8, SRD_W + 4, ng, 1536 if sp else 128)
    srd(a, SRD_W + 12, S_WU, ng, f's{S_T3}')
    srd(a, SRD_W + 16, SRD_W + 12, ng, 1536 if sp else 128)
    a(f's_and_b32 s{S_T3}, s{S_J}, 7\ns_cmp_eq_u32 s{S_T3}, 1\ns_cselect_b32 s{SRD_W+2}, 0, s{SRD_W+2}')
    a('k_s1h:')
    stamp(a, 1, prof)
    def groups(lbl, g1, g0):
        a(f's_cmp_eq_u32 s{S_P}, 0\ns_cbranch_scc1 {lbl}0')
        for grp in g1:
            for g in grp(a): a(g)
        a(f's_branch {lbl}e\n{lbl}0:')
        for grp in g0:
            for g in grp(a): a(g)
        a(f'{lbl}e:')
    PF = 'pf' in OPT
    PFN = int(PF and 'pf0' not in OPT)
    V_PF, V_PD, S_PO, S_PS = 252, 253, 93, 94
    def pf_setup():
        a(f'''
        s_mov_b64 s[96:97], s[{SRD_X}:{SRD_X+1}]
        s_mov_b32 s98, s{SRD_X+2}
        s_mov_b32 s99, 0x20000''')
        for c in range(5):
            b = SRD_W + 4 * c
            a(f's_cmp_eq_u32 s{S_W}, {c}\ns_cselect_b64 s[96:97], s[{b}:{b+1}], s[96:97]\ns_cselect_b32 s98, s{b+2}, s98')
        a(f'''
        s_cmp_eq_u32 s{S_W}, 0
        s_cselect_b32 s{S_PO}, s{S_STW0}, s{S_STW1}
        s_lshr_b32 s78, s{S_PO}, 6
        s_and_b32 s79, s{S_MB}, 7
        s_lshl_b32 s79, s79, 3
        v_lshl_add_u32 v{t+5}, v{t}, 6, v{t+1}
        v_add_u32 v{t+5}, s79, v{t+5}
        v_mul_u32_u24 v{V_PF}, s78, v{t+5}
        v_cmp_le_u32 vcc, 24, v0
        v_mov_b32 v{t+5}, 0x40000000
        s_cmp_lt_u32 s{S_W}, 5
        v_cndmask_b32 v{V_PF}, v{V_PF}, v{t+5}, vcc
        s_cbranch_scc1 k_pfw
        s_lshr_b32 s79, s2, 6
        s_lshl_b32 s79, s79, 5
        v_add_u32 v{t+5}, s79, v0
        s_sub_u32 s79, s{S_W}, 5
        s_lshl_b32 s79, s79, 7
        v_mov_b32 v{V_PF}, s79
        v_mov_b32 v{t+6}, 1280
        v_mad_u32_u24 v{V_PF}, v{t+5}, v{t+6}, v{V_PF}
        s_mov_b32 s{S_PO}, 128
        k_pfw:
        s_mul_i32 s{S_PS}, s{S_PO}, 3''')
    def pf():
        if PF: a(f's_mov_b32 exec_hi, 0\nbuffer_load_dword v{V_PD}, v{V_PF}, s[96:99], s{S_PO} offen\ns_mov_b32 exec_hi, -1\ns_add_u32 s{S_PO}, s{S_PO}, s{S_PS}')
    def slowpf():
        a(f'''
        s_mov_b64 s[96:97], s[{S_X}:{S_X+1}]
        s_mov_b32 s98, {2048*1280}
        s_mov_b32 s99, 0x20000
        s_and_b32 s78, s{S_W}, 3
        s_cmp_eq_u32 s78, 1
        s_cselect_b64 s[96:97], s[{S_WQKV}:{S_WQKV+1}], s[96:97]
        s_cselect_b32 s98, {640*3840}, s98
        s_cmp_eq_u32 s78, 2
        s_cselect_b64 s[96:97], s[{S_WG}:{S_WG+1}], s[96:97]
        s_cselect_b32 s98, {640*3072}, s98
        s_cmp_eq_u32 s78, 3
        s_cselect_b64 s[96:97], s[{S_WU}:{S_WU+1}], s[96:97]
        s_cselect_b32 s98, {640*3072}, s98
        s_lshl_b32 s78, s{S_P}, 8
        s_add_u32 s78, s78, s2
        s_lshl_b32 s78, s78, 10
        v_lshlrev_b32 v{V_PF}, 19, v0
        s_mov_b64 exec, 31
        buffer_load_dword v{V_PD}, v{V_PF}, s[96:99], s78 offen offset:384
        s_mov_b64 exec, -1''')
    def gupf():
        R0 = 0 if 'gr0' in OPT else 128
        nl = (640 - R0) * 24 // 1024
        a(f'''
        s_cmp_eq_u32 s{S_P}, 0
        s_cselect_b64 s[96:97], s[{S_WG}:{S_WG+1}], s[{S_WU}:{S_WU+1}]
        s_mov_b32 s98, {640*3072}
        s_mov_b32 s99, 0x20000
        s_and_b32 s78, s{S_W}, 3
        s_lshl_b32 s78, s78, 8
        s_add_u32 s78, s78, s2
        s_mul_i32 s78, s78, {nl*128}
        s_add_u32 s78, s78, {R0*3072}
        v_lshlrev_b32 v{V_PF}, 7, v0
        s_mov_b64 exec, {hex((1 << nl) - 1)}
        buffer_load_dword v{V_PD}, v{V_PF}, s[96:99], s78 offen
        s_mov_b64 exec, -1''')
    def codepf():
        a(f'''
        s_lshr_b32 s78, s2, 3
        s_cmp_eq_u32 s{S_W}, 7
        s_cselect_b32 s78, s78, 8
        s_cmp_lt_u32 s78, 3
        s_cbranch_scc0 k_nocpf
        s_getpc_b64 s[96:97]
        k_pcref:
        s_lshl_b32 s78, s78, 6
        v_add_u32 v{V_PF}, s78, v0
        v_lshlrev_b32 v{V_PF}, 7, v{V_PF}
        v_min_u32 v{V_PF}, k_end-k_pcref, v{V_PF}
        v_mov_b32 v{V_PF+1}, s97
        v_add_co_u32 v{V_PF}, vcc, s96, v{V_PF}
        s_nop 1
        v_addc_co_u32 v{V_PF+1}, vcc, 0, v{V_PF+1}, vcc
        global_load_dword v{V_PL}, v[{V_PF}:{V_PF+1}], off
        k_nocpf:''')
    if 'cp0' in OPT: codepf()
    if 'gp0' in OPT: gupf()
    if 'sp0' in OPT: slowpf()
    if 'pf0' in OPT: pf_setup(); pf()
    groups('k_pa', (dma_w, dma_x), (dma_x, dma_w))
    if PFN: pf_setup(); pf()
    if 'sp1' in OPT: slowpf(); PFN += 1
    if 'gp1' in OPT: gupf(); PFN += 1
    if 'cp1' in OPT: codepf()
    srd(a, SRD_WS, S_WS, WS_SIZE)
    srd(a, SRD_M, S_GW, 1280)
    a(f'''
    v_lshlrev_b32 v{V_L16}, 4, v0
    v_lshlrev_b32 v{V_L4}, 2, v0
    ''')
    gx, gw = t + 16, t + 22
    a(f'''
    s_lshl_b32 s{S_T2}, s{S_J}, 3
    s_add_u32 s{S_T2}, s{S_T2}, s{S_W}
    s_mul_i32 s{S_T3}, s{S_T2}, 1280
    buffer_load_dwordx4 {vr(gx,4)}, v{V_L16}, {sr(SRD_X,4)}, s{S_T3} offen
    buffer_load_dword v{gx+4}, v{V_L4}, {sr(SRD_X,4)}, s{S_T3} offen offset:1024
    buffer_load_dwordx4 {vr(gw,4)}, v{V_L16}, {sr(SRD_M,4)}, 0 offen
    buffer_load_dword v{gw+4}, v{V_L4}, {sr(SRD_M,4)}, 0 offen offset:1024
    ''')
    WF = False
    FM = 5 if 'fs2' in OPT else 4
    LATE = f'''
    s_lshl_b32 s78, s{S_MB}, {FM}
    s_add_u32 s78, s78, s{S_J}
    s_lshl_b32 s79, s78, {F2S}
    s_lshl_b32 s78, s78, {FS}
    s_add_u32 s79, s79, {WS_F2}
    v_mov_b32 v{V_FLG}, s79
    s_add_u32 s78, s78, {WS_F1}
    v_writelane_b32 v{V_FLG}, s78, 2
    s_lshr_b32 s78, s2, 3
    s_lshl_b32 s78, s78, 5
    s_and_b32 s79, s2, 7
    s_add_u32 s78, s78, s79
    s_lshl_b32 s78, s78, 2
    s_add_u32 s78, s78, {WS_F3}
    v_writelane_b32 v{V_FLG}, s78, 1
    s_add_u32 s78, s78, {WS_F0 - WS_F3}
    v_writelane_b32 v{V_FLG}, s78, 3
'''
    a(f'''
    s_cmp_eq_u32 s2, 0
    s_cbranch_scc0 k_noclr
    s_mul_i32 s78, s{S_W}, {1024*NCL}
    s_add_u32 s78, s78, {WS_F1}
    v_mov_b32 v{V_ACC}, 0
    v_mov_b32 v{V_ACC+1}, 0
    v_mov_b32 v{V_ACC+2}, 0
    v_mov_b32 v{V_ACC+3}, 0
    ''')
    for i in range(NCL):
        if i == 4: a('s_add_u32 s78, s78, 4096')
        a(f'buffer_store_dwordx4 {vr(V_ACC,4)}, v{V_L16}, {WSR}, s78 offen offset:{1024*(i&3)} {SC}')
    a('''
    k_noclr:''')
    a(f'''
    v_mov_b32 v{V_ONE}, 1
    v_mov_b32 v{t+40}, 0
    v_mov_b32 v{t+41}, 0
    ''')
    RAMP = 'noramp' not in OPT
    if not RAMP: groups('k_pb', (dma_w, dma_x, dma_w), (dma_x, dma_w, dma_x))
    if 'ng3' not in OPT: groups('k_pc', (dma_w,), (dma_x,))
    srd(a, SRD_M, S_DBG, 256)
    a(f'''
    v_lshrrev_b32 v{t+12}, 4, v0
    v_bfe_u32 v{t+13}, v0, 2, 2
    v_and_b32 v{t+14}, 3, v0
    v_lshlrev_b32 v{V_WB}, 10, v{t+12}
    v_lshl_add_u32 v{V_WB}, v{t+13}, 7, v{V_WB}
    v_lshl_add_u32 v{V_WB}, v{t+14}, 3, v{V_WB}
    v_bfe_u32 v{t+14}, v0, 3, 2
    s_and_b32 s{S_T0}, s{S_W}, 3
    v_xor_b32 v{t+14}, s{S_T0}, v{t+14}
    v_lshl_add_u32 v{V_WB}, v{t+14}, 5, v{V_WB}
    v_and_b32 v{t+13}, 15, v0
    v_bfe_u32 v{t+14}, v0, 1, 3
    v_xor_b32 v{t+14}, v{t+14}, v{t+12}
    v_lshlrev_b32 v{t+14}, 4, v{t+14}
    v_lshl_add_u32 v{t+14}, v{t+13}, 7, v{t+14}
    s_lshl_b32 s{S_T0}, s{S_P}, 13
    v_add_u32 v{V_XB0}, s{S_T0}, v{t+14}
    v_xor_b32 v{V_XB1}, 64, v{V_XB0}
    s_mov_b32 s{S_WRS}, 0
    s_mov_b32 s{S_XRS}, {XB}
    v_mov_b32 v{V_WA}, v{V_WB}
    v_add_u32 v{V_XA}, s{S_XRS}, v{V_XB0}
    s_mov_b32 s{S_CNT}, 0
    ''')
    RW = 4
    LATE += f'''
    s_mul_i32 s{S_RU}, s2, 3
    s_sub_u32 s83, s{S_W}, {RW}
    s_add_u32 s{S_RU}, s{S_RU}, s83
    s_cmp_lt_u32 s83, 3
    s_cselect_b32 s{S_RU}, {1000 if 'norep' in OPT else 's'+str(S_RU)}, 1000
    s_mul_i32 s78, s{S_RU}, 6554
    s_lshr_b32 s78, s78, 16
    s_mul_i32 s79, s78, 10
    s_sub_u32 s79, s{S_RU}, s79
    s_lshl_b32 s79, s79, 7
    s_lshr_b32 s80, s78, 2
    s_lshl_b32 s80, s80, {6 if sp else 7}
    s_and_b32 s81, s78, 3
    s_lshl_b32 s81, s81, 4
    s_add_u32 s80, s80, s81
    s_sub_u32 s81, s78, 48
    s_lshl_b32 s81, s81, 5
    s_cmp_lt_u32 s78, 48
    s_cselect_b32 s80, s80, s81
    s_mov_b32 s81, {16*1280}
    s_mov_b32 s86, {640*1280}
    s_cselect_b32 s81, {(768 if sp else 64)*1280}, s81
    s_cselect_b32 s84, s{S_WD}, s{S_WO}
    s_cselect_b32 s85, s{S_WD+1}, s{S_WO+1}
    s_cselect_b32 s86, {1536*1280}, s86
    s_mov_b32 s87, 0x20000
    s_mul_i32 s80, s80, 1280
    s_add_u32 s80, s80, s79
    v_mul_u32_u24 v{t+10}, 1280, v{t}
    v_lshl_add_u32 v{t+10}, v{t+1}, 4, v{t+10}
    s_lshl_b32 s79, s83, 12
    s_add_u32 s79, s79, {RB}
    v_lshrrev_b32 v{t+9}, 2, v0
    v_lshlrev_b32 v{t+9}, 7, v{t+9}
    v_and_b32 v{t+8}, 3, v0
    v_lshl_add_u32 v{t+9}, v{t+8}, 3, v{t+9}
    v_add_u32 v{t+9}, s79, v{t+9}
    s_lshl_b32 s95, s{S_RU}, 12
    s_add_u32 s95, s95, {WS_W2}
    '''
    ll = [l.strip() for l in LATE.split('\n') if l.strip()]
    un = []
    for i, l in enumerate(ll):
        k = i
        while ll[k].startswith('s_mov') and k + 1 < len(ll): k += 1
        if ll[k].startswith('s_cselect'): un[-1].append(l)
        else: un.append([l])
    late = [[] for _ in range(20)]
    for i, u_ in enumerate(un): late[(i * 20) // len(un)] += u_

    if 'p1' in OPT: a(f's_cmp_eq_u32 s{S_P}, 0\ns_cbranch_scc1 k_pr1\ns_setprio 1\nk_pr1:')
    def lines(x): return [l.strip() for l in x.split('\n') if l.strip()]
    def step(par, n, dma, salu='', per=None, first=False):
        a(f's_waitcnt lgkmcnt(0)' + (f' vmcnt({n})' if n is not None else '') + '\ns_barrier')
        mf = [f'v_mfma_f32_16x16x32_bf16 {vr(acc(c,tt),4)}, {vr(wfr(par,c),4)}, {vr(xfr(par,tt),4)}, {0 if first else vr(acc(c,tt),4)}' for c in range(5) for tt in range(4)]
        rd = reads(1 - par)
        slots = [[] for _ in range(20)]
        for i in range(14): slots[i + 1].append(rd[i])
        na = lines(next_addr(par))
        slots[15].append(na[-2]); slots[16].append(na[-1])
        units = []
        for l in na[:-2] + lines(salu):
            if l.startswith('s_cselect'): units[-1].append(l)
            else: units.append([l])
        pos = {5: [1, 5, 9, 13, 17] if 'dl' in OPT else [1, 4, 7, 10, 13] if 'de' in OPT else [2, 5, 9, 12, 16], 2: [3, 11] if 'dl' in OPT else [7, 14], 0: [],
               8: [1, 3, 5, 7, 10, 12, 15, 17], 9: [1, 3, 5, 7, 9, 11, 13, 16, 17] if 'l9' not in OPT else [1, 3, 5, 8, 11, 13, 15, 18, 19]}[len(dma)]
        for p_, d_ in zip(pos, dma):
            ls = [l for l in lines(d_) if l != 's_nop 0']
            if ls[-1].startswith('buffer'):
                slots[p_ - 1] += ls[:-1]; slots[p_].insert(0, ls[-1])
            else: slots[p_] += ls
        for i, u_ in enumerate(units): slots[(i * 14) // len(units)] += u_
        if per:
            for i in range(20): slots[i] += per[i]
        for m_, sl in zip(mf, slots):
            a(m_)
            for l in sl: a(l)
    g = t + 11
    gu = [[f'v_mov_b32 v{g}, 0']]
    for i in range(5):
        gu.append([f'v_lshlrev_b32 v{t+12}, 16, v{gx+i}', f'v_lshlrev_b32 v{t+13}, 16, v{gw+i}', f'v_fmac_f32 v{g}, v{t+12}, v{t+13}'])
        gu.append([f'v_and_b32 v{t+14}, 0xffff0000, v{gx+i}', f'v_and_b32 v{t+15}, 0xffff0000, v{gw+i}', f'v_fmac_f32 v{g}, v{t+14}, v{t+15}'])
    gu[0] += gu.pop(1)
    for dpp in ('row_shr:1', 'row_shr:2', 'row_shr:4', 'row_shr:8', 'row_bcast:15 row_mask:0xa', 'row_bcast:31 row_mask:0xc'):
        gu.append(['s_nop 0', f'v_add_f32_dpp v{g}, v{g}, v{g} {dpp}' + (' bound_ctrl:0' if 'shr' in dpp else '')])
    gu.append([f'v_mul_f32 v{g}, {hex(f2u(-LOG2E))}, v{g}', f'v_exp_f32 v{g}, v{g}', f's_lshl_b32 s78, s{S_MB}, 4', f's_add_u32 s78, s78, s{S_J}'])
    gu.append([f'v_add_f32 v{g}, 1.0, v{g}', f'v_rcp_f32 v{g}, v{g}', 's_lshl_b32 s78, s78, 5', f's_add_u32 s78, s78, s{S_W}'])
    gu.append(['s_lshl_b32 s78, s78, 2', f's_add_u32 s78, s78, {WS_G - 252}'])
    gu.append(['s_mov_b32 exec_lo, 0', 's_brev_b32 exec_hi, 1', f'buffer_store_dword v{g}, v{V_L4}, {WSR}, s78 offen {SC}', 's_mov_b64 exec, -1'])
    assert len(gu) == 20
    w2dyn = [s for s, _ in issue_w('')]
    for P in (1, 0):
        if P == 1: a(f's_cmp_eq_u32 s{S_P}, 0\ns_cbranch_scc1 k_l0pre')
        else: a('k_l0pre:')
        a(f's_waitcnt vmcnt({(9 if P == 0 else 4) + ((2 if P == 0 else 5) if "ng3" not in OPT else 0)})\ns_barrier')
        stamp(a, 2, prof)
        for g in reads(0): a(g)
        a(next_addr(1))
        if RAMP:
            if 'ng3' in OPT:
                for g_ in (dma_w(a) if P == 1 else dma_x(a)): a(g_)
            two = (lambda: dma_x(a) + dma_w(a)) if P == 1 else (lambda: dma_w(a) + dma_x(a))
            step(0, 6 if P == 0 else None, two(), '', late, True)
            step(1, 7 if P == 0 else 5, two()[:-1], '', gu)
            a(f's_mov_b32 s{S_CNT}, 1\ns_branch k_side')
        a(f'k_l{P}:')
        for par in range(2):
            n = {(0, 0): 9, (0, 1): 12, (1, 1): 7, (1, 0): None}[(P, par)]
            step(par, n, dma_w(a)[:-1] if par == P else dma_x(a)[:-1], dma_x(a)[-1] if par == P else dma_w(a)[-1])
            if par == 0: a(f's_cmp_eq_u32 s{S_CNT}, 7\ns_cbranch_scc1 k_tail')
        a(f's_add_u32 s{S_CNT}, s{S_CNT}, 1\ns_bitcmp1_b32 {0b1011110}, s{S_CNT}\ns_cbranch_scc0 k_l{P}')
        if P == 1: a('s_branch k_side')
    a(f'k_side:\ns_cmp_eq_u32 s{S_CNT}, 1\ns_cbranch_scc0 k_side1')
    RW = 0 if 'rw0' in OPT else 4
    e = t + 16
    a(f'''
    s_cmp_eq_u32 s{S_W}, 3
    s_cselect_b32 s78, s2, 1
    s_cmp_eq_u32 s78, 0
    s_cbranch_scc0 k_nosig
    s_mov_b64 exec, 1
    buffer_store_dword v{V_ONE}, v{V_L4}, {sr(SRD_M,4)}, 0 offen {SC}
    s_mov_b64 exec, -1
    k_nosig:
    s_cmp_ge_u32 s{S_RU}, 680
    s_cbranch_scc1 k_back
    ''')
    for i in range(4):
        a(f's_add_u32 m0, s79, {i*1024}')
        a([f's_nop 0', f's_add_u32 s82, s80, {8*1280}', 's_add_u32 s80, s80, s81', f's_add_u32 s82, s80, {8*1280}'][i])
        a(f'buffer_load_dwordx4 v{t+10}, s[84:87], s{82 if i & 1 else 80} offen' + (' nt' if 'ntw' in OPT else '') + ' lds')
    a(f'''s_branch k_back
    k_side1:
    s_cmp_eq_u32 s{S_CNT}, 2
    s_cbranch_scc0 k_side2
    s_cmp_ge_u32 s{S_RU}, 680
    s_cbranch_scc1 k_back
    s_waitcnt vmcnt(7)
    ''')
    for uu in range(4):
        for h in range(2):
            a(f'ds_read_b64_tr_b16 {vr(e+4+4*uu+2*h,2)}, v{t+9} offset:{h*2048+uu*32}')
    a('s_waitcnt lgkmcnt(0)')
    for uu in range(4):
        a(f'buffer_store_dwordx4 {vr(e+4+4*uu,4)}, v{V_L16}, {WSR}, s95 offen offset:{1024*uu} {SC}')
    z = t + 40
    a(f'''s_branch k_back
    k_side2:''')
    if prof:
        a(f's_cmp_eq_u32 s{S_CNT}, 4\ns_cbranch_scc0 k_nst')
        stamp(a, 14, prof)
        a('k_nst:')
    a(f'''
    s_cmp_eq_u32 s{S_W}, 3
    s_cbranch_scc0 k_back
    s_cmp_eq_u32 s{S_CNT}, 4
    s_cbranch_scc1 k_side4
    s_cmp_eq_u32 s{S_CNT}, 6
    s_cbranch_scc1 k_side6
    v_mov_b32 v{z}, 0
    v_lshrrev_b32 v{z+1}, 1, v0
    v_lshlrev_b32 v{z+1}, 3, v{z+1}
    v_and_or_b32 v{z+1}, v0, 1, v{z+1}
    v_lshlrev_b32 v{z+1}, 4, v{z+1}
    buffer_load_dword v{V_PL}, v{z}, {sr(SRD_M,4)}, 0 offen {SC}
    s_branch k_back
    k_side4:
    s_waitcnt vmcnt(7)''')
    spin(a, z, sr(SRD_M, 4), 0, 1, True)
    flag(a, 3)
    a(f'''s_branch k_back
    k_side6:
    s_mov_b32 s99, {WS_F0}
    buffer_load_dwordx4 {vr(z+2,4)}, v{z+1}, {WSR}, s99 offen {SC}
    k_back:
    s_cmp_eq_u32 s{S_P}, 0
    s_cbranch_scc1 k_l0
    s_branch k_l1
    k_tail:''')
    stamp(a, 15, prof)
    s4_setup(a)
    u = V_T + 16
    a(f'''
    s_and_b32 s{S_T0}, s{S_W}, 3
    s_lshl_b32 s{S_T2}, s{S_LC0}, 2
    s_add_u32 s{S_T2}, s{S_T2}, s{S_T0}
    s_mul_i32 s{S_T2}, s{S_T2}, {4*PS}
    s_lshl_b32 s{S_T3}, s{S_MB}, 10
    s_add_u32 s{S_T2}, s{S_T2}, s{S_T3}
    s_lshl_b32 s{S_T3}, s{S_P}, 9
    s_add_u32 s{S_T2}, s{S_T2}, s{S_T3}
    v_lshrrev_b32 v{u}, 4, v0
    v_mul_u32_u24 v{u}, {PS}, v{u}
    v_and_b32 v{u+1}, 15, v0
    v_lshl_add_u32 v{u}, v{u+1}, 4, v{u}
    s_cmp_lt_u32 s{S_LC0}, 10
    s_cselect_b32 s{S_T3}, {hex(f2u(20 ** -0.5 * LOG2E))}, 1.0
    ''')
    a(f's_and_b32 s98, s{S_J}, 7\ns_cmp_eq_u32 s98, 1\ns_cselect_b32 s{S_T2}, 0x40000000, s{S_T2}')
    a(w_next())
    a(f'''s_cmp_eq_u32 s{S_W}, 3
    s_cbranch_scc0 k_rdy
    s_waitcnt vmcnt(12)
    s_mov_b32 s98, 0
    s_mov_b32 s99, {WS_F0}
    k_rdl:
    v_and_b32 v{z+2}, v{z+2}, v{z+3}
    v_and_b32 v{z+4}, v{z+4}, v{z+5}
    v_and_b32 v{z+2}, v{z+2}, v{z+4}
    v_cmp_ne_u32 vcc, 1, v{z+2}
    s_add_u32 s98, s98, 1
    s_cbranch_vccz k_rdy
    buffer_load_dwordx4 {vr(z+2,4)}, v{z+1}, {WSR}, s99 offen {SC}
    s_waitcnt vmcnt(0)
    s_cmp_lt_u32 s98, 0x40000
    s_cbranch_scc1 k_rdl
    k_rdy:''')
    a(f's_cmp_eq_u32 s{S_P}, 0\ns_cbranch_scc1 k_todd0\ns_branch k_todd1')
    def w2touch(L='k_not'):
        a(f'''
        s_and_b32 s62, s{Q_MT}, 7
        s_lshl_b32 s62, s62, 3
        s_add_u32 s62, s62, s{S_W}
        s_cmp_lt_u32 s62, 48
        s_cbranch_scc0 {L}
        s_lshl_b32 s62, s62, 3
        s_add_u32 s62, s62, s{Q_N}
        s_mul_i32 s62, s62, 5120
        s_add_u32 s62, s62, {WS_W2 + 20*40*1024}
        v_lshlrev_b32 v{V_PF}, 7, v0
        s_mov_b32 exec_hi, 0xff
        buffer_load_dword v{V_PD}, v{V_PF}, {WSR}, s62 offen {SC}
        s_mov_b32 exec_hi, -1
        {L}:''')
    for P in (1, 0):
        a(f'k_teven{P}:')
        step(0, 5 if P == 0 else None, w2dyn if P == 0 else [], '' if P == 0 else w_next())
        a(f's_cmp_eq_u32 s{S_CNT}, 9\ns_cbranch_scc1 k_s1e\nk_todd{P}:')
        step(1, 10 if P == 0 else 5, w2dyn if P == 1 else [], '' if P == 1 else w_next())
        if OPT & {'wt7', 'wt8'}:
            a(f's_cmp_eq_u32 s{S_CNT}, {7 if "wt7" in OPT else 8}\ns_cbranch_scc0 k_not{P}')
            w2touch(f'k_not{P}')
        a(f's_add_u32 s{S_CNT}, s{S_CNT}, 1\ns_branch k_teven{P}')
    HP = 'sc1 nt' if 'hnt' in OPT else 'sc0 sc1' if 'h01' in OPT else SC
    QP = 'sc1 nt' if 'qnt' in OPT else 'sc0 sc1' if 'q01' in OPT else SC
    def qkv_tile(c, scale):
        o = [f's_add_u32 s{S_T2}, s{S_T2}, {16*PS}'] if c else []
        for tp in range(2):
            d = u + 4 + 4 * tp + 8 * (c & 1)
            for tt in range(2):
                b = acc(c, 2 * tp + tt)
                if scale: o += [f'v_mul_f32 v{b+r}, s{S_T3}, v{b+r}' for r in range(4)]
                o += [f'v_cvt_pk_bf16_f32 v{d+2*tt}, v{b}, v{b+1}', f'v_cvt_pk_bf16_f32 v{d+2*tt+1}, v{b+2}, v{b+3}']
            o.append(f'buffer_store_dwordx4 {vr(d,4)}, v{u}, {WSR}, s{S_T2} offen offset:{256*tp} {QP}')
        return o
    def last(order, fill):
        slots = [[] for _ in range(20)]
        for s0, n, ls in fill:
            for i, l in enumerate(ls): slots[s0 + (i * n) // len(ls)].append(l)
        for (c, tt), sl in zip(order, slots):
            a(f'v_mfma_f32_16x16x32_bf16 {vr(acc(c,tt),4)}, {vr(wfr(1,c),4)}, {vr(xfr(1,tt),4)}, {vr(acc(c,tt),4)}')
            for l in sl: a(l)
        stamp(a, 3, prof)
    a(f'k_s1e:\ns_waitcnt lgkmcnt(0)\ns_barrier\ns_cmp_eq_u32 s{S_P}, 0\ns_cbranch_scc1 k_ls0')
    for l in w2dyn: a(l)
    a(f'k_ls0:\ns_cmp_lt_u32 s{S_J}, 12\ns_cbranch_scc1 k_eg')
    last([(c, tt) for c in range(5) for tt in range(4)], [(8 + 4 * c, 4, qkv_tile(c, False)) for c in range(3)])
    for l in qkv_tile(3, False) + qkv_tile(4, False): a(l)
    a('s_branch k_ef\nk_eg:')
    last([(0, tt) for tt in range(4)] + [(c, tt) for tt in range(4) for c in range(1, 5)], [(8, 8, qkv_tile(0, True))])
    a(f'''
    s_mov_b32 s{S_T3}, {hex(f2u(-LOG2E))}
    ''')
    a(f'''
    s_lshl_b32 s{Q_HO}, s{S_MB}, 1
    s_add_u32 s{Q_HO}, s{Q_HO}, s{S_P}
    s_mul_i32 s{Q_HO}, s{Q_HO}, {4*68}
    s_lshl_b32 s{S_T2}, s{S_J}, 2
    s_add_u32 s{Q_HO}, s{Q_HO}, s{S_T2}
    s_add_u32 s{Q_HO}, s{Q_HO}, s{S_T0}
    s_lshl_b32 s{Q_HO}, s{Q_HO}, 10
    s_add_u32 s{Q_HO}, s{Q_HO}, {WS_A2}
    ''')
    e = 104
    def hst(tt): a(f'buffer_store_dwordx4 {vr(V_H+4*tt,4)}, v{V_L16}, {WSR}, s{Q_HO} offen {HP}\ns_add_u32 s{Q_HO}, s{Q_HO}, {68*1024}')
    def htile(tt, st=True):
        idx = [(c, r) for c in range(2) for r in range(4)]
        for k, (c, r) in enumerate(idx): a(f'v_mul_f32 v{e+k}, s{S_T3}, v{acc(1+c,tt)+r}')
        for k in range(8): a(f'v_exp_f32 v{e+k}, v{e+k}')
        for k, (c, r) in enumerate(idx):
            a(f'v_mul_f32 v{acc(1+c,tt)+r}, v{acc(1+c,tt)+r}, v{acc(3+c,tt)+r}\nv_add_f32 v{e+k}, 1.0, v{e+k}')
        for k in range(8): a(f'v_rcp_f32 v{e+k}, v{e+k}')
        a('s_nop 0')
        for k, (c, r) in enumerate(idx): a(f'v_mul_f32 v{e+k}, v{e+k}, v{acc(1+c,tt)+r}')
        for k in range(4): a(f'v_cvt_pk_bf16_f32 v{V_H+4*tt+k}, v{e+2*k}, v{e+2*k+1}')
        if st: hst(tt)
    HS = ([int(o[2]) for o in OPT if o[:2] == 'hs'] + [1])[0]
    for tt in range(HS): htile(tt, False)
    st3.LB = 5 * SLOT
    p = 130
    a('k_ef:')
    st3.ids(a)
    a(f'''
    s_mov_b32 s99, {WS_F1}
    s_waitcnt vmcnt(0)
    s_barrier
    s_cmp_eq_u32 s{S_W}, 0
    s_cbranch_scc0 k_f1''')
    flag(a, 2)
    a('k_f1:')
    stamp(a, 4, prof)
    a(w_next())
    st3.loads_pre(a)
    def hstores():
        for tt in range(4):
            a(f'buffer_store_dwordx4 {vr(V_H+4*tt,4)}, v{V_L16}, {WSR}, s{Q_HO} offen {SC}')
            if tt < 3: a(f's_add_u32 s{Q_HO}, s{Q_HO}, {68*1024}')
    a(f's_cmp_lt_u32 s{Q_J}, 12\ns_cbranch_scc0 k_nh0')
    for tt in range(HS): hst(tt)
    for tt in range(HS, 4): htile(tt)
    HL = 'hl' in OPT
    if 'hend' in OPT: hstores()
    a('k_nh0:')
    H_, QB_ = st3.S_H, st3.S_QB
    a(f'''
    s_and_b32 s62, s{S_W}, 3
    s_lshl_b32 s63, s{QB_}, 1
    s_add_u32 s64, s63, s62
    s_sub_u32 s64, s64, 2
    s_cselect_b32 s64, s62, s64
    s_lshl_b32 s64, s64, 4
    s_lshr_b32 s62, s{H_}, 4
    s_add_u32 s64, s64, s62
    s_add_u32 s64, s64, 12
    v_mov_b32 v{p}, s64
    s_add_u32 s64, s64, 2
    v_writelane_b32 v{p}, s64, 1
    s_add_u32 s63, s63, s{S_P}
    s_lshl_b32 s63, s63, 4
    s_mul_i32 s62, s{H_}, 20''')
    for k in range(2):
        a(f'''
        s_lshr_b32 s64, s62, 6
        s_min_u32 s65, s64, 1
        s_add_u32 s65, s65, s64
        s_lshr_b32 s64, s64, 3
        s_add_u32 s65, s65, s64
        s_add_u32 s65, s65, s63
        v_writelane_b32 v{p}, s65, {2+k}
        s_add_u32 s62, s62, 19''')
    a(f'v_lshlrev_b32 v{p}, {FS}, v{p}')
    if 'wt1' in OPT: w2touch()
    a(f'buffer_load_dword v{V_PL}, v{p}, {WSR}, s99 offen {SC}')
    st3.setup(a)
    F2L = 'f2l' in OPT or 'hkv' in OPT
    def f2():
        a(f's_cmp_eq_u32 s{S_W}, 2\ns_cbranch_scc0 k_f2')
        flag(a, 0)
        a('k_f2:')
    a('s_waitcnt vmcnt(0)')
    if not F2L: a('s_barrier'); f2()
    if 'hkv' in OPT:
        a(f'v_cmp_ne_u32 vcc, 1, v{V_PL}\ns_cbranch_vccz k_hk1\ns_cmp_lt_u32 s{Q_J}, 12\ns_cbranch_scc0 k_hk0\ns_mov_b32 s{Q_J}, 12')
        hstores()
        a('k_hk0:')
        spin(a, p, WSR, 's99', 1)
        a('k_hk1:')
    else: spin(a, p, WSR, 's99', 1, True)
    stamp(a, 5, prof)
    st3.loads(a, SC)
    if 'hkv' in OPT:
        a(f's_cmp_lt_u32 s{Q_J}, 12\ns_cbranch_scc0 k_hk2')
        hstores()
        a('k_hk2:')
    a(f's_lshr_b32 s99, s{Q_MT}, 1\ns_lshl_b32 s99, s99, {F2S+FM}\ns_add_u32 s99, s99, {WS_F2}\nv_and_b32 v{V_L4}, 15, v0\nv_lshlrev_b32 v{V_L4}, {F2S}, v{V_L4}')
    pre = {0: [0, 1], 1: [2, 3], 2: [4, 10], 3: [5, 6], 4: [7, 11], 5: [8, 9]}
    if 'pb' in OPT: pre = {-1: [0, 1], 0: [2, 3], 1: [4, 10], 2: [5, 11], 3: [6], 4: [7], 5: [8, 9]}
    if 'pc' in OPT: pre = {1: [0, 1], 2: [2, 3], 3: [4, 5], 4: [6, 7], 5: [8, 9], 6: [10, 11]}
    if 'pd' in OPT: pre = {2: [0, 1, 2], 3: [3, 4, 5], 4: [6, 7], 5: [8, 9], 6: [10, 11]}
    if 'pe' in OPT: pre = {3: [0, 1, 2], 4: [3, 4, 5], 5: [6, 7, 8], 6: [9, 10, 11]}
    if 'pg' in OPT: pre = {4: [0, 1, 2], 5: [3, 4, 5], 6: [6, 7]}
    if 'pm' in OPT: pre = {-1.5: [0, 1], -1: [2, 3], 0: [10], 1: [4, 11], 2: [5], 3: [6], 4: [7], 5: [8], 6: [9]}
    if not OPT & {'pa', 'pb', 'pc', 'pm'}: pre = {-1.5: [0, 1], -1: [2, 3], 0: [10, 4], 1: [11], 2: [5], 3: [6], 4: [7], 5: [8, 9]}
    TC = min(pre)
    NPRE = sum(len(v) for v in pre.values())
    def hook(x):
        if 'wt2' in OPT and x == -2: w2touch()
        if 'wt3' in OPT and x == 6: w2touch(); a.vm.append(None); a.vm.pop()
        if HL and x == -2:
            a(f's_cmp_lt_u32 s{Q_J}, 12\ns_cbranch_scc0 k_hl0')
            hstores()
            a('k_hl0:')
        if HL and x == -3:
            a(f's_cmp_lt_u32 s{Q_J}, 12\ns_cbranch_scc1 k_hl1\ns_waitcnt vmcnt(0)\nk_hl1:\ns_waitcnt vmcnt(4)')
            return True
        if HL and x == (1 if 'hf1' in OPT else 0):
            a('s_waitcnt vmcnt(0)'); flag(a, 0)
        if 'noprio' not in OPT:
            if x == -2: a(f's_cmp_eq_u32 s{S_P}, 0\ns_cbranch_scc1 k_pr0\ns_setprio 1\nk_pr0:')
            if x == (2 if 'pr2' in OPT else 3 if 'pr3' in OPT else 1): a('s_setprio 0')
        if x == max(-2, TC - 1):
            a(f'buffer_load_dword v{V_PL}, v{V_L4}, {WSR}, s99 offen {SC}')
        if x == TC:
            a('s_waitcnt vmcnt(0)')
            spin(a, V_L4, WSR, 's99', 1, True)
        g_ = []
        for r in pre.get(x, []): g_ += issue_a(r)
        for s_, tag in g_: a.vm.append(tag)
        return [s_ for s_, tag in g_]
    st3.compute(a, prof, SC, hook)
    srd(a, SRD_O, S_OUT, 2048 * 1280)
    a4 = lambda f, t_: V4_ACC + (f * 2 + t_) * 4
    a(f'''v_and_b32 v2, 15, v0
    v_lshrrev_b32 v3, 4, v0
    v_mul_u32_u24 v3, {PS}, v3
    v_lshl_add_u32 v4, v2, 4, v3
    v_lshrrev_b32 v2, 4, v0
    v_lshlrev_b32 v2, 7, v2
    ''')
    if WF: a(f'v_and_b32 v3, 31, v0\nv_lshlrev_b32 v3, 2, v3\ns_add_u32 s99, s{Q_G}, {WS_F3}')
    elif F3S: a(f'v_and_b32 v3, 31, v0\nv_lshlrev_b32 v3, 7, v3\ns_lshr_b32 s99, s{Q_MT}, 2\ns_lshl_b32 s99, s99, 12\ns_add_u32 s99, s99, {WS_F1 + 8}')
    else: a(f'v_bfe_u32 v3, v0, 3, 2\nv_lshlrev_b32 v3, 5, v3\nv_and_or_b32 v3, v0, 7, v3\nv_lshlrev_b32 v3, 2, v3\ns_lshr_b32 s99, s{Q_MT}, 2\ns_lshl_b32 s99, s99, 9\ns_add_u32 s99, s99, {WS_F3}')
    a(f'''
    s_mul_i32 s{Q_O}, s{Q0}, {4*PS}
    s_add_u32 s{Q_O}, s{Q_O}, s{Q_G}
    s_lshl_b32 s{Q_O}, s{Q_O}, 1
    s_add_u32 s{Q_O}, s{Q_O}, {WS_O - 12*32*PS}
    s_lshl_b32 s{Q_G}, s{Q_G}, 2
    s_add_u32 s{Q_G}, s{Q_G}, {WS_G}''')
    G8 = 122

    def rds(r):
        sl = r % NS
        return [f'ds_read_b128 {vr(V4_F+20*(r&1)+4*f,4)}, v{[V_RA,V_RA2,V_RA3][sl//3]} offset:{(sl%3)*SLOT+f*1024}' for f in range(5)]
    for l in rds(0): a(l)
    t = 5
    RED = SLOT; SE = 272; SF = 2368; SW = 5 * SF
    a(f'''
    v_mul_u32_u24 v{t+1}, 26, v0
    v_lshrrev_b32 v{t+1}, 8, v{t+1}
    v_mul_u32_u24 v{t+2}, 10, v{t+1}
    v_sub_u32 v{t+2}, v0, v{t+2}
    v_mul_u32_u24 v{t+3}, {SE}, v{t+1}
    v_lshrrev_b32 v{t+4}, 1, v{t+2}
    v_mul_u32_u24 v{t+4}, {SF-64}, v{t+4}
    v_lshl_add_u32 v{t+3}, v{t+2}, 5, v{t+3}
    s_mul_i32 s{Q2}, s{S_P}, {4*SW}
    s_lshl_b32 s{Q3}, s{Q0}, 6
    s_add_u32 s{Q2}, s{Q2}, s{Q3}
    s_add_u32 s{Q2}, s{Q2}, {RED}
    v_add3_u32 v{t+3}, v{t+3}, v{t+4}, s{Q2}
    v_mul_u32_u24 v{t+1}, 1280, v{t+1}
    v_lshl_add_u32 v{t+1}, v{t+2}, 4, v{t+1}
    s_lshl_b32 s{Q_HO}, s{Q_MT}, 3
    s_add_u32 s{Q_HO}, s{Q_HO}, s{S_W}
    s_mul_i32 s{Q_HO}, s{Q_HO}, {8*1280}
    s_mul_i32 s{Q3}, s{Q_N}, 160
    s_add_u32 s{Q_HO}, s{Q_HO}, s{Q3}
    s_add_u32 s{Q3}, s{Q_HO}, {4*1280}
    ''')
    RF = 2 if 'rf2' in OPT else 0 if 'rf0' in OPT else 1
    RP = 7 if 'rp7' in OPT else 8 if 'rp8' in OPT else 9
    assert NPRE == 12
    Wg = lambda g: issue_w(f'w{4+2*g}') + [(w_next(), None)]
    stream = Wg(0) + Wg(1) + Wg(2) + Wg(3) + Wg(4) + issue_a(12) + issue_a(13) + issue_a(14) + Wg(5) + issue_a(15) + issue_a(16)
    quota = {'qa': [4, 3, 3, 3, 3, 3, 3, 3, 4, 4, 4, 3], 'qb': [3, 3, 3, 3, 3, 3, 3, 2, 2, 4, 4, 3, 4], 'qc': [4, 4, 4, 4, 3, 3, 3, 4, 4, 4, 3],
             'qd': [4, 3, 3, 3, 3, 3, 3, 3, 3, 3, 3, 3, 3], 'qe': [3, 3, 3, 3, 3, 3, 3, 2, 2, 3, 3, 3, 3, 3]}[([o for o in OPT if o in ('qd', 'qa', 'qe')] + ['qb'])[0]] + [0] * 8
    RP = [r for r in range(17) if sum(quota[:r + 1]) > 25][0]
    assert sum(quota[:RP]) == 25 and sum(quota) == 40
    for r in range(17):
        need = [f'a{r}'] + (['g'] if r == 12 else []) + (['f3'] if r == RP else []) + (['ost'] if r == RF else [])
        if r % 2 == 0: need.append(f'w{r}')
        a.vmwait(need, 'lgkmcnt(0)')
        if r == RF and WF: flag(a, 1); a.vm.append('fl')
        if (r % 2 == 0 and r < 16) or r == RF: a('s_barrier')
        if r == RF and not WF:
            a(f's_cmp_eq_u32 s{S_W}, 0\ns_cbranch_scc0 k_f3')
            flag(a, 1)
            a('k_f3:')
        if r in (0, 4, 9, 12): stamp(a, {0: 8, 4: 11, 9: 12, 12: 13}[r], prof)
        if r == RP: spin(a, 3, WSR, 's99', 1, True)
        if r == 12:
            for i in range(8): a(f'v_sub_f32 v{G8+i}, 1.0, v{G8+i}')
            for f in range(5):
                for t_ in range(2):
                    for i in range(4): a(f'v_mul_f32 v{a4(f,t_)+i}, v{G8+2*i+t_}, v{a4(f,t_)+i}')
        if r >= 12: a(f'v_swap_b32 v{AREG[r]+2}, v{AREG[r]+4}\nv_swap_b32 v{AREG[r]+3}, v{AREG[r]+5}\ns_nop 1')
        mf = [f'v_mfma_f32_16x16x32_bf16 {vr(a4(f,t_),4)}, {vr(AREG[r]+4*t_,4)}, {vr(V4_F+20*(r&1)+4*f,4)}, ' + ('0' if r == 0 else vr(a4(f, t_), 4)) for f in range(5) for t_ in range(2)]
        iss = []
        if r == RP - (1 if 'pd1' in OPT else 2): iss.append((f'buffer_load_dword v{V_PL}, v3, {WSR}, s99 offen {SC}', 'f3'))
        if r in (7, 8): iss.append((f'buffer_load_dwordx4 {vr(G8+4*(r-7),4)}, v2, {WSR}, s{Q_G} offen offset:{16*(r-7)} {SC}', 'g'))
        n_ = quota[r]
        while n_ > 0 and stream:
            it = stream.pop(0); iss.append(it)
            if it[1]: n_ -= 1
        if stream and stream[0][1] is None: iss.append(stream.pop(0))
        for s_, tag in iss:
            if tag: a.vm.append(tag)
        slots = [[] for _ in range(10)]
        if r < 16:
            for i, l in enumerate(rds(r + 1)): slots[i].append(l)
        n = len(iss)
        for i, (s_, tag) in enumerate(iss): slots[(i * 10) // n if n > 4 else 1 + 2 * i].append(s_)
        if r == 16: slots[0].append(f's_mul_i32 s{Q2}, s{Q0}, {SW}\ns_add_u32 m0, s{Q2}, {RED}\ns_cmp_eq_u32 s{S_P}, 0')
        for m_, sl in zip(mf, slots):
            a(m_)
            for l in sl: a(l)
    a('s_cbranch_scc1 k_rw0')
    for P in (1, 0):
        if P == 0: a('k_rw0:')
        for f in range(5):
            for tt in range(2):
                for i in range(4): a(f'ds_write_addtid_b32 v{a4(f,tt)+i} offset:{P*4*SW+f*SF+(2*i+tt)*SE}')
        if P == 1: a('s_branch k_rw1')
    a('k_rw1:')
    stamp(a, 9, prof)
    a('s_waitcnt lgkmcnt(0)\ns_barrier\ns_mov_b32 exec_hi, 0xff')
    R = 26
    for ps in range(2):
        for kq in range(4):
            for h in range(2):
                if ps == 1 and kq == 3 and h == 1: a('s_waitcnt lgkmcnt(14)')
                a(f'ds_read_b128 {vr(R+32*ps+8*kq+4*h,4)}, v{t+3} offset:{kq*SW+ps*4*SE+h*16}')
    for ps in range(2):
        b = R + 32 * ps
        a(f's_waitcnt lgkmcnt({8 if ps == 0 else 0})')
        for i in range(8): a(f'v_add_f32 v{b+i}, v{b+i}, v{b+8+i}\nv_add_f32 v{b+16+i}, v{b+16+i}, v{b+24+i}')
        for i in range(8): a(f'v_add_f32 v{b+i}, v{b+i}, v{b+16+i}')
        for k in range(4): a(f'v_cvt_pk_bf16_f32 v{b+8+k}, v{b+2*k}, v{b+2*k+1}')
        a(f'buffer_store_dwordx4 {vr(b+8,4)}, v{t+1}, {sr(SRD_O,4)}, s{Q_HO if ps == 0 else Q3} offen' + (' sc1' if 'osc' in OPT else ' nt' if 'ont' in OPT else ''))
    a('s_mov_b64 exec, -1')
    stamp(a, 10, prof)
    stamp_flush(a, prof, 0)
    if 'fix' in OPT: a('k_fix:\ns_memrealtime s[98:99]\ns_waitcnt lgkmcnt(0)\ns_sub_u32 s98, s98, s100\ns_cmp_lt_u32 s98, 6000\ns_cbranch_scc1 k_fix')
    a('k_end:\ns_endpgm')
    ref = open('gated_mix__sliding_block__swiglu_ffn__prompt.s.ref').read()
    hdr = ref.split('; Override')[0]
    s = hdr + '; @launch grid=(256,1,1) block=(512,1,1) lds=163840\n' + DOC + '.amdgcn_target "amdgcn-amd-amdhsa--gfx950"\n.text\n'
    s += f'.globl {NAME}\n.p2align 8\n.type {NAME},@function\n{NAME}:\n' + a.text()
    s += ref[ref.index('.section .rodata'):]
    return s
if __name__ == '__main__':
    open('gated_mix__sliding_block__swiglu_ffn__prompt.s', 'w').write(build())
    open('prof.s', 'w').write(build(True))
    for o in sys.argv[1:]:
        OPT.clear(); OPT.update(o.split('+'))
        open(f'prof_{o}.s', 'w').write(build(True))
        open(f'v_{o}.s', 'w').write(build(False))
```
